```python
import torch

def _softmax(x, axis=-1):
    return torch.softmax(x, dim=axis)

def _gelu(x):
    return torch.nn.functional.gelu(x, approximate='tanh')

def _silu(x):
    return torch.nn.functional.silu(x)

def _sigmoid(x):
    return torch.sigmoid(x)

def _layernorm(x, axis=-1, eps=1e-05):
    m = x.mean(dim=axis, keepdim=True)
    v = x.var(dim=axis, keepdim=True, unbiased=False)
    return (x - m) / torch.sqrt(v + eps)

def _scatter_add(tgt, idx, src, axis=0):
    return tgt.clone().index_add_(axis, idx, src)

def _segment_sum(src, seg, n):
    out = torch.zeros((n,) + src.shape[1:], dtype=src.dtype)
    return out.index_add_(0, seg, src)

def _pad(x, pw):
    flat = tuple((v for pair in reversed(pw) for v in pair))
    return torch.nn.functional.pad(x, flat)
kernel_name = 'adaLN_cond__sliding_block__swiglu_ffn__prompt'

def setup_inputs():

    _w = lambda a: (lambda t: t.to(torch.bfloat16) if t.is_floating_point() else t)(torch.as_tensor(a))

    def _A_setup():
        B, S, D = (1, 2048, 640)
        return {'x': _w((lambda *s: torch.randn(*s, dtype=torch.bfloat16) * 0.05)(B, S, D)), 'wqkv': _w((lambda *s: torch.randn(*s, dtype=torch.bfloat16) * 0.05)(D, 3 * D)), 'wo': _w((lambda *s: torch.randn(*s, dtype=torch.bfloat16) * 0.05)(D, D))}
    _A_in = _A_setup()

    def _B_setup():
        B, S, D, F = (1, 2048, 640, 1536)
        return {'x': _w((lambda *s: torch.randn(*s, dtype=torch.bfloat16) * 0.05)(B, S, D)), 'w_gate': _w((lambda *s: torch.randn(*s, dtype=torch.bfloat16) * 0.05)(D, F)), 'w_up': _w((lambda *s: torch.randn(*s, dtype=torch.bfloat16) * 0.05)(D, F)), 'w_down': _w((lambda *s: torch.randn(*s, dtype=torch.bfloat16) * 0.05)(F, D))}
    _B_in = _B_setup()
    return {'A_x': _A_in['x'], 'A_wqkv': _A_in['wqkv'], 'A_wo': _A_in['wo'], 'B_x': _B_in['x'], 'B_w_gate': _B_in['w_gate'], 'B_w_up': _B_in['w_up'], 'B_w_down': _B_in['w_down'], 'c': _w((lambda *s: torch.randn(*s, dtype=torch.bfloat16) * 0.1)(1, 640) * 8.0), 'w_mod': _w((lambda *s: torch.randn(*s, dtype=torch.bfloat16) * 0.1)(640, 6 * 640) * 640 ** (-0.5) * 8.0)}

def reference(A_x, A_wqkv, A_wo, B_x, B_w_gate, B_w_up, B_w_down, c, w_mod):

    def _A_ref(x, wqkv, wo):
        B, S, D = x.shape
        H = 32
        Dh = D // H
        W = 256
        qkv = (lambda x, *d: x.permute(*d))((x @ wqkv).reshape(B, S, 3, H, Dh), 2, 0, 3, 1, 4)
        q, k, v = (qkv[0], qkv[1], qkv[2])
        scores = torch.einsum('bhqd,bhkd->bhqk', q, k) * Dh ** (-0.5)
        idx = torch.arange(S)
        mask = (idx[:, None] - idx[None, :] >= 0) & (idx[:, None] - idx[None, :] < W)
        scores = torch.where(mask[None, None], scores, -1000000000.0)
        p = _softmax(scores, axis=-1)
        o = torch.einsum('bhqk,bhkd->bhqd', p, v)
        return (lambda x, *d: x.permute(*d))(o, 0, 2, 1, 3).reshape(B, S, D) @ wo

    def _B_ref(x, w_gate, w_up, w_down):
        g = _silu(x @ w_gate)
        u = x @ w_up
        return g * u @ w_down
    x = A_x
    mod = (_silu(c) @ w_mod).reshape(c.shape[0], 6, 1, -1)
    sa, ca, ga, sb, cb, gb = (mod[:, 0].clone(), mod[:, 1].clone(), mod[:, 2].clone(), mod[:, 3].clone(), mod[:, 4].clone(), mod[:, 5].clone())
    h = _layernorm(x, axis=-1) * (1 + ca) + sa
    x = x + ga * _A_ref(h, A_wqkv, A_wo)
    h = _layernorm(x, axis=-1) * (1 + cb) + sb
    x = x + gb * _B_ref(h, B_w_gate, B_w_up, B_w_down)
    return x
```

```python
import re

REG_RE = re.compile(r'\b([vas])(\d+)\b|\b([vas])\[(\d+):(\d+)\]')

def regs_of(tok):
    out = []
    for m in REG_RE.finditer(tok):
        if m.group(1):
            out.append((m.group(1), int(m.group(2))))
        else:
            for i in range(int(m.group(4)), int(m.group(5)) + 1):
                out.append((m.group(3), i))
    if re.search(r'\bvcc\b', tok): out += [('s', 106), ('s', 107)]
    if re.search(r'\bexec\b', tok): out += [('s', 126), ('s', 127)]
    if re.search(r'\bexec_lo\b', tok): out += [('s', 126)]
    if re.search(r'\bexec_hi\b', tok): out += [('s', 127)]
    if re.search(r'\bm0\b', tok): out += [('s', 124)]
    return out

TRANS = ('v_exp_f32', 'v_log_f32', 'v_rcp_f32', 'v_rsq_f32', 'v_sqrt_f32', 'v_sin_f32', 'v_cos_f32')

def split_ops(s):
    ops, depth, cur = [], 0, ''
    for ch in s:
        if ch == '[': depth += 1
        if ch == ']': depth -= 1
        if ch == ',' and depth == 0:
            ops.append(cur.strip()); cur = ''
        else:
            cur += ch
    if cur.strip(): ops.append(cur.strip())
    return ops

class Kern:
    def __init__(self, name):
        self.name = name
        self.lines = []
        self.pos = 0
        self.wr = {}
        self.mfma_c_rd = {}
        self.store_rd = {}
        self.vmq = []
        self.lgq = []
        self.pend_vm = {}
        self.pend_lg = {}
        self.nid = 0
        self.maxv = -1; self.maxa = -1; self.maxs = -1
        self.ninstr = 0

    def raw(self, text):
        self.lines.append(text)
    def comment(self, text):
        self.lines.append('    ; ' + text)
    def _nop(self, n):
        while n > 0:
            k = min(n, 16)
            self.lines.append(f'    s_nop {k-1}')
            self.pos += k; n -= k; self.ninstr += 1
    def label(self, name, flush=True):
        self.lines.append(f'{name}:')
    def barrier_hazards(self, n=20):
        self._nop(n)

    def wait_vm_id(self, i):
        if i in self.vmq:
            p = self.vmq.index(i)
            n = len(self.vmq) - p - 1
            self._emit_wait(vm=n)
    def wait_lg_id(self, i):
        if i in self.lgq:
            p = self.lgq.index(i)
            n = len(self.lgq) - p - 1
            self._emit_wait(lg=n)
    def _emit_wait(self, vm=None, lg=None):
        parts = []
        if vm is not None:
            vm = min(vm, 63)
            parts.append(f'vmcnt({vm})')
            drop = self.vmq[:len(self.vmq) - vm] if vm < len(self.vmq) else []
            self.vmq = self.vmq[len(drop):]
            ds = set(drop)
            self.pend_vm = {r: i for r, i in self.pend_vm.items() if i not in ds}
        if lg is not None:
            lg = min(lg, 15)
            parts.append(f'lgkmcnt({lg})')
            drop = self.lgq[:len(self.lgq) - lg] if lg < len(self.lgq) else []
            self.lgq = self.lgq[len(drop):]
            ds = set(drop)
            self.pend_lg = {r: i for r, i in self.pend_lg.items() if i not in ds}
        self.lines.append('    s_waitcnt ' + ' '.join(parts))
        self.pos += 1; self.ninstr += 1
    def waitall(self):
        self._emit_wait(vm=0, lg=0)
    def wait_vm(self, n): self._emit_wait(vm=n)
    def wait_lg(self, n): self._emit_wait(lg=n)

    def __call__(self, text):
        for ln in text.strip().split('\n'):
            ln = ln.split(';')[0].strip()
            if ln: self.last = self.ins(ln)
        return self.last

    def ins(self, text):
        m = re.match(r'(\S+)\s*(.*)', text)
        op, rest = m.group(1), m.group(2)
        ops = split_ops(rest)
        dst, src = [], []
        kind = 'salu'
        passes = 0
        is_lds_dma = False
        if op.startswith('buffer_load') or op.startswith('global_load'):
            kind = 'vmem'
            if re.search(r'\blds\b', rest) or 'lds' in op:
                is_lds_dma = True
                for o in ops: src += regs_of(o)
                src += [('s', 124)]
            else:
                dst = regs_of(ops[0])
                for o in ops[1:]: src += regs_of(o)
        elif op.startswith('buffer_store') or op.startswith('global_store') or op.startswith('buffer_atomic') or op.startswith('global_atomic'):
            kind = 'vmem'
            for o in ops: src += regs_of(o)
            if 'atomic' in op and re.search(r'\bsc0\b', rest):
                dst = regs_of(ops[0])
        elif op.startswith('buffer_wbl2') or op.startswith('buffer_inv'):
            kind = 'vmem'
        elif op.startswith('ds_read') or op.startswith('ds_bpermute') or op.startswith('ds_swizzle') or op.startswith('ds_permute'):
            kind = 'lds'
            dst = regs_of(ops[0])
            for o in ops[1:]: src += regs_of(o)
        elif op.startswith('ds_write') or op.startswith('ds_add'):
            kind = 'lds'
            for o in ops: src += regs_of(o)
        elif op.startswith('v_mfma'):
            kind = 'mfma'
            passes = 8 if '32x32' in op else 4
            dst = regs_of(ops[0])
            for o in ops[1:]: src += regs_of(o)
        elif op.startswith('v_'):
            kind = 'valu'
            if 'permlane' in op and 'swap' in op:
                dst = regs_of(ops[0]) + regs_of(ops[1]); src = list(dst)
            elif op.startswith('v_add_co') or op.startswith('v_sub_co') or op.startswith('v_addc_co'):
                dst = regs_of(ops[0]) + regs_of(ops[1])
                for o in ops[2:]: src += regs_of(o)
            else:
                dst = regs_of(ops[0])
                for o in ops[1:]: src += regs_of(o)
                if op.startswith('v_fmac') or op.startswith('v_dot2c') or 'dpp' in op or 'row_' in rest or 'quad_perm' in rest or op.startswith('v_writelane'):
                    src += dst
        elif op.startswith('s_'):
            kind = 'salu'
            if op.startswith('s_cmp') or op.startswith('s_cbranch') or op in ('s_barrier', 's_nop', 's_endpgm', 's_branch', 's_sleep', 's_setprio', 's_waitcnt'):
                for o in ops: src += regs_of(o)
            elif op.startswith('s_load') or op.startswith('s_buffer_load') or op.startswith('s_memtime') or op.startswith('s_memrealtime'):
                kind = 'smem'
                dst = regs_of(ops[0])
                for o in ops[1:]: src += regs_of(o)
            elif 'saveexec' in op:
                dst = regs_of(ops[0]) + [('s', 126), ('s', 127)]
                for o in ops[1:]: src += regs_of(o)
            else:
                dst = regs_of(ops[0])
                for o in ops[1:]: src += regs_of(o)
        else:
            raise ValueError('unknown op ' + op)

        for (t, i) in dst + src:
            if t == 'v': self.maxv = max(self.maxv, i)
            elif t == 'a': self.maxa = max(self.maxa, i)
            elif t == 's' and i < 102: self.maxs = max(self.maxs, i)

        need_vm = None; need_lg = None
        for r in src + dst:
            if r in self.pend_vm:
                p = self.vmq.index(self.pend_vm[r]); n = len(self.vmq) - p - 1
                need_vm = n if need_vm is None else min(need_vm, n)
            if r in self.pend_lg:
                p = self.lgq.index(self.pend_lg[r]); n = len(self.lgq) - p - 1
                need_lg = n if need_lg is None else min(need_lg, n)
        if need_vm is not None or need_lg is not None:
            self._emit_wait(vm=need_vm, lg=need_lg)

        need = 0
        def req(prod_pos, ws):
            nonlocal need
            gap = self.pos - prod_pos - 1
            need = max(need, ws - gap)
        is_dpp = ('dpp' in op) or ('row_' in rest) or ('quad_perm' in rest)
        srcC = regs_of(ops[3]) if kind == 'mfma' else []
        srcAB = (regs_of(ops[1]) + regs_of(ops[2])) if kind == 'mfma' else []
        for r in src:
            w = self.wr.get(r)
            if not w: continue
            wp, wk, wpass, wdst = w
            if wk in ('valu', 'trans'):
                if r[0] in 'va':
                    if kind == 'mfma': req(wp, 2)
                    if kind == 'valu' and 'permlane' in op: req(wp, 2)
                    if kind == 'valu' and is_dpp: req(wp, 2)
                    if op.startswith('v_readfirstlane') or op.startswith('v_readlane'): req(wp, 1)
                    if wk == 'trans' and kind in ('valu', 'mfma'): req(wp, 1)
                else:
                    if kind == 'valu': req(wp, 4 if ('readlane' in op or 'writelane' in op) else 2)
                    if kind == 'mfma': req(wp, 4)
                    if kind == 'vmem': req(wp, 5)
                    if kind in ('salu', 'smem', 'lds'): req(wp, 2)
            elif wk == 'mfma':
                if kind == 'mfma':
                    if r in srcAB: req(wp, 12 if wpass == 8 else 8)
                    if r in srcC:
                        if tuple(srcC) == wdst and passes == wpass: pass
                        else: req(wp, 10 if wpass == 8 else 6)
                else:
                    req(wp, 12 if wpass == 8 else 8)
            elif wk == 'salu':
                if r == ('s', 124) and is_lds_dma: req(wp, 1)
        for r in dst:
            w = self.wr.get(r)
            if w and w[1] == 'mfma' and kind != 'mfma':
                req(w[0], 12 if w[2] == 8 else 8)
            if w and w[1] == 'mfma' and kind == 'mfma' and r not in srcC:
                req(w[0], 12 if w[2] == 8 else 8)
            c = self.mfma_c_rd.get(r)
            if c and kind != 'mfma':
                req(c[0], 7 if c[1] == 8 else 3)
            s = self.store_rd.get(r)
            if s is not None:
                req(s, 2)
        if need > 0:
            self._nop(need)

        self.lines.append('    ' + text)
        mypos = self.pos
        self.pos += 1; self.ninstr += 1
        if op == 's_nop':
            self.pos += int(ops[0])

        wk = kind
        if op in TRANS: wk = 'trans'
        for r in dst:
            self.wr[r] = (mypos, wk, passes, tuple(dst))
        for r in srcC:
            self.mfma_c_rd[r] = (mypos, passes)
        if kind == 'vmem' and ('store' in op or 'atomic' in op) and ('x4' in op or 'x3' in op):
            for r in regs_of(ops[0] if op.startswith('buffer') else ops[1]): self.store_rd[r] = mypos

        iid = None
        if kind == 'vmem':
            iid = self.nid; self.nid += 1
            self.vmq.append(iid)
            for r in dst: self.pend_vm[r] = iid
            assert len(self.vmq) <= 63, 'too many vmem outstanding'
        elif kind == 'lds':
            iid = self.nid; self.nid += 1
            self.lgq.append(iid)
            for r in dst: self.pend_lg[r] = iid
            if len(self.lgq) > 15:
                pass
        elif kind == 'smem':
            iid = self.nid; self.nid += 1
        return iid

    def text(self):
        return '\n'.join(self.lines) + '\n'

def kernel_text(k, nv=None, na=None):
    v = k.maxv + 1
    acc_off = max(4, (v + 3) // 4 * 4)
    total = acc_off + (k.maxa + 1) if k.maxa >= 0 else v
    total = max(total, 8)
    sg = max(k.maxs + 1, 16)
    code = f""".globl {k.name}
.p2align 8
.type {k.name},@function
{k.name}:
{k.text()}"""
    desc = f""".p2align 6
.amdhsa_kernel {k.name}
  .amdhsa_next_free_vgpr {total}
  .amdhsa_next_free_sgpr {sg}
  .amdhsa_accum_offset {acc_off}
  .amdhsa_group_segment_fixed_size 0
  .amdhsa_kernarg_size 96
  .amdhsa_user_sgpr_count 2
  .amdhsa_user_sgpr_kernarg_segment_ptr 1
  .amdhsa_system_sgpr_workgroup_id_x 1
.end_amdhsa_kernel
"""
    return code, desc

def build_file(kernels, header_comment=''):
    s = header_comment
    for k, g, b, lds in kernels:
        s += f"; @launch kernel={k.name} grid=({g},1,1) block=({b},1,1) lds={lds}\n"
    s += '.amdgcn_target "amdgcn-amd-amdhsa--gfx950"\n.text\n'
    descs = ''
    seen = set()
    for k, g, b, lds in kernels:
        if k.name in seen: continue
        seen.add(k.name)
        c, d = kernel_text(k)
        s += c; descs += d
    s += '.section .rodata,"a"\n' + descs
    return s
```

```python
import sys
sys.path.insert(0, "work")
from asmlib import *

MOD = 0
XN = 0x10000
QB = 0x290000
KB0 = 0x520000; KB = KB0 + 16384
VB0 = 0x7B0000; VB = VB0 + 16384
OB = 0xA40000
X1 = 0xCC0000
ST = 0xF40000
ACT = 0xF60000
WS_END = 0x1560000

ARG = dict(x=0, wqkv=8, wo=16, bx=24, wg=32, wu=40, wd=48, c=56, wmod=64, out=72, dbg=80, ws=88)
NB = dict(x=2048*640*2, wqkv=640*1920*2, wo=640*640*2, wg=640*1536*2, wu=640*1536*2, wd=1536*640*2, c=1280, wmod=640*3840*2, out=2048*640*2, ws=WS_END)

def srd(k, sd, sb, nbytes):
    k(f"""s_mov_b32 s{sd}, s{sb}
    s_and_b32 s{sd+1}, s{sb+1}, 0xffff
    s_mov_b32 s{sd+2}, {nbytes}
    s_mov_b32 s{sd+3}, 0x00020000""")

def bf16r(k, dst, src):
    k(f"v_cvt_pk_bf16_f32 v{dst}, v{src}, v{src}")
    k(f"v_and_b32 v{dst}, 0xffff0000, v{dst}")

def row16_sum(k, v):
    for r in (8, 4, 2, 1):
        k(f"v_add_f32_dpp v{v}, v{v}, v{v} row_ror:{r} row_mask:0xf bank_mask:0xf")

PROF = False
EXP = set()
PROFOFF = 0x1600000
KIDX = {}
def stamp(k, i):
    if PROF:
        if i == 0: k.raw(f"    s_memrealtime s[92:93]")
        k.raw(f"    s_memtime s[{60+2*i}:{61+2*i}]")
        k.maxs = max(k.maxs, 100)
def stamp_flush(k, n, wg=8, tid=0, base=0):
    if PROF:
        lab = f"L_prof_{k.name}_{len(k.lines)}"
        k.raw(f"    s_waitcnt vmcnt(0) lgkmcnt(0)")
        stamp(k, n)
        kidx = KIDX.setdefault(k.name, len(KIDX))
        k.raw(f"""    s_memrealtime s[90:91]
    s_load_dwordx2 s[96:97], s[0:1], {ARG['ws']}
    s_waitcnt lgkmcnt(0)
    v_cmp_eq_u32 vcc, {tid}, v0
    s_and_saveexec_b64 s[98:99], vcc
    s_cbranch_execz {lab}
    s_lshl_b32 s95, s2, 4
    s_add_u32 s95, s95, {PROFOFF + kidx * 8192 + (8 if base else 0)}
    v_mov_b32 v1, s95
    v_mov_b32 v2, s92
    v_mov_b32 v3, s90
    global_store_dwordx2 v1, v[2:3], s[96:97]
    s_cmp_lg_u32 s2, {wg}
    s_cbranch_scc1 {lab}
    s_load_dwordx2 s[96:97], s[0:1], {ARG['dbg']}
    s_waitcnt lgkmcnt(0)
    v_mov_b32 v1, 0""")
        for i in range(n + 1):
            k.raw(f"    s_sub_u32 s95, s{60+2*i}, s60\n    v_mov_b32 v2, s95\n    global_store_dword v1, v2, s[96:97] offset:{4*i+base}")
        k.raw(f"{lab}:")

def k0_prefetch(k):
    if 'nopf' in EXP: return
    k("""s_lshr_b32 s48, s2, 3
    s_mul_i32 s48, s48, 76800          ; 20 rows * 3840
    s_bfe_u32 s49, s2, 0x10002
    s_lshl_b32 s49, s49, 11
    s_add_u32 s48, s48, s49
    v_lshrrev_b32 v100, 4, v0          ; row (0..15)
    v_mul_u32_u24 v100, 3840, v100
    v_and_b32 v101, 15, v0
    v_lshl_add_u32 v100, v101, 7, v100
    buffer_load_dword v102, v100, s[44:47], s48 offen
    s_add_u32 s48, s48, 61440
    v_cmp_gt_u32 vcc, 64, v0
    v_mov_b32 v101, 0x7fffffff
    v_cndmask_b32 v100, v101, v100, vcc
    buffer_load_dword v103, v100, s[44:47], s48 offen""")

def gen_k0():
    k = Kern("k0_prep_kernel")
    stamp(k, 0)
    k(f"""s_cmp_ge_u32 s2, 256
    s_cbranch_scc1 L_k0_end
    s_load_dwordx2 s[4:5], s[0:1], {ARG['x']}
    s_load_dwordx4 s[8:11], s[0:1], {ARG['c']}
    s_load_dwordx2 s[12:13], s[0:1], {ARG['ws']}
    s_load_dwordx2 s[40:41], s[0:1], {ARG['wqkv']}""")
    k.waitall()
    srd(k, 16, 12, NB['ws'])
    srd(k, 44, 40, NB['wqkv'])
    k("""s_cmp_ge_u32 s2, 248
    s_cbranch_scc1 L_k0_zero
    s_cmp_ge_u32 s2, 128
    s_cbranch_scc1 L_k0_gemv""")
    srd(k, 20, 4, NB['x'])
    k("""s_lshl_b32 s3, s2, 4
    v_lshrrev_b32 v1, 4, v0
    v_add_u32 v1, s3, v1            ; row
    v_and_b32 v2, 15, v0            ; c
    v_mul_u32_u24 v3, 1280, v1
    v_lshl_add_u32 v3, v2, 4, v3""")
    for i in range(5):
        k(f"buffer_load_dwordx4 v[{8+4*i}:{11+4*i}], v3, s[20:23], 0 offen offset:{256*i}")
    k0_prefetch(k)
    for i in range(20):
        k(f"v_lshlrev_b32 v{32+2*i}, 16, v{8+i}")
        k(f"v_and_b32 v{33+2*i}, 0xffff0000, v{8+i}")
    k("v_add_f32 v4, v32, v33")
    for i in range(2, 40):
        k(f"v_add_f32 v4, v4, v{32+i}")
    row16_sum(k, 4)
    k("v_mul_f32 v4, 0x3acccccd, v4")
    k("v_mov_b32 v5, 0")
    for i in range(40):
        k(f"v_sub_f32 v6, v{32+i}, v4")
        k(f"v_fmac_f32 v5, v6, v6")
    row16_sum(k, 5)
    k("v_mul_f32 v5, 0x3acccccd, v5")
    bf16r(k, 4, 4)
    bf16r(k, 5, 5)
    k("v_add_f32 v5, 0x3727c5ac, v5")
    bf16r(k, 5, 5)
    k("v_sqrt_f32 v5, v5")
    bf16r(k, 5, 5)
    k("v_rcp_f32 v5, v5")
    for i in range(20):
        k(f"v_sub_f32 v{32+2*i}, v{32+2*i}, v4")
        k(f"v_sub_f32 v{33+2*i}, v{33+2*i}, v4")
        k(f"v_cvt_pk_bf16_f32 v6, v{32+2*i}, v{33+2*i}")
        k(f"v_lshlrev_b32 v{32+2*i}, 16, v6")
        k(f"v_and_b32 v{33+2*i}, 0xffff0000, v6")
        k(f"v_mul_f32 v{32+2*i}, v{32+2*i}, v5")
        k(f"v_mul_f32 v{33+2*i}, v{33+2*i}, v5")
        k(f"v_cvt_pk_bf16_f32 v6, v{32+2*i}, v{33+2*i}")
        k(f"v_lshlrev_b32 v{32+2*i}, 16, v6")
        k(f"v_and_b32 v{33+2*i}, 0xffff0000, v6")
        k(f"v_cvt_pkrtz_f16_f32 v{8+i}, v{32+2*i}, v{33+2*i}")
    k(f"""v_lshrrev_b32 v6, 5, v1          ; T32
    v_mul_u32_u24 v6, 40960, v6
    v_lshrrev_b32 v7, 1, v2          ; c>>1
    v_lshl_add_u32 v6, v7, 10, v6
    v_and_b32 v7, 1, v2
    v_lshl_add_u32 v6, v7, 9, v6
    v_and_b32 v7, 31, v1
    v_lshl_add_u32 v6, v7, 4, v6""")
    for i in range(5):
        k(f"s_mov_b32 s3, {XN + i*8192}")
        k(f"buffer_store_dwordx4 v[{8+4*i}:{11+4*i}], v6, s[16:19], s3 offen")
    stamp_flush(k, 1)
    k("s_endpgm")
    k.label("L_k0_zero")
    k0_prefetch(k)
    k(f"""s_cmp_ge_u32 s2, 250
    s_cbranch_scc1 L_k0_end
    s_sub_u32 s3, s2, 248
    s_mul_i32 s3, s3, {VB0 - KB0}
    s_add_u32 s3, s3, {KB0}
    v_lshlrev_b32 v1, 4, v0
    v_mov_b32 v4, 0
    v_mov_b32 v5, 0
    v_mov_b32 v6, 0
    v_mov_b32 v7, 0""")
    for i in range(4):
        k(f"buffer_store_dwordx4 v[4:7], v1, s[16:19], s3 offen")
        k(f"s_add_u32 s3, s3, 4096")
    k("s_endpgm")
    k.label("L_k0_gemv")
    srd(k, 20, 10, NB['wmod'])
    srd(k, 24, 8, NB['c'])
    k("""s_sub_u32 s3, s2, 128           ; j
    s_lshl_b32 s14, s3, 6
    v_lshrrev_b32 v1, 2, v0           ; r
    v_and_b32 v2, 3, v0               ; cc
    v_mul_u32_u24 v3, 7680, v1
    v_lshl_add_u32 v3, v2, 4, v3
    v_lshlrev_b32 v4, 1, v1""")
    for i in range(10):
        k(f"buffer_load_ushort v{50+i}, v4, s[24:27], 0 offen offset:{128*i}")
    for i in range(10):
        k(f"buffer_load_dwordx4 v[{8+4*i}:{11+4*i}], v3, s[20:23], s14 offen")
        if i < 9: k(f"s_add_u32 s14, s14, {64*7680}")
    k0_prefetch(k)
    for i in range(10):
        c = 50 + i
        k(f"""v_lshlrev_b32 v{c}, 16, v{c}
        v_mul_f32 v5, 0xbfb8aa3b, v{c}
        v_exp_f32 v5, v5
        v_add_f32 v5, 1.0, v5
        v_rcp_f32 v5, v5
        v_mul_f32 v{c}, v{c}, v5""")
        bf16r(k, c, c)
    for j in range(8):
        k(f"v_mov_b32 v{60+j}, 0")
    for i in range(10):
        for d in range(4):
            k(f"v_lshlrev_b32 v5, 16, v{8+4*i+d}")
            k(f"v_and_b32 v6, 0xffff0000, v{8+4*i+d}")
            k(f"v_fmac_f32 v{60+2*d}, v5, v{50+i}")
            k(f"v_fmac_f32 v{61+2*d}, v6, v{50+i}")
    for j in range(8):
        for r in (8, 4):
            k(f"v_add_f32_dpp v{60+j}, v{60+j}, v{60+j} row_ror:{r} row_mask:0xf bank_mask:0xf")
    k("""v_lshrrev_b32 v5, 4, v0
    v_lshlrev_b32 v5, 7, v5
    v_lshl_add_u32 v5, v2, 5, v5
    v_and_b32 v6, 15, v0
    v_cmp_gt_u32 vcc, 4, v6
    s_and_saveexec_b64 s[28:29], vcc
    ds_write_b128 v5, v[60:63]
    ds_write_b128 v5, v[64:67] offset:16
    s_mov_b64 exec, s[28:29]""")
    k.waitall()
    k("s_barrier")
    k("""v_cmp_gt_u32 vcc, 32, v0
    s_and_saveexec_b64 s[28:29], vcc
    s_cbranch_execz L_k0_end
    v_lshlrev_b32 v5, 2, v0""")
    for i in range(16):
        k(f"ds_read_b32 v{8+i}, v5 offset:{128*i}")
    for i in range(1, 16):
        k(f"v_add_f32 v8, v8, v{8+i}")
    bf16r(k, 8, 8)
    k("""s_mul_i32 s14, s3, 205
    s_lshr_b32 s14, s14, 12           ; j/20
    s_cmp_eq_u32 s14, 1
    s_cselect_b32 s15, 1, 0
    s_cmp_eq_u32 s14, 4
    s_cselect_b32 s15, 1, s15
    s_cmp_eq_u32 s15, 0
    s_cbranch_scc1 L_k0_st""")
    k("v_add_f32 v8, 1.0, v8")
    bf16r(k, 8, 8)
    k.label("L_k0_st")
    k(f"""s_lshl_b32 s14, s3, 7
    s_add_u32 s14, s14, {MOD}
    buffer_store_dword v8, v5, s[16:19], s14 offen""")
    stamp_flush(k, 1, wg=130)
    k.label("L_k0_end")
    k("s_endpgm")
    return k

def interleave(k, mf, fill):
    n = len(mf)
    per = [len(fill) * (i + 1) // n - len(fill) * i // n for i in range(n)]
    j = 0
    for i, m in enumerate(mf):
        k(m)
        for _ in range(per[i]):
            f = fill[j]; j += 1
            if callable(f): f()
            else: k(f)

import copy
def snap(k): return copy.deepcopy((k.pos, k.wr, k.mfma_c_rd, k.store_rd, k.vmq, k.lgq, k.pend_vm, k.pend_lg))
def restore(k, st): (k.pos, k.wr, k.mfma_c_rd, k.store_rd, k.vmq, k.lgq, k.pend_vm, k.pend_lg) = copy.deepcopy(st)

def gen_gemm32(mode):
    qkv = (mode == 'qkv')
    nm = 'k1' if qkv else 'k4'
    k = Kern("k1_qkv_kernel" if qkv else "k4_ffn_kernel")
    if qkv:
        NSLOT = 6; SS = 16384; NT = 2; GRP = 4
    else:
        NSLOT = 4; UOFF = 12320; SS = 24640; NT = 3; GRP = 2
    XHB = NSLOT * SS
    GSB_L = XHB + 49152
    LDS = GSB_L + 5120
    stamp(k, 0)
    k(f"""s_cmp_ge_u32 s2, 256
    s_cbranch_scc1 L_{nm}_end""")
    if qkv:
        k(f"s_load_dwordx2 s[4:5], s[0:1], {ARG['wqkv']}")
    else:
        k(f"s_load_dwordx4 s[36:39], s[0:1], {ARG['wg']}")
    k(f"""s_load_dwordx2 s[6:7], s[0:1], {ARG['ws']}
    s_and_b32 s20, s2, 7              ; xcd
    s_lshr_b32 s21, s2, 3             ; idx
    s_and_b32 s22, s20, 3
    s_lshl_b32 s22, s22, 2
    s_and_b32 s23, s21, 3
    s_add_u32 s22, s22, s23           ; mb
    s_lshr_b32 s23, s20, 2
    s_lshl_b32 s23, s23, 3
    s_lshr_b32 s21, s21, 2
    s_add_u32 s23, s23, s21           ; nb""")
    if qkv:
        k(f"""s_cmp_ge_u32 s23, 15
        s_cbranch_scc1 L_{nm}_end""")
    k(f"""v_lshrrev_b32 v1, 6, v0
    v_and_b32 v2, 63, v0              ; lane
    v_readfirstlane_b32 s24, v1       ; wave
    s_mov_b32 s30, 0xffff0000
    v_lshrrev_b32 v20, 5, v2          ; h
    v_lshlrev_b32 v5, 4, v2           ; lane*16""")
    k.waitall()
    srd(k, 12, 6, NB['ws'])
    k(f"""s_cmp_ge_u32 s24, 4
    s_cbranch_scc1 L_{nm}_prod""")
    st0 = snap(k)

    ACC = 32; XF = 128; WF = 144; TMP = 168
    k(f"""s_lshr_b32 s25, s24, 1            ; tm
    s_and_b32 s26, s24, 1             ; tn
    v_bfe_u32 v21, v2, 4, 1           ; fh
    v_bfe_u32 v22, v2, 2, 2           ; r
    v_and_b32 v23, 3, v2              ; c4""")
    ngrp = (NSLOT + GRP - 1) // GRP
    if qkv:
        k("""v_lshlrev_b32 v24, 11, v20        ; h*2048
        v_lshl_add_u32 v24, v22, 8, v24   ; + r*256
        v_lshl_add_u32 v24, v21, 5, v24   ; + fh*32
        v_lshl_add_u32 v24, v23, 3, v24   ; + c4*8
        s_lshl_b32 s27, s26, 1""")
        for j in range(2):
            k(f"s_add_u32 s28, s27, {j}")
            k(f"v_xor_b32 v25, s28, v22")
            k(f"v_lshl_add_u32 v{8+j*2}, v25, 6, v24")
            k(f"v_add_u32 v{9+j*2}, {GRP*SS}, v{8+j*2}")
    else:
        k(f"""v_lshl_add_u32 v24, v20, 3, v22   ; 8h + r
        v_mul_u32_u24 v24, 192, v24
        v_mul_u32_u24 v25, {UOFF}, v21
        v_add_u32 v24, v24, v25
        v_lshl_add_u32 v24, v23, 3, v24
        s_mul_i32 s27, s26, 96
        v_add_u32 v8, s27, v24
        v_add_u32 v9, {GRP*SS}, v8
        v_add_u32 v10, {2*GRP*SS}, v8""")
    k(f"""s_lshl_b32 s27, s25, 11
    s_add_u32 s27, s27, {XHB}
    v_add_u32 v12, s27, v5""")
    if qkv:
        srd(k, 8, 4, NB['wqkv'])
        k(f"""v_lshrrev_b32 v13, 4, v2           ; rr
        v_and_b32 v14, 15, v2              ; pos
        v_lshlrev_b32 v15, 2, v13
        v_xor_b32 v14, v14, v15
        v_mul_u32_u24 v13, 3840, v13
        v_lshl_add_u32 v13, v14, 4, v13
        s_mul_i32 s40, s24, {16*3840}
        s_lshl_b32 s41, s23, 8
        s_add_u32 s40, s40, s41
        s_lshl_b32 s41, s24, 12""")
    else:
        srd(k, 8, 36, NB['wg']); srd(k, 16, 38, NB['wu'])
        for t in range(3):
            k(f"""v_add_u32 v16, {64*t}, v2
            v_mul_u32_u24 v17, 0xaaab, v16
            v_lshrrev_b32 v17, 19, v17        ; row = p/12
            v_mul_u32_u24 v18, 12, v17
            v_sub_u32 v18, v16, v18           ; ch
            v_mul_u32_u24 v17, 3072, v17
            v_lshl_add_u32 v{13+t}, v18, 4, v17""")
        k(f"""s_mul_i32 s40, s24, {16*3072}
        s_mul_i32 s41, s23, 192
        s_add_u32 s40, s40, s41
        s_mul_i32 s41, s24, 3072""")
    dma_ids = {}
    def wdma(c):
        slot = c % NSLOT
        out = []
        if qkv:
            for i in range(4):
                def f(i=i):
                    k(f"s_add_u32 m0, s41, {slot*SS + i*1024}")
                    k(f"s_add_u32 s42, s40, {(64*c + 4*i)*3840}")
                    dma_ids[c] = k(f"buffer_load_dwordx4 v13, s[8:11], s42 offen lds")
                out.append(f)
        else:
            for u in range(2):
                for t in range(3):
                    def f(u=u, t=t):
                        if u == 0 and t == 0: k(f"s_add_u32 s42, s40, {64*c*3072}")
                        k(f"s_add_u32 m0, s41, {slot*SS + u*UOFF + t*1024}")
                        dma_ids[c] = k(f"buffer_load_dwordx4 v{13+t}, s[{8+8*u}:{11+8*u}], s42 offen lds")
                    out.append(f)
        return out
    LAW = int([e for e in EXP if e.startswith('law')][0][3:]) if any(e.startswith('law') for e in EXP) else 3
    for c in range(LAW):
        for f in wdma(c): f()
    for i in range(2 * NT * 16):
        k(f"v_mov_b32 v{ACC+i}, 0")

    def reads(s):
        c = s // 4; ks = s % 4; slot = c % NSLOT
        grp = slot // GRP; so = (slot % GRP) * SS
        out = []
        for i in range(2):
            d = XF + (s % 2) * 8 + i * 4
            out.append(f"ds_read_b128 v[{d}:{d+3}], v12 offset:{(c%3)*16384 + ks*4096 + i*1024}")
        for j in range(NT):
            for a in range(2):
                d = WF + (s % 2) * 12 + j * 4 + a * 2
                if qkv:
                    out.append(f"ds_read_b64_tr_b16 v[{d}:{d+1}], v{8+j*2+grp} offset:{so + ks*4096 + a*1024}")
                else:
                    out.append(f"ds_read_b64_tr_b16 v[{d}:{d+1}], v{8+grp} offset:{so + ks*3072 + a*768 + j*32}")
        return [out[0]] + out[2:4] + [out[1]] + out[4:]
    stamp(k, 1)
    k.wait_vm_id(dma_ids[0])
    k("s_barrier")
    stamp(k, 2)
    for t in reads(0): k(t)
    if qkv:
        k("s_cmp_ge_u32 s23, 10")
        k(f"s_cbranch_scc1 L_{nm}_v")
    st1 = snap(k); dma1 = dict(dma_ids)
    def mainloop(swap):
        pend = wdma(LAW)
        for s in range(40):
            c = s // 4
            if s % 4 == 3 and c < 9:
                k.wait_vm_id(dma_ids[c + 1]); k.wait_lg(0)
                k("s_barrier")
                stamp(k, 3 + c)
                if c + 1 + LAW <= 9: pend = wdma(c + 1 + LAW)
            fill = reads(s + 1) if s + 1 < 40 else []
            nd = (len(pend) + 1) // 2 if s % 4 != 2 else len(pend)
            nd = min(len(pend), 2 if qkv else 3)
            fill = fill + pend[:nd]; pend = pend[nd:]
            mf = []
            for j in range(NT):
                for i in range(2):
                    w = f"v[{WF+(s%2)*12+j*4}:{WF+(s%2)*12+j*4+3}]"; x = f"v[{XF+(s%2)*8+i*4}:{XF+(s%2)*8+i*4+3}]"
                    d0 = ACC + 16 * (i * NT + j)
                    d = f"v[{d0}:{d0+15}]"
                    mf.append(f"v_mfma_f32_32x32x16_bf16 {d}, {x if swap else w}, {w if swap else x}, {d}")
            n = len(mf); per = 2
            fi = 0
            if 'noreads' in EXP: fill = []
            for m in mf:
                if 'nomfma' not in EXP: k(m)
                for _ in range(per):
                    if fi < len(fill):
                        f = fill[fi]; fi += 1
                        if callable(f): f()
                        else: k(f)
    mainloop(False)
    stamp(k, 12)
    if qkv:
        k(f"""s_cmp_ge_u32 s23, 5
        s_cselect_b32 s29, {KB-QB}, 0
        s_cselect_b32 s31, 5, 0
        s_add_u32 s29, s29, {QB}
        s_sub_u32 s31, s23, s31           ; nb'
        s_lshl_b32 s31, s31, 5            ; 32 nb'
        s_lshl_b32 s32, s26, 4
        s_add_u32 s31, s31, s32           ; + 16 tn
        s_lshl_b32 s32, s22, 2
        s_lshl_b32 s33, s25, 1
        s_add_u32 s32, s32, s33
        s_mul_i32 s32, s32, 1280
        s_add_u32 s29, s29, s32
        v_and_b32 v3, 31, v2              ; tok
        v_lshrrev_b32 v4, 4, v3
        v_mul_u32_u24 v4, 640, v4
        v_and_b32 v3, 15, v3
        v_lshl_add_u32 v4, v3, 3, v4
        v_add_u32 v5, s31, v20            ; phi0
        s_mov_b32 s33, {81920-640}""")
        n = 0
        for j in range(2):
            for a in range(4):
                k(f"""v_add_u32 v6, {8*j+2*a}, v5
                v_mul_u32_u24 v7, 0xcccd, v6
                v_lshrrev_b32 v7, 18, v7
                v_mul_lo_u32 v7, v7, s33
                v_lshl_add_u32 v7, v6, 7, v7
                v_add_u32 v7, v7, v4""")
                for i in range(2):
                    r = ACC + 16 * (i * NT + j) + 4 * a
                    t = TMP + 2 * (n % 8); n += 1
                    k(f"v_cvt_pk_bf16_f32 v{t}, v{r}, v{r+1}")
                    k(f"v_cvt_pk_bf16_f32 v{t+1}, v{r+2}, v{r+3}")
                    k(f"buffer_store_dwordx2 v[{t}:{t+1}], v7, s[12:15], s29 offen offset:{1280*i}")
        stamp_flush(k, 13)
        k("s_endpgm")
        k.label(f"L_{nm}_v")
        restore(k, st1); dma_ids.clear(); dma_ids.update(dma1)
        mainloop(True)
        k(f"""s_sub_u32 s31, s23, 10
        s_lshl_b32 s31, s31, 7            ; 128 nb'
        s_lshl_b32 s32, s26, 6
        s_add_u32 s31, s31, s32           ; + 64 tn
        s_lshl_b32 s32, s22, 2
        s_lshl_b32 s33, s25, 1
        s_add_u32 s32, s32, s33
        s_mul_i32 s32, s32, 1280
        s_add_u32 s29, s32, {VB}
        v_and_b32 v3, 31, v2              ; j
        v_add_u32 v5, s31, v3             ; f0
        s_mov_b32 s33, 81920""")
        n = 0
        for j in range(2):
            k(f"""v_add_u32 v6, {32*j}, v5
            v_mul_u32_u24 v7, 0xcccd, v6
            v_lshrrev_b32 v7, 20, v7          ; head = f/20
            v_mul_u32_u24 v8, 20, v7
            v_sub_u32 v8, v6, v8              ; d
            v_mul_lo_u32 v7, v7, s33
            v_lshl_add_u32 v7, v8, 4, v7      ; + d*16
            v_cmp_gt_u32 vcc, 16, v8
            v_lshlrev_b32 v9, 8, v20          ; h*256
            v_lshlrev_b32 v10, 6, v20
            v_add_u32 v10, 768, v10           ; 1024 - 256 + h*64
            v_cndmask_b32 v9, v10, v9, vcc
            v_add_u32 v7, v7, v9
            v_mov_b32 v9, 128
            v_mov_b32 v10, 512
            v_cndmask_b32 v9, v9, v10, vcc
            v_add_u32 v9, v7, v9""")
            for i in range(2):
                for a1 in range(2):
                    t = TMP + 4 * (n % 4); n += 1
                    r0 = ACC + 16 * (i * NT + j) + 4 * a1; r1 = r0 + 8
                    k(f"v_cvt_pk_bf16_f32 v{t}, v{r0}, v{r0+1}")
                    k(f"v_cvt_pk_bf16_f32 v{t+1}, v{r0+2}, v{r0+3}")
                    k(f"v_cvt_pk_bf16_f32 v{t+2}, v{r1}, v{r1+1}")
                    k(f"v_cvt_pk_bf16_f32 v{t+3}, v{r1+2}, v{r1+3}")
                    k(f"buffer_store_dwordx4 v[{t}:{t+3}], v{7 if a1 == 0 else 9}, s[12:15], s29 offen offset:{1280*i}")
        stamp_flush(k, 13)
        k("s_endpgm")
    else:
        k(f"""s_mul_i32 s31, s23, 6
        s_mul_i32 s32, s26, 3
        s_add_u32 s31, s31, s32           ; b16 base
        s_lshl_b32 s32, s22, 3
        s_lshl_b32 s33, s25, 2
        s_add_u32 s32, s32, s33           ; T16 base
        s_mul_i32 s32, s32, {48*1024}
        s_add_u32 s29, s32, {ACT}
        v_bfe_u32 v3, v2, 4, 1
        v_mul_u32_u24 v4, {48*1024}, v3
        v_and_b32 v3, 15, v2
        v_lshl_add_u32 v4, v3, 4, v4      ; + tok16*16
        v_lshl_add_u32 v4, v20, 8, v4     ; + h*256
        v_add_u32 v6, {2*48*1024}, v4     ; i = 1
        s_mov_b32 s34, 0xbfb8aa3b""")
        n = 0
        for j in range(3):
            k(f"""s_add_u32 s32, s31, {j}
            s_lshr_b32 s33, s32, 1
            s_lshl_b32 s33, s33, 10
            s_and_b32 s32, s32, 1
            s_lshl_b32 s32, s32, 3
            s_add_u32 s33, s33, s32
            s_add_u32 s33, s33, s29""")
            for i in range(2):
                r = ACC + 16 * (i * NT + j)
                T = TMP + 8 * (n % 2); O = TMP + 16 + 4 * (n % 4); n += 1
                for e in range(8): k(f"v_mul_f32 v{T+e}, s34, v{r+e}")
                for e in range(8): k(f"v_exp_f32 v{T+e}, v{T+e}")
                for e in range(8): k(f"v_add_f32 v{T+e}, 1.0, v{T+e}")
                for e in range(8): k(f"v_rcp_f32 v{T+e}, v{T+e}")
                for e in range(8): k(f"v_mul_f32 v{r+e}, v{r+e}, v{r+8+e}")
                for e in range(8): k(f"v_mul_f32 v{r+e}, v{r+e}, v{T+e}")
                for e in range(4): k(f"v_cvt_pk_bf16_f32 v{O+e}, v{r+2*e}, v{r+2*e+1}")
                for a in range(2):
                    k(f"buffer_store_dwordx2 v[{O+2*a}:{O+2*a+1}], v{4 if i == 0 else 6}, s[12:15], s33 offen offset:{512*a}")
        stamp_flush(k, 13)
        k("s_endpgm")

    k.label(f"L_{nm}_prod")
    restore(k, st0)
    GSR = 32; TMP = 64; OUT = 80; STAT = 96; XR = 104
    XSRC = XN if qkv else X1
    k(f"""s_sub_u32 s24, s24, 4             ; pw""")
    goff = (MOD + 2560) if qkv else (MOD + 4 * 2560)
    soff = MOD if qkv else (MOD + 3 * 2560)
    k(f"""v_lshrrev_b32 v3, 2, v2
    v_and_b32 v4, 3, v2
    v_lshlrev_b32 v6, 8, v3
    v_lshl_add_u32 v6, v4, 4, v6
    v_cmp_gt_u32 vcc, 40, v2
    v_mov_b32 v7, 0x7fffffff
    v_cndmask_b32 v6, v7, v6, vcc
    s_lshl_b32 s25, s24, 6
    s_add_u32 s26, s25, {goff}
    s_add_u32 s25, s25, {soff}
    buffer_load_dwordx4 v[{GSR}:{GSR+3}], v6, s[12:15], s26 offen
    buffer_load_dwordx4 v[{GSR+4}:{GSR+7}], v6, s[12:15], s25 offen""")
    if not qkv:
        k(f"""v_and_b32 v7, 31, v2
        v_lshlrev_b32 v7, 6, v7
        v_lshl_add_u32 v7, v20, 5, v7
        s_lshl_b32 s25, s22, 13
        s_add_u32 s25, s25, {ST}""")
        for t in range(4):
            k(f"buffer_load_dwordx4 v[{GSR+8+8*t if t < 3 else TMP}:{GSR+11+8*t if t < 3 else TMP+3}], v7, s[12:15], s25 offen offset:{2048*(t%2)}")
            k(f"buffer_load_dwordx4 v[{GSR+12+8*t if t < 3 else TMP+4}:{GSR+15+8*t if t < 3 else TMP+7}], v7, s[12:15], s25 offen offset:{2048*(t%2)+16}")
            if t == 1: k("s_add_u32 s25, s25, 4096")
    k(f"""s_mul_i32 s26, s22, {4*40960}
    s_lshl_b32 s27, s24, 10
    s_add_u32 s26, s26, s27
    s_add_u32 s26, s26, {XSRC}""")
    wr_ids = {}
    D = 4
    LAX = int([e for e in EXP if e.startswith('lax')][0][3:]) if any(e.startswith('lax') for e in EXP) else 2
    def issue(c):
        if c > 9: return
        for t in range(4):
            r = XR + (c % D) * 16 + t * 4
            k(f"s_add_u32 s29, s26, {t*40960 + c*4096}")
            k(f"buffer_load_dwordx4 v[{r}:{r+3}], v5, s[12:15], s29 offen")
    for c in range(LAX): issue(c)
    k(f"""s_mul_i32 s25, s24, 1280
    s_add_u32 s25, s25, {GSB_L}
    v_lshlrev_b32 v14, 7, v3
    v_lshrrev_b32 v15, 1, v4
    v_lshl_add_u32 v14, v15, 6, v14
    v_and_b32 v15, 1, v4
    v_lshl_add_u32 v14, v15, 4, v14
    v_add_u32 v14, s25, v14
    v_cmp_gt_u32 vcc, 40, v2
    s_and_saveexec_b64 s[34:35], vcc
    ds_write_b128 v14, v[{GSR}:{GSR+3}]
    ds_write_b128 v14, v[{GSR+4}:{GSR+7}] offset:32
    s_mov_b64 exec, s[34:35]
    v_lshlrev_b32 v15, 6, v20
    v_add_u32 v15, s25, v15
    s_lshl_b32 s25, s24, 12
    s_add_u32 s25, s25, {XHB}
    v_add_u32 v16, s25, v5""")
    if not qkv:
        for t in range(4):
            b = GSR + 8 + 8 * t if t < 3 else TMP
            k(f"""v_add_f32 v{b}, v{b}, v{b+2}
            v_add_f32 v{b+1}, v{b+1}, v{b+3}
            v_add_f32 v{b+4}, v{b+4}, v{b+6}
            v_add_f32 v{b+5}, v{b+5}, v{b+7}
            v_add_f32 v{b}, v{b}, v{b+4}
            v_add_f32 v{b+1}, v{b+1}, v{b+5}
            v_mov_b32 v{b+2}, v{b}
            v_mov_b32 v{b+3}, v{b+1}
            v_permlane32_swap_b32 v{b}, v{b+2}
            v_permlane32_swap_b32 v{b+1}, v{b+3}
            v_add_f32 v{b}, v{b}, v{b+2}
            v_add_f32 v{b+1}, v{b+1}, v{b+3}
            v_mul_f32 v{b}, 0x3acccccd, v{b}          ; mean
            v_mul_f32 v{b+1}, 0x3acccccd, v{b+1}      ; E[x2]
            v_fma_f32 v{b+1}, -v{b}, v{b}, v{b+1}     ; var
            v_max_f32 v{b+1}, 0, v{b+1}""")
            bf16r(k, b, b); bf16r(k, b + 1, b + 1)
            k(f"v_add_f32 v{b+1}, 0x3727c5ac, v{b+1}")
            bf16r(k, b + 1, b + 1)
            k(f"v_sqrt_f32 v{b+1}, v{b+1}")
            bf16r(k, b + 1, b + 1)
            k(f"v_rcp_f32 v{STAT+2*t}, v{b+1}")
            k(f"v_mul_f32 v{STAT+2*t+1}, v{b}, v{STAT+2*t}")
            k(f"v_sub_f32 v{STAT+2*t+1}, 0, v{STAT+2*t+1}")
    k.wait_lg(0)
    def gs_reads(c):
        b = GSR + (c % 2) * 16
        for i in range(4): k(f"ds_read_b128 v[{b+4*i}:{b+4*i+3}], v15 offset:{c*128 + 16*i}")
    def norm(c):
        b = GSR + (c % 2) * 16
        for t in range(4):
            r = XR + (c % D) * 16 + t * 4; o = OUT + t * 4; T = TMP + (t % 2) * 8
            if 'novalu' not in EXP:
              if qkv:
                for d in range(8):
                  k(f"v_fma_mix_f32 v{T+d}, v{r+d//2}, v{b+d}, v{b+8+d} op_sel:[{d%2},0,0] op_sel_hi:[1,0,0]")
              else:
                for d in range(4):
                  k(f"v_lshlrev_b32 v{T+2*d}, 16, v{r+d}")
                  k(f"v_and_b32 v{T+2*d+1}, s30, v{r+d}")
                for d in range(8): k(f"v_fma_f32 v{T+d}, v{T+d}, v{STAT+2*t}, v{STAT+2*t+1}")
                for d in range(8): k(f"v_fma_f32 v{T+d}, v{T+d}, v{b+d}, v{b+8+d}")
              for d in range(4): k(f"v_cvt_pk_bf16_f32 v{o+d}, v{T+2*d}, v{T+2*d+1}")
            if 'nodsw' not in EXP:
              wr_ids[c] = k(f"ds_write_b128 v16, v[{o}:{o+3}] offset:{(c%3)*16384 + t*1024}")
    stamp(k, 1)
    gs_reads(0); gs_reads(1)
    issue(LAX)
    norm(0)
    issue(LAX + 1)
    gs_reads(2)
    norm(1)
    k.wait_lg_id(wr_ids[0])
    stamp(k, 2)
    k("s_barrier")
    for p in range(9):
        issue(p + 2 + LAX)
        if p + 3 <= 9: gs_reads(p + 3)
        if p + 2 <= 9: norm(p + 2)
        k.wait_lg_id(wr_ids[p + 1])
        stamp(k, 3 + p)
        k("s_barrier")
    stamp_flush(k, 12, tid=256, base=64)
    k.label(f"L_{nm}_end")
    k("s_endpgm")
    return k, LDS

def gen_k2():
    k = Kern("k2_attn_kernel")
    KA = 0; V0A = 80; V1A = 120; QA = 160
    S = [24, 92]; P = [160, 196]; O = 232; T = 240
    stamp(k, 0)
    k(f"""s_cmp_ge_u32 s2, 256
    s_cbranch_scc1 L_k2_end
    s_load_dwordx2 s[6:7], s[0:1], {ARG['ws']}
    s_and_b32 s20, s2, 7
    s_lshr_b32 s21, s2, 3             ; head
    s_and_b32 s22, s20, 3
    s_lshl_b32 s22, s22, 1
    s_lshr_b32 s20, s20, 2
    s_add_u32 s22, s22, s20           ; qb
    v_lshrrev_b32 v1, 6, v0
    v_and_b32 v2, 63, v0              ; lane
    v_readfirstlane_b32 s24, v1       ; wave
    v_and_b32 v3, 15, v2              ; i / q
    v_lshrrev_b32 v4, 4, v2           ; g
    s_lshl_b32 s25, s22, 4
    s_lshl_b32 s26, s24, 2
    s_add_u32 s25, s25, s26           ; qt0 = q0/16
    s_mul_i32 s26, s21, 81920
    s_mul_i32 s27, s25, 640
    s_add_u32 s27, s27, s26
    s_add_u32 s28, s27, {QB}          ; Q base
    s_add_u32 s29, s27, {KB - 16*640}
    s_add_u32 s30, s27, {VB - 8*1280}
    v_lshlrev_b32 v5, 3, v2           ; lane*8
    v_mov_b32 v10, 0x7fffffff
    v_add_u32 v6, 512, v5
    v_cmp_gt_u32 vcc, 16, v2
    v_cndmask_b32 v6, v10, v6, vcc
    v_lshlrev_b32 v7, 4, v2           ; lane*16
    v_lshl_add_u32 v8, v4, 2, v3
    v_lshlrev_b32 v8, 4, v8
    v_add_u32 v8, 1024, v8""")
    k.waitall()
    srd(k, 12, 6, NB['ws'])
    for t in range(4):
        k(f"buffer_load_dwordx2 a[{QA+4*t}:{QA+4*t+1}], v5, s[12:15], s28 offen offset:{640*t}")
        k(f"buffer_load_dwordx2 a[{QA+4*t+2}:{QA+4*t+3}], v6, s[12:15], s28 offen offset:{640*t}")
    for tau in range(20):
        if tau % 5 == 0: k(f"s_add_u32 s31, s29, {tau*640}")
        k(f"buffer_load_dwordx2 a[{KA+4*tau}:{KA+4*tau+1}], v5, s[12:15], s31 offen offset:{640*(tau%5)}")
        k(f"buffer_load_dwordx2 a[{KA+4*tau+2}:{KA+4*tau+3}], v6, s[12:15], s31 offen offset:{640*(tau%5)}")
    k(f"""v_and_b32 v11, 3, v3
    v_cmp_eq_u32 vcc, 0, v11
    v_mov_b32 v12, 0x3f803f80
    v_cndmask_b32 v11, 0, v12, vcc""")
    for i in range(40): k(f"v_accvgpr_write_b32 a{V1A+i}, v11")
    k("v_lshlrev_b32 v12, 2, v4")
    for r in range(4):
        k(f"v_add_u32 v13, {r}, v12")
        k(f"v_cmp_le_u32 s[{40+2*r}:{41+2*r}], v13, v3")
    k.wait_vm(40)
    for c in range(10):
        if c % 3 == 0: k(f"s_add_u32 s31, s30, {c*1280}")
        k(f"buffer_load_dwordx4 a[{V0A+4*c}:{V0A+4*c+3}], v7, s[12:15], s31 offen offset:{1280*(c%3)}")
    k("""s_mov_b32 exec_lo, 0x000f000f
    s_mov_b32 exec_hi, 0x000f000f""")
    for c in range(10):
        if c % 3 == 0: k(f"s_add_u32 s31, s30, {c*1280}")
        k(f"buffer_load_dwordx4 a[{V1A+4*c}:{V1A+4*c+3}], v8, s[12:15], s31 offen offset:{1280*(c%3)}")
    k("s_mov_b64 exec, -1")
    k(f"""s_mul_i32 s32, s21, 5
    v_add_u32 v14, s32, v4
    v_lshrrev_b32 v15, 3, v14
    v_lshlrev_b32 v15, 10, v15        ; s32*1024
    v_and_b32 v16, 3, v14
    v_lshl_add_u32 v15, v16, 8, v15   ; + g'*256
    v_bfe_u32 v16, v14, 2, 1
    v_lshl_add_u32 v15, v16, 3, v15   ; + half*8
    v_lshl_add_u32 v15, v3, 4, v15
    s_add_u32 s32, s32, 4
    s_lshr_b32 s33, s32, 3
    s_lshl_b32 s33, s33, 10
    s_and_b32 s34, s32, 3
    s_lshl_b32 s34, s34, 8
    s_add_u32 s33, s33, s34
    s_bfe_u32 s34, s32, 0x10002
    s_lshl_b32 s34, s34, 3
    s_add_u32 s33, s33, s34
    v_lshlrev_b32 v16, 4, v3
    v_add_u32 v16, s33, v16
    v_cmp_gt_u32 vcc, 16, v2
    v_cndmask_b32 v16, v10, v16, vcc
    s_mul_i32 s35, s25, 20480
    s_add_u32 s35, s35, {OB}
    s_mov_b32 s36, 0x3ea52b5c         ; scale*log2e
    v_mov_b32 v17, 0xf149f2ca         ; -1e30""")

    def qk(t):
        return [f"v_mfma_f32_16x16x32_bf16 v[{S[t%2]+4*i}:{S[t%2]+4*i+3}], a[{KA+4*(t+i)}:{KA+4*(t+i)+3}], a[{QA+4*t}:{QA+4*t+3}], 0" for i in range(17)]
    def pv(t):
        out = []
        c0 = t // 2
        for c in range(9):
            for d, VA in ((0, V0A), (1, V1A)):
                acc = f"v[{O+4*d}:{O+4*d+3}]"
                out.append(f"v_mfma_f32_16x16x32_bf16 {acc}, a[{VA+4*(c0+c)}:{VA+4*(c0+c)+3}], v[{P[t%2]+4*c}:{P[t%2]+4*c+3}], {acc if c else 0}")
        return out
    def fixup(t):
        lab = f"L_k2_fix{t}"
        k._nop(10)
        k(f"""s_cmp_lg_u32 s22, 0
        s_cbranch_scc1 {lab}
        s_sub_u32 s37, {16 - t}, s25""")
        for tau in range(16):
            k.raw(f"    s_cmp_le_i32 s37, {tau}\n    s_cbranch_scc1 {lab}")
            for r in range(4): k.raw(f"    v_mov_b32 v{S[t%2]+4*tau+r}, v17")
        k.label(lab)
        k._nop(2)
    def softmax(t):
        s0 = S[t % 2]; p0 = P[t % 2]
        out = []
        out.append(lambda: fixup(t))
        for r in range(4):
            out.append(f"v_cndmask_b32 v{s0+r}, v{s0+r}, v17, s[{40+2*r}:{41+2*r}]")
            out.append(f"v_cndmask_b32 v{s0+64+r}, v17, v{s0+64+r}, s[{40+2*r}:{41+2*r}]")
        regs = list(range(s0, s0 + 68))
        for j in range(4):
            out.append(f"v_max3_f32 v{T+j}, v{regs[j*17]}, v{regs[j*17+1]}, v{regs[j*17+2]}")
        for i in range(7):
            for j in range(4):
                out.append(f"v_max3_f32 v{T+j}, v{T+j}, v{regs[j*17+3+2*i]}, v{regs[j*17+4+2*i]}")
        out.append(f"v_max3_f32 v{T}, v{T}, v{T+1}, v{T+2}")
        out.append(f"v_max_f32 v{T}, v{T}, v{T+3}")
        out.append(f"v_mov_b32 v{T+1}, v{T}")
        out.append(f"v_permlane16_swap_b32 v{T}, v{T+1}")
        out.append(f"v_max_f32 v{T}, v{T}, v{T+1}")
        out.append(f"v_mov_b32 v{T+1}, v{T}")
        out.append(f"v_permlane32_swap_b32 v{T}, v{T+1}")
        out.append(f"v_max_f32 v{T}, v{T}, v{T+1}")
        out.append(f"v_mul_f32 v{T}, s36, v{T}")
        out.append(f"v_sub_f32 v{T}, 0, v{T}")
        off = 2 * (t % 2)
        z = p0 if t % 2 else p0 + 34
        out.append(f"v_mov_b32 v{z}, 0"); out.append(f"v_mov_b32 v{z+1}, 0")
        G = 8
        for g0 in range(0, 68, G):
            n = min(G, 68 - g0)
            for i in range(n): out.append(f"v_fma_f32 v{s0+g0+i}, v{s0+g0+i}, s36, v{T}")
            for i in range(n): out.append(f"v_exp_f32 v{s0+g0+i}, v{s0+g0+i}")
            if g0 >= G:
                for i in range(0, G, 2): out.append(f"v_cvt_pk_bf16_f32 v{p0+off+(g0-G+i)//2}, v{s0+g0-G+i}, v{s0+g0-G+i+1}")
        for i in range(64, 68, 2): out.append(f"v_cvt_pk_bf16_f32 v{p0+off+i//2}, v{s0+i}, v{s0+i+1}")
        return out
    def final(t):
        out = [f"v_mov_b32 v{T+4}, v{O+4}", f"v_mov_b32 v{T+5}, v{O+4}",
               f"v_permlane16_swap_b32 v{T+4}, v{T+5}", f"v_rcp_f32 v{T+5}, v{T+5}"]
        for i in range(8): out.append(f"v_mul_f32 v{T+6+i}, v{O+i}, v{T+5}")
        o = T + 6
        out += [f"v_cvt_pk_bf16_f32 v{o}, v{o}, v{o+1}", f"v_cvt_pk_bf16_f32 v{o+1}, v{o+2}, v{o+3}",
                f"v_cvt_pk_bf16_f32 v{o+2}, v{o+4}, v{o+5}", f"v_cvt_pk_bf16_f32 v{o+3}, v{o+6}, v{o+7}",
                f"s_add_u32 s38, s35, {t*20480}",
                f"buffer_store_dwordx2 v[{o}:{o+1}], v15, s[12:15], s38 offen",
                f"buffer_store_dwordx2 v[{o+2}:{o+3}], v16, s[12:15], s38 offen"]
        return out
    def mix(valu, mf):
        n = len(valu); m = len(mf); j = 0
        for i, v in enumerate(valu):
            if callable(v): v()
            else: k(v)
            while j < m and (j + 1) * n <= (i + 1) * m: k(mf[j]); j += 1
        while j < m: k(mf[j]); j += 1
    stamp(k, 1)
    for m in qk(0): k(m)
    stamp(k, 2)
    for t in range(4):
        mf = []
        if t >= 1: mf += pv(t - 1)
        if t + 1 < 4: mf += qk(t + 1)
        sm = softmax(t)
        if t >= 1:
            npv = 18
            half = len(sm) * npv // len(mf) + 6
            mix(sm[:half], mf[:npv])
            mix(sm[half:half+8] + final(t - 1) + sm[half+8:], mf[npv:])
        else:
            mix(sm, mf)
        stamp(k, 3 + t)
    for m in pv(3): k(m)
    for v in final(3): k(v)
    stamp_flush(k, 7)
    k.label("L_k2_end")
    k("s_endpgm")
    return k

def gen_gemm16(mode):
    wo = (mode == 'wo')
    nm = 'k3' if wo else 'k5'
    k = Kern("k3_wo_kernel" if wo else "k5_down_kernel")
    KS = 5 if wo else 12
    NS = 5 if wo else 7
    LA = 5 if wo else 6
    NS32 = 20 if wo else 48
    XB = OB if wo else ACT
    REG = NS * 5120
    LDS = 4 * REG
    ACC = 40; WF = 120; EX = 160; TMP = 200
    XA = 0
    stamp(k, 0)
    k(f"""s_cmp_ge_u32 s2, 256
    s_cbranch_scc1 L_{nm}_end
    s_load_dwordx2 s[4:5], s[0:1], {ARG['wo'] if wo else ARG['wd']}
    s_load_dwordx2 s[6:7], s[0:1], {ARG['ws']}
    s_load_dwordx2 s[36:37], s[0:1], {ARG['x'] if wo else ARG['out']}
    s_and_b32 s20, s2, 7
    s_lshr_b32 s21, s2, 3
    s_and_b32 s22, s20, 3
    s_lshl_b32 s22, s22, 3
    s_and_b32 s23, s21, 7
    s_add_u32 s22, s22, s23           ; mb
    s_lshr_b32 s23, s20, 2
    s_lshl_b32 s23, s23, 2
    s_lshr_b32 s21, s21, 3
    s_add_u32 s23, s23, s21           ; nb
    v_lshrrev_b32 v1, 6, v0
    v_and_b32 v2, 63, v0
    v_readfirstlane_b32 s24, v1       ; wave
    v_lshlrev_b32 v5, 4, v2           ; lane*16
    v_and_b32 v3, 15, v2              ; tok / i16
    v_lshrrev_b32 v4, 4, v2           ; g""")
    for t in range(5):
        k(f"""v_add_u32 v16, {64*t}, v2
        v_mul_u32_u24 v17, 0xcccd, v16
        v_lshrrev_b32 v17, 19, v17        ; row = p/10
        v_mul_u32_u24 v18, 10, v17
        v_sub_u32 v18, v16, v18
        v_mul_u32_u24 v17, 1280, v17
        v_lshl_add_u32 v{8+t}, v18, 4, v17""")
    k(f"""s_mul_i32 s25, s24, {KS*32*1280}
    s_mul_i32 s26, s23, 160
    s_add_u32 s25, s25, s26
    s_mul_i32 s26, s24, {REG}
    s_mul_i32 s27, s22, {4*NS32*1024}
    s_mul_i32 s28, s24, {KS*1024}
    s_add_u32 s27, s27, s28
    s_add_u32 s27, s27, {XB}          ; X base""")
    k.waitall()
    srd(k, 8, 4, NB['wo'] if wo else NB['wd'])
    srd(k, 12, 6, NB['ws'])
    srd(k, 16, 36, NB['x'])
    dma = {}
    def issue(ks):
        out = []
        slot = ks % NS
        for t in range(5):
            def f(t=t):
                if t == 0: k(f"s_add_u32 s29, s25, {ks*32*1280}")
                k(f"s_add_u32 m0, s26, {slot*5120 + t*1024}")
                dma[ks] = k(f"buffer_load_dwordx4 v{8+t}, s[8:11], s29 offen lds")
            out.append(f)
        for i in range(4):
            def f(i=i):
                r = XA + slot * 16 + i * 4
                k(f"s_add_u32 s30, s27, {i*NS32*1024 + ks*1024}")
                k(f"buffer_load_dwordx4 a[{r}:{r+3}], v5, s[12:15], s30 offen")
            out.append(f)
        return out
    for ks in range(LA):
        for f in issue(ks): f()
    goff = MOD + (2 if wo else 5) * 2560
    k(f"""s_lshl_b32 s31, s22, 2
    s_add_u32 s31, s31, s24           ; T16 owned
    s_mul_i32 s32, s23, 320
    s_add_u32 s32, s32, {goff}
    v_lshlrev_b32 v13, 4, v4          ; g*16
    s_lshr_b32 s33, s31, 1
    s_mul_i32 s33, s33, 40960
    s_mul_i32 s34, s23, 5120
    s_add_u32 s33, s33, s34
    s_add_u32 s33, s33, {X1}          ; X1 soffset
    s_and_b32 s34, s31, 1
    s_lshl_b32 s34, s34, 8
    v_lshl_add_u32 v14, v3, 4, s34    ; tok32*16
    v_lshrrev_b32 v15, 1, v4
    v_lshl_add_u32 v14, v15, 9, v14   ; + h*512
    v_and_b32 v15, 1, v4
    v_lshl_add_u32 v14, v15, 3, v14
    s_mul_i32 s34, s31, {16*1280}
    s_mul_i32 s35, s23, 160
    s_add_u32 s34, s34, s35
    v_mul_u32_u24 v15, 1280, v3
    v_lshl_add_u32 v15, v4, 3, v15
    v_lshl_add_u32 v19, v4, 2, v3
    v_lshrrev_b32 v19, 2, v3          ; r
    v_lshl_add_u32 v19, v4, 2, v19    ; 4g + r
    v_mul_u32_u24 v19, 160, v19
    v_and_b32 v20, 3, v3
    v_lshl_add_u32 v19, v20, 3, v19
    v_add_u32 v19, s26, v19""")
    epi_loads = []
    for j in range(5):
        epi_loads.append(f"buffer_load_dwordx4 v[{EX+4*j}:{EX+4*j+3}], v13, s[12:15], s32 offen offset:{64*j}")
        if wo: epi_loads.append(f"buffer_load_dwordx2 v[{EX+20+2*j}:{EX+21+2*j}], v15, s[16:19], s34 offen offset:{32*j}")
        else:  epi_loads.append(f"buffer_load_dwordx2 v[{EX+20+2*j}:{EX+21+2*j}], v14, s[12:15], s33 offen offset:{1024*j}" if j < 4 else
                                f"buffer_load_dwordx2 v[{EX+20+2*j}:{EX+21+2*j}], v21, s[12:15], s33 offen")
    k("v_add_u32 v21, 4096, v14")
    if wo:
        for t in epi_loads: k(t)
        epi_loads = []
    def reads(ks):
        slot = ks % NS
        out = []
        for j in range(5):
            for a in range(2):
                d = WF + (ks % 2) * 20 + j * 4 + a * 2
                out.append(f"ds_read_b64_tr_b16 v[{d}:{d+1}], v19 offset:{slot*5120 + a*2560 + j*32}")
        return out
    stamp(k, 1)
    k.wait_vm_id(dma[0])
    for t in reads(0): k(t)
    stamp(k, 2)
    for ks in range(KS):
        fill = []
        if ks + 1 < KS:
            fill.append(lambda ks=ks: k.wait_vm_id(dma[ks + 1]))
            fill += reads(ks + 1)
        if ks + LA < KS: fill += issue(ks + LA)
        elif epi_loads: fill += epi_loads; epi_loads = []
        mf = []
        for j in range(5):
            for i in range(4):
                w = f"v[{WF+(ks%2)*20+j*4}:{WF+(ks%2)*20+j*4+3}]"
                xr = XA + (ks % NS) * 16 + i * 4
                d0 = ACC + (i * 5 + j) * 4
                mf.append(f"v_mfma_f32_16x16x32_bf16 v[{d0}:{d0+3}], {w}, a[{xr}:{xr+3}], {'v[%d:%d]' % (d0, d0+3) if ks else 0}")
        interleave(k, mf, fill)
    stamp(k, 3)
    k(f"v_add_u32 v22, s26, v5")
    for w in range(4):
        lab = f"L_{nm}_w{w}"
        if w < 3:
            k(f"s_cmp_lg_u32 s24, {w}")
            k(f"s_cbranch_scc1 {lab}")
        stw = snap(k)
        for i in range(4):
            if i == w: continue
            si = (i - w - 1) & 3
            for j in range(5):
                d0 = ACC + (i * 5 + j) * 4
                k(f"ds_write_b128 v22, v[{d0}:{d0+3}] offset:{(si*5+j)*1024}")
        if w:
            for e in range(20): k(f"v_mov_b32 v{ACC+e}, v{ACC+w*20+e}")
        k.wait_lg(0)
        if w < 3:
            k(f"s_branch L_{nm}_red")
            k.label(lab)
            restore(k, stw)
    k.label(f"L_{nm}_red")
    k._nop(2)
    k("s_barrier")
    for q in range(3):
        k(f"""s_add_u32 s38, s24, {1+q}
        s_and_b32 s38, s38, 3
        s_mul_i32 s38, s38, {REG}
        v_add_u32 v{23+q}, s38, v5""")
    for q in range(3):
        for j in range(5):
            d = ACC + 20 + (q * 5 + j) * 4
            k(f"ds_read_b128 v[{d}:{d+3}], v{23+q} offset:{((2-q)*5+j)*1024}")
    for q in range(3):
        for e in range(20): k(f"v_add_f32 v{ACC+e}, v{ACC+e}, v{ACC+20+q*20+e}")
    stamp(k, 4)
    k("s_mov_b32 s30, 0xffff0000")
    if wo:
        k("v_mov_b32 v26, 0"); k("v_mov_b32 v27, 0")
    for j in range(5):
        a0 = ACC + 4 * j; gq = EX + 4 * j; xr = EX + 20 + 2 * j; T = TMP + 8 * (j % 2)
        k(f"""v_cvt_pk_bf16_f32 v{T}, v{a0}, v{a0+1}
        v_cvt_pk_bf16_f32 v{T+1}, v{a0+2}, v{a0+3}
        v_lshlrev_b32 v{a0}, 16, v{T}
        v_and_b32 v{a0+1}, s30, v{T}
        v_lshlrev_b32 v{a0+2}, 16, v{T+1}
        v_and_b32 v{a0+3}, s30, v{T+1}
        v_mul_f32 v{a0}, v{a0}, v{gq}
        v_mul_f32 v{a0+1}, v{a0+1}, v{gq+1}
        v_mul_f32 v{a0+2}, v{a0+2}, v{gq+2}
        v_mul_f32 v{a0+3}, v{a0+3}, v{gq+3}
        v_cvt_pk_bf16_f32 v{T}, v{a0}, v{a0+1}
        v_cvt_pk_bf16_f32 v{T+1}, v{a0+2}, v{a0+3}
        v_lshlrev_b32 v{a0}, 16, v{T}
        v_and_b32 v{a0+1}, s30, v{T}
        v_lshlrev_b32 v{a0+2}, 16, v{T+1}
        v_and_b32 v{a0+3}, s30, v{T+1}
        v_lshlrev_b32 v{T+2}, 16, v{xr}
        v_and_b32 v{T+3}, s30, v{xr}
        v_lshlrev_b32 v{T+4}, 16, v{xr+1}
        v_and_b32 v{T+5}, s30, v{xr+1}
        v_add_f32 v{a0}, v{a0}, v{T+2}
        v_add_f32 v{a0+1}, v{a0+1}, v{T+3}
        v_add_f32 v{a0+2}, v{a0+2}, v{T+4}
        v_add_f32 v{a0+3}, v{a0+3}, v{T+5}
        v_cvt_pk_bf16_f32 v{T+6}, v{a0}, v{a0+1}
        v_cvt_pk_bf16_f32 v{T+7}, v{a0+2}, v{a0+3}""")
        if wo:
            if j < 4: k(f"buffer_store_dwordx2 v[{T+6}:{T+7}], v14, s[12:15], s33 offen offset:{1024*j}")
            else: k(f"buffer_store_dwordx2 v[{T+6}:{T+7}], v21, s[12:15], s33 offen")
            k(f"""v_lshlrev_b32 v{a0}, 16, v{T+6}
            v_and_b32 v{a0+1}, s30, v{T+6}
            v_lshlrev_b32 v{a0+2}, 16, v{T+7}
            v_and_b32 v{a0+3}, s30, v{T+7}""")
            for e in range(4):
                k(f"v_add_f32 v26, v26, v{a0+e}")
                k(f"v_fmac_f32 v27, v{a0+e}, v{a0+e}")
        else:
            k(f"buffer_store_dwordx2 v[{T+6}:{T+7}], v15, s[16:19], s34 offen offset:{32*j}")
    if wo:
        for r in (26, 27):
            k(f"""v_mov_b32 v28, v{r}
            v_permlane16_swap_b32 v{r}, v28
            v_add_f32 v{r}, v{r}, v28
            v_mov_b32 v28, v{r}
            v_permlane32_swap_b32 v{r}, v28
            v_add_f32 v{r}, v{r}, v28""")
        k(f"""s_lshl_b32 s38, s31, 10           ; T16*16*64
        s_lshl_b32 s39, s23, 3
        s_add_u32 s38, s38, s39
        s_add_u32 s38, s38, {ST}
        v_lshlrev_b32 v28, 6, v3
        v_mov_b32 v29, 0x7fffffff
        v_cmp_gt_u32 vcc, 16, v2
        v_cndmask_b32 v28, v29, v28, vcc
        buffer_store_dwordx2 v[26:27], v28, s[12:15], s38 offen""")
    stamp_flush(k, 5)
    k.label(f"L_{nm}_end")
    k("s_endpgm")
    return k, LDS

def all_kernels():
    k0 = gen_k0()
    k1, l1 = gen_gemm32('qkv')
    k2 = gen_k2()
    k3, l3 = gen_gemm16('wo')
    k4, l4 = gen_gemm32('ffn')
    k5, l5 = gen_gemm16('down')
    return [(k0, 256, 256, 4096), (k1, 256, 512, l1), (k2, 256, 256, 0), (k3, 256, 256, l3), (k4, 256, 512, l4), (k5, 256, 256, l5)]

if __name__ == "__main__":
    if len(sys.argv) > 1 and sys.argv[1] == "prof": PROF = True
    for e in sys.argv[2:]: EXP.add(e)
    open("cur" + "_".join([""] + sys.argv[2:]) + ".s", "w").write(build_file(all_kernels()))
```

```python
import sys
sys.path.insert(0, "work")
from asmlib import *

MOD = 0
XN = 0x10000
QB = 0x290000
KB0 = 0x520000; KB = KB0 + 16384
VB0 = KB + 0x280000; VB = VB0 + 16384
OB = 0xA40000
X1 = 0xCC0000
ST = 0xF40000
ACT = 0xF60000
WOP = 0x1560000
WDP = 0x1630000
WGUP = 0x1810000
GSUM = 0x1BD0000
WS_END = 0x1BE0000

ARG = dict(x=0, wqkv=8, wo=16, bx=24, wg=32, wu=40, wd=48, c=56, wmod=64, out=72, dbg=80, ws=88)
NB = dict(x=2048*640*2, wqkv=640*1920*2, wo=640*640*2, wg=640*1536*2, wu=640*1536*2, wd=1536*640*2, c=1280, wmod=640*3840*2, out=2048*640*2, ws=WS_END)

def srd(k, sd, sb, nbytes):
    k(f"""s_mov_b32 s{sd}, s{sb}
    s_and_b32 s{sd+1}, s{sb+1}, 0xffff
    s_mov_b32 s{sd+2}, {nbytes}
    s_mov_b32 s{sd+3}, 0x00020000""")

def bf16r(k, dst, src):
    k(f"v_cvt_pk_bf16_f32 v{dst}, v{src}, v{src}")
    k(f"v_and_b32 v{dst}, 0xffff0000, v{dst}")

def row16_sum(k, v):
    for r in (8, 4, 2, 1):
        k(f"v_add_f32_dpp v{v}, v{v}, v{v} row_ror:{r} row_mask:0xf bank_mask:0xf")

PROF = False
M8 = False
MAPS = {True: ("""    s_lshl_b32 s22, s20, 1
    s_and_b32 s23, s21, 1
    s_add_u32 s22, s22, s23           ; mb
    s_lshr_b32 s23, s21, 1            ; nb""", """    s_lshl_b32 s22, s20, 2
    s_and_b32 s23, s21, 3
    s_add_u32 s22, s22, s23           ; mb
    s_lshr_b32 s23, s21, 2            ; nb""", """    s_mov_b32 s22, s20                ; qb"""), False: ("""    s_and_b32 s22, s20, 3
    s_lshl_b32 s22, s22, 2
    s_and_b32 s23, s21, 3
    s_add_u32 s22, s22, s23           ; mb
    s_lshr_b32 s23, s20, 2
    s_lshl_b32 s23, s23, 3
    s_lshr_b32 s21, s21, 2
    s_add_u32 s23, s23, s21           ; nb""", """    s_and_b32 s22, s20, 3
    s_lshl_b32 s22, s22, 3
    s_and_b32 s23, s21, 7
    s_add_u32 s22, s22, s23           ; mb
    s_lshr_b32 s23, s20, 2
    s_lshl_b32 s23, s23, 2
    s_lshr_b32 s21, s21, 3
    s_add_u32 s23, s23, s21           ; nb""", """    s_and_b32 s22, s20, 3
    s_lshl_b32 s22, s22, 1
    s_lshr_b32 s20, s20, 2
    s_add_u32 s22, s22, s20           ; qb""")}
MAP14, MAP35, MAP2 = MAPS[M8]
MAP35 = MAPS[True][1]
EXP = set()
PROFOFF = 0x1C00000
KIDX = {}
def stamp(k, i):
    if PROF:
        if i == 0: k.raw(f"    s_memrealtime s[92:93]")
        k.raw(f"    s_memtime s[{60+2*i}:{61+2*i}]")
        k.maxs = max(k.maxs, 100)
def stamp_flush(k, n, wg=8, tid=0, base=0):
    if PROF:
        lab = f"L_prof_{k.name}_{len(k.lines)}"
        k.raw(f"    s_waitcnt vmcnt(0) lgkmcnt(0)")
        stamp(k, n)
        kidx = KIDX.setdefault(k.name, len(KIDX))
        k.raw(f"""    s_memrealtime s[90:91]
    s_load_dwordx2 s[96:97], s[0:1], {ARG['ws']}
    s_waitcnt lgkmcnt(0)
    v_cmp_eq_u32 vcc, {tid}, v0
    s_and_saveexec_b64 s[98:99], vcc
    s_cbranch_execz {lab}
    s_lshl_b32 s95, s2, 4
    s_add_u32 s95, s95, {PROFOFF + kidx * 8192 + (8 if base else 0)}
    v_mov_b32 v1, s95
    v_mov_b32 v2, s92
    v_mov_b32 v3, s90
    global_store_dwordx2 v1, v[2:3], s[96:97]
    s_cmp_lg_u32 s2, {wg}
    s_cbranch_scc1 {lab}
    s_load_dwordx2 s[96:97], s[0:1], {ARG['dbg']}
    s_waitcnt lgkmcnt(0)
    v_mov_b32 v1, 0""")
        for i in range(n + 1):
            k.raw(f"    s_sub_u32 s95, s{60+2*i}, s60\n    v_mov_b32 v2, s95\n    global_store_dword v1, v2, s[96:97] offset:{4*i+base}")
        k.raw(f"{lab}:")

def prefetch(k, sr, nthreads, tidreg, pitch, rows, lines_per_row, half_bytes, vt, st, mall=False, tid_off=0, dst=None):
    if 'nopf' in EXP: return
    ngroups = 128 if mall else 32
    rows_per = rows // ngroups
    nl = rows_per * lines_per_row
    k(f"s_lshr_b32 s{st}, s2, 3")
    if mall:
        k(f"""s_lshl_b32 s{st}, s{st}, 2
        s_and_b32 s{st+1}, s2, 3
        s_add_u32 s{st}, s{st}, s{st+1}""")
    k(f"""s_mul_i32 s{st}, s{st}, {rows_per*pitch}
    s_bfe_u32 s{st+1}, s2, 0x10002
    s_mul_i32 s{st+1}, s{st+1}, {half_bytes}
    s_add_u32 s{st}, s{st}, s{st+1}""")
    magic = (65536 + lines_per_row - 1) // lines_per_row
    for base in range(0, nl, nthreads):
        assert all(((p * magic) >> 16) == p // lines_per_row for p in range(base + nthreads))
        k(f"""v_add_u32 v{vt}, {base - tid_off}, v{tidreg}
        v_mul_u32_u24 v{vt+1}, {magic}, v{vt}
        v_lshrrev_b32 v{vt+1}, 16, v{vt+1}
        v_mul_u32_u24 v{vt+2}, {lines_per_row}, v{vt+1}
        v_sub_u32 v{vt+2}, v{vt}, v{vt+2}
        v_mul_u32_u24 v{vt+1}, {pitch}, v{vt+1}
        v_lshl_add_u32 v{vt+1}, v{vt+2}, 7, v{vt+1}
        v_cmp_gt_u32 vcc, {nl}, v{vt}
        v_mov_b32 v{vt+2}, 0x7ffffff0
        v_cndmask_b32 v{vt+1}, v{vt+2}, v{vt+1}, vcc
        buffer_load_dword {dst or 'v%d' % (vt+3)}, v{vt+1}, s[{sr}:{sr+3}], s{st} offen""")
        for r_ in regs_of(dst or 'v%d' % (vt+3)): k.pend_vm.pop(r_, None)

def prefetch_lin(k, sr_ws, base, half_bytes, nthreads, tidreg, vt, st, tid_off=0, dst=None, full=False):
    if 'nopf' in EXP: return
    per = half_bytes // 32
    nl = per // 128
    k(f"""s_lshr_b32 s{st}, s2, 3
    s_mul_i32 s{st}, s{st}, {per}
    s_bfe_u32 s{st+1}, s2, 0x10002
    s_mul_i32 s{st+1}, s{st+1}, {0 if full else half_bytes}
    s_add_u32 s{st}, s{st}, s{st+1}
    s_add_u32 s{st}, s{st}, {base}""")
    for b0 in range(0, nl, nthreads):
        k(f"""v_add_u32 v{vt}, {b0 - tid_off}, v{tidreg}
        v_lshlrev_b32 v{vt+1}, 7, v{vt}
        v_cmp_gt_u32 vcc, {nl}, v{vt}
        v_mov_b32 v{vt+2}, 0x7ffffff0
        v_cndmask_b32 v{vt+1}, v{vt+2}, v{vt+1}, vcc
        buffer_load_dword {dst or 'v%d' % (vt+3)}, v{vt+1}, s[{sr_ws}:{sr_ws+3}], s{st} offen""")
        for r_ in regs_of(dst or 'v%d' % (vt+3)): k.pend_vm.pop(r_, None)

def k0_prefetch(k):
    if M8: prefetch(k, 44, 256, 0, 3840, 640, 30, 0, 100, 48)
    else: prefetch(k, 44, 256, 0, 3840, 640, 16, 2048, 100, 48)

def gen_k0():
    k = Kern("k0_prep_kernel")
    stamp(k, 0)
    k(f"""s_cmp_ge_u32 s2, 256
    s_cbranch_scc1 L_k0_end
    s_load_dwordx2 s[4:5], s[0:1], {ARG['x']}
    s_load_dwordx4 s[8:11], s[0:1], {ARG['c']}
    s_load_dwordx2 s[12:13], s[0:1], {ARG['ws']}
    s_load_dwordx2 s[40:41], s[0:1], {ARG['wqkv']}""")
    k.waitall()
    srd(k, 16, 12, NB['ws'])
    srd(k, 44, 40, NB['wqkv'])
    k("""s_cmp_ge_u32 s2, 248
    s_cbranch_scc1 L_k0_zero
    s_cmp_ge_u32 s2, 128
    s_cbranch_scc1 L_k0_gemv""")
    srd(k, 20, 4, NB['x'])
    k("""s_and_b32 s3, s2, 3
    s_lshl_b32 s3, s3, 5
    s_bfe_u32 s14, s2, 0x10002
    s_lshl_b32 s14, s14, 4
    s_add_u32 s3, s3, s14
    s_lshr_b32 s14, s2, 3
    s_add_u32 s3, s3, s14
    s_lshl_b32 s3, s3, 4
    v_lshrrev_b32 v1, 4, v0
    v_add_u32 v1, s3, v1            ; row
    v_and_b32 v2, 15, v0            ; c
    v_mul_u32_u24 v3, 1280, v1
    v_lshl_add_u32 v3, v2, 4, v3""")
    for i in range(5):
        k(f"buffer_load_dwordx4 v[{8+4*i}:{11+4*i}], v3, s[20:23], 0 offen offset:{256*i}")
    k0_prefetch(k)
    for i in range(20):
        k(f"v_lshlrev_b32 v{32+2*i}, 16, v{8+i}")
        k(f"v_and_b32 v{33+2*i}, 0xffff0000, v{8+i}")
    k("v_add_f32 v4, v32, v33")
    for i in range(2, 40):
        k(f"v_add_f32 v4, v4, v{32+i}")
    row16_sum(k, 4)
    k("v_mul_f32 v4, 0x3acccccd, v4")
    k("v_mov_b32 v5, 0")
    for i in range(40):
        k(f"v_sub_f32 v6, v{32+i}, v4")
        k(f"v_fmac_f32 v5, v6, v6")
    row16_sum(k, 5)
    k("v_mul_f32 v5, 0x3acccccd, v5")
    bf16r(k, 4, 4)
    bf16r(k, 5, 5)
    k("v_add_f32 v5, 0x3727c5ac, v5")
    bf16r(k, 5, 5)
    k("v_sqrt_f32 v5, v5")
    bf16r(k, 5, 5)
    k("v_rcp_f32 v5, v5")
    for i in range(20):
        k(f"v_sub_f32 v{32+2*i}, v{32+2*i}, v4")
        k(f"v_sub_f32 v{33+2*i}, v{33+2*i}, v4")
        k(f"v_cvt_pk_bf16_f32 v6, v{32+2*i}, v{33+2*i}")
        k(f"v_lshlrev_b32 v{32+2*i}, 16, v6")
        k(f"v_and_b32 v{33+2*i}, 0xffff0000, v6")
        k(f"v_mul_f32 v{32+2*i}, v{32+2*i}, v5")
        k(f"v_mul_f32 v{33+2*i}, v{33+2*i}, v5")
        k(f"v_cvt_pk_bf16_f32 v6, v{32+2*i}, v{33+2*i}")
        k(f"v_lshlrev_b32 v{32+2*i}, 16, v6")
        k(f"v_and_b32 v{33+2*i}, 0xffff0000, v6")
        k(f"v_cvt_pkrtz_f16_f32 v{8+i}, v{32+2*i}, v{33+2*i}")
    k(f"""v_lshrrev_b32 v6, 5, v1          ; T32
    v_mul_u32_u24 v6, 40960, v6
    v_lshrrev_b32 v7, 1, v2          ; c>>1
    v_lshl_add_u32 v6, v7, 10, v6
    v_and_b32 v7, 1, v2
    v_lshl_add_u32 v6, v7, 9, v6
    v_and_b32 v7, 31, v1
    v_lshl_add_u32 v6, v7, 4, v6""")
    for i in range(5):
        k(f"s_mov_b32 s3, {XN + i*8192}")
        k(f"buffer_store_dwordx4 v[{8+4*i}:{11+4*i}], v6, s[16:19], s3 offen sc1")
    stamp_flush(k, 1)
    k("s_endpgm")
    k.label("L_k0_zero")
    k0_prefetch(k)
    k(f"""s_cmp_ge_u32 s2, 252
    s_cbranch_scc1 L_k0_end
    s_sub_u32 s3, s2, 248
    s_mul_i32 s3, s3, {VB0 - KB0}
    s_add_u32 s3, s3, {KB0}
    s_sub_u32 s14, s2, 250
    s_lshl_b32 s14, s14, 14
    s_add_u32 s14, s14, {GSUM}
    s_cmp_ge_u32 s2, 250
    s_cselect_b32 s3, s14, s3
    v_lshlrev_b32 v1, 4, v0
    v_mov_b32 v4, 0
    v_mov_b32 v5, 0
    v_mov_b32 v6, 0
    v_mov_b32 v7, 0""")
    for i in range(4):
        k(f"buffer_store_dwordx4 v[4:7], v1, s[16:19], s3 offen sc1")
        k(f"s_add_u32 s3, s3, 4096")
    k("s_endpgm")
    k.label("L_k0_gemv")
    srd(k, 20, 10, NB['wmod'])
    srd(k, 24, 8, NB['c'])
    k("""s_sub_u32 s3, s2, 128           ; j
    s_lshl_b32 s14, s3, 6
    v_lshrrev_b32 v1, 2, v0           ; r
    v_and_b32 v2, 3, v0               ; cc
    v_mul_u32_u24 v3, 7680, v1
    v_lshl_add_u32 v3, v2, 4, v3
    v_lshlrev_b32 v4, 1, v1""")
    for i in range(10):
        k(f"buffer_load_ushort v{50+i}, v4, s[24:27], 0 offen offset:{128*i}")
    for i in range(10):
        k(f"buffer_load_dwordx4 v[{8+4*i}:{11+4*i}], v3, s[20:23], s14 offen")
        if i < 9: k(f"s_add_u32 s14, s14, {64*7680}")
    k0_prefetch(k)
    for i in range(10):
        c = 50 + i
        k(f"""v_lshlrev_b32 v{c}, 16, v{c}
        v_mul_f32 v5, 0xbfb8aa3b, v{c}
        v_exp_f32 v5, v5
        v_add_f32 v5, 1.0, v5
        v_rcp_f32 v5, v5
        v_mul_f32 v{c}, v{c}, v5""")
        bf16r(k, c, c)
    for j in range(8):
        k(f"v_mov_b32 v{60+j}, 0")
    for i in range(10):
        for d in range(4):
            k(f"v_lshlrev_b32 v5, 16, v{8+4*i+d}")
            k(f"v_and_b32 v6, 0xffff0000, v{8+4*i+d}")
            k(f"v_fmac_f32 v{60+2*d}, v5, v{50+i}")
            k(f"v_fmac_f32 v{61+2*d}, v6, v{50+i}")
    for j in range(8):
        for r in (8, 4):
            k(f"v_add_f32_dpp v{60+j}, v{60+j}, v{60+j} row_ror:{r} row_mask:0xf bank_mask:0xf")
    k("""v_lshrrev_b32 v5, 4, v0
    v_lshlrev_b32 v5, 7, v5
    v_lshl_add_u32 v5, v2, 5, v5
    v_and_b32 v6, 15, v0
    v_cmp_gt_u32 vcc, 4, v6
    s_and_saveexec_b64 s[28:29], vcc
    ds_write_b128 v5, v[60:63]
    ds_write_b128 v5, v[64:67] offset:16
    s_mov_b64 exec, s[28:29]""")
    k.waitall()
    k("s_barrier")
    k("""v_cmp_gt_u32 vcc, 32, v0
    s_and_saveexec_b64 s[28:29], vcc
    s_cbranch_execz L_k0_end
    v_lshlrev_b32 v5, 2, v0""")
    for i in range(16):
        k(f"ds_read_b32 v{8+i}, v5 offset:{128*i}")
    for i in range(1, 16):
        k(f"v_add_f32 v8, v8, v{8+i}")
    bf16r(k, 8, 8)
    k("""s_mul_i32 s14, s3, 205
    s_lshr_b32 s14, s14, 12           ; j/20
    s_cmp_eq_u32 s14, 1
    s_cselect_b32 s15, 1, 0
    s_cmp_eq_u32 s14, 4
    s_cselect_b32 s15, 1, s15
    s_cmp_eq_u32 s15, 0
    s_cbranch_scc1 L_k0_st""")
    k("v_add_f32 v8, 1.0, v8")
    bf16r(k, 8, 8)
    k.label("L_k0_st")
    k(f"""s_lshl_b32 s14, s3, 7
    s_add_u32 s14, s14, {MOD}
    buffer_store_dword v8, v5, s[16:19], s14 offen""")
    stamp_flush(k, 1, wg=130)
    k.label("L_k0_end")
    k("s_endpgm")
    return k

def interleave(k, mf, fill):
    n = len(mf)
    per = [len(fill) * (i + 1) // n - len(fill) * i // n for i in range(n)]
    j = 0
    for i, m in enumerate(mf):
        k(m)
        for _ in range(per[i]):
            f = fill[j]; j += 1
            if callable(f): f()
            else: k(f)


def repack16_issue(k, su, slds, sr_wo, sr_wd, v0, s0, lane):
    k(f"""s_cmp_lt_u32 s{su}, 200
    s_cselect_b32 s{s0+4}, s{sr_wo}, s{sr_wd}
    s_cselect_b32 s{s0+5}, s{sr_wo+1}, s{sr_wd+1}
    s_cselect_b32 s{s0+6}, s{sr_wo+2}, s{sr_wd+2}
    s_mov_b32 s{s0+7}, 0x00020000
    s_cselect_b32 s{s0}, 0, 200
    s_sub_u32 s{s0}, s{su}, s{s0}        ; u'
    s_mul_i32 s{s0+1}, s{s0}, 6554
    s_lshr_b32 s{s0+1}, s{s0+1}, 16      ; s32 = u'/10
    s_mul_i32 s{s0+2}, s{s0+1}, 10
    s_sub_u32 s{s0+2}, s{s0}, s{s0+2}    ; cg
    s_mul_i32 s{s0}, s{s0+1}, {32*1280}
    s_lshl_b32 s{s0+3}, s{s0+2}, 7
    s_add_u32 s{s0}, s{s0}, s{s0+3}
    v_lshrrev_b32 v{v0}, 3, v{lane}
    v_mul_u32_u24 v{v0}, 1280, v{v0}
    v_and_b32 v{v0+1}, 7, v{lane}
    v_lshl_add_u32 v{v0}, v{v0+1}, 4, v{v0}""")
    for i in range(4):
        k(f"s_add_u32 m0, s{slds}, {1024*i}")
        last = k(f"buffer_load_dwordx4 v{v0}, s[{s0+4}:{s0+7}], s{s0} offen lds")
        if i < 3: k(f"s_add_u32 s{s0}, s{s0}, {8*1280}")
    return last

def repack16_finish(k, su, slds, sr_ws, v0, s0, lane, dma_id, wd=False):
    if wd:
        k(f"""v_lshrrev_b32 v{v0}, 5, v{lane}
        v_lshlrev_b32 v{v0}, 2, v{v0}
        v_bfe_u32 v{v0+1}, v{lane}, 4, 1
        v_add_u32 v{v0}, v{v0}, v{v0+1}          ; 4(g>>1) + (g&1)""")
    else:
        k(f"v_lshrrev_b32 v{v0}, 4, v{lane}        ; g")
    k(f"""v_bfe_u32 v{v0+1}, v{lane}, 2, 2          ; r
    v_lshl_add_u32 v{v0}, v{v0}, 2, v{v0+1}
    v_lshlrev_b32 v{v0}, 7, v{v0}
    v_and_b32 v{v0+1}, 3, v{lane}
    v_lshl_add_u32 v{v0}, v{v0+1}, 3, v{v0}
    v_add_u32 v{v0}, s{slds}, v{v0}
    v_lshlrev_b32 v{v0+1}, 4, v{lane}""")
    k.wait_vm_id(dma_id)
    for f in range(4):
        for a in range(2):
            d = v0 + 4 + 4 * f + 2 * a
            k(f"ds_read_b64_tr_b16 v[{d}:{d+1}], v{v0} offset:{a*(1024 if wd else 2048) + f*32}")
    k(f"""s_cmp_lt_u32 s{su}, 200
    s_cselect_b32 s{s0}, {20*5120}, 0
    s_cselect_b32 s{s0+3}, 0, {48*5120}
    s_add_u32 s{s0}, s{s0}, s{s0+3}
    s_cselect_b32 s{s0+3}, 0, {WDP-WOP}
    s_cmp_lt_u32 s{su}, 200
    s_cselect_b32 s{s0+3}, 0, {WDP-WOP}
    s_add_u32 s{s0+3}, s{s0+3}, {WOP}
    s_mul_i32 s{s0+1}, s{s0+1}, 5120
    s_add_u32 s{s0+3}, s{s0+3}, s{s0+1}      ; base + s32*5120
    s_lshl_b32 s{s0+2}, s{s0+2}, 2           ; ft0""")
    for f in range(4):
        k(f"""s_add_u32 s{s0+4}, s{s0+2}, {f}
        s_mul_i32 s{s0+5}, s{s0+4}, 52
        s_lshr_b32 s{s0+5}, s{s0+5}, 8
        s_mul_i32 s{s0+6}, s{s0+5}, 5
        s_sub_u32 s{s0+6}, s{s0+4}, s{s0+6}      ; j
        s_mul_i32 s{s0+5}, s{s0+5}, s{s0}
        s_lshl_b32 s{s0+6}, s{s0+6}, 10
        s_add_u32 s{s0+5}, s{s0+5}, s{s0+6}
        s_add_u32 s{s0+5}, s{s0+5}, s{s0+3}
        buffer_store_dwordx4 v[{v0+4+4*f}:{v0+7+4*f}], v{v0+1}, s[{sr_ws}:{sr_ws+3}], s{s0+5} offen sc1""")

def repackgu_issue(k, su, spw, scr, sr_g, sr_u, v0, s0, lane, sr_ws, gsl):
    k(f"""s_mul_i32 s{s0+1}, s{su}, 2731
    s_lshr_b32 s{s0+1}, s{s0+1}, 16      ; c64 = u/24
    s_mul_i32 s{s0+2}, s{s0+1}, 24
    s_sub_u32 s{s0+2}, s{su}, s{s0+2}    ; cg
    s_lshl_b32 s{s0}, s{s0+1}, 2
    s_add_u32 s{s0}, s{s0}, s{spw}
    s_mul_i32 s{s0}, s{s0}, {16*3072}
    s_lshl_b32 s{s0+3}, s{s0+2}, 7
    s_add_u32 s{s0}, s{s0}, s{s0+3}
    s_add_u32 s{s0+3}, s{s0}, {8*3072}
    s_lshl_b32 s{s0+4}, s{spw}, 12
    v_lshrrev_b32 v{v0}, 3, v{lane}
    v_mul_u32_u24 v{v0}, 3072, v{v0}
    v_and_b32 v{v0+1}, 7, v{lane}
    v_lshl_add_u32 v{v0}, v{v0+1}, 4, v{v0}""")
    for i, (sr, so) in enumerate(((sr_g, s0), (sr_g, s0 + 3), (sr_u, s0), (sr_u, s0 + 3))):
        k(f"s_add_u32 m0, s{s0+4}, {scr + 1024*i}")
        last = k(f"buffer_load_dwordx4 v{v0}, s[{sr}:{sr+3}], s{so} offen lds")
    k(f"""v_and_b32 v{v0}, 15, v{lane}
    v_lshlrev_b32 v{v0}, 4, v{v0}
    v_bfe_u32 v{v0+1}, v{lane}, 4, 1
    v_mul_u32_u24 v{v0+1}, 2560, v{v0+1}
    v_add_u32 v{v0}, v{v0}, v{v0+1}
    s_lshl_b32 s{s0+4}, s{s0+1}, 8
    s_add_u32 s{s0+4}, s{s0+4}, {MOD + 3*2560}
    s_mov_b32 m0, {gsl}""")
    last = k(f"buffer_load_dwordx4 v{v0}, s[{sr_ws}:{sr_ws+3}], s{s0+4} offen lds")
    return last

def repackgu_gs_lds(k, gsl, v0, hreg):
    k(f"""v_lshlrev_b32 v{v0+1}, 5, v{hreg}
    v_add_u32 v{v0+1}, {gsl}, v{v0+1}""")
    for q in range(4):
        b = v0 + 8 + 16 * q
        k(f"""ds_read_b128 v[{b}:{b+3}], v{v0+1} offset:{256 + 64*q}
        ds_read_b128 v[{b+4}:{b+7}], v{v0+1} offset:{256 + 64*q+16}
        ds_read_b128 v[{b+8}:{b+11}], v{v0+1} offset:{64*q}
        ds_read_b128 v[{b+12}:{b+15}], v{v0+1} offset:{64*q+16}""")

def repackgu_gs(k, sr_ws, v0, s0, hreg):
    k(f"""v_lshlrev_b32 v{v0+1}, 5, v{hreg}
    s_lshl_b32 s{s0+4}, s{s0+1}, 8
    s_add_u32 s{s0+5}, s{s0+4}, {MOD + 4*2560}
    s_add_u32 s{s0+4}, s{s0+4}, {MOD + 3*2560}""")
    for q in range(4):
        b = v0 + 8 + 16 * q
        k(f"""buffer_load_dwordx4 v[{b}:{b+3}], v{v0+1}, s[{sr_ws}:{sr_ws+3}], s{s0+5} offen offset:{64*q}
        buffer_load_dwordx4 v[{b+4}:{b+7}], v{v0+1}, s[{sr_ws}:{sr_ws+3}], s{s0+5} offen offset:{64*q+16}
        buffer_load_dwordx4 v[{b+8}:{b+11}], v{v0+1}, s[{sr_ws}:{sr_ws+3}], s{s0+4} offen offset:{64*q}
        buffer_load_dwordx4 v[{b+12}:{b+15}], v{v0+1}, s[{sr_ws}:{sr_ws+3}], s{s0+4} offen offset:{64*q+16}""")

def repackgu_finish(k, spw, scr, sr_ws, v0, w0, s0, lane, hreg, smask):
    ON = w0 + 4; WR = w0 + 8; T = w0 + 24; D1 = w0 + 32; D2 = w0 + 48; WO_ = w0 + 64; SP = v0
    k(f"""v_bfe_u32 v{w0+1}, v{lane}, 2, 2          ; r
    v_lshl_add_u32 v{w0}, v{hreg}, 3, v{w0+1}
    v_lshlrev_b32 v{w0}, 7, v{w0}
    v_bfe_u32 v{w0+1}, v{lane}, 4, 1          ; fh
    v_lshl_add_u32 v{w0}, v{w0+1}, 11, v{w0}
    v_and_b32 v{w0+1}, 3, v{lane}
    v_lshl_add_u32 v{w0}, v{w0+1}, 3, v{w0}
    s_lshl_b32 s{s0}, s{spw}, 5
    s_add_u32 s{s0}, s{s0}, {scr}
    v_add_u32 v{w0}, s{s0}, v{w0}
    v_lshlrev_b32 v{w0+1}, 4, v{lane}
    v_lshlrev_b32 v{w0+2}, 2, v{lane}""")
    for d in range(4): k(f"v_mov_b32 v{ON+d}, 0x3f803f80")
    for q in range(4):
        for a in range(2):
            d = WR + 4 * q + 2 * a
            k(f"ds_read_b64_tr_b16 v[{d}:{d+1}], v{w0} offset:{q*4096 + a*512}")
    k(f"""s_lshl_b32 s{s0+2}, s{s0+2}, 2
    s_add_u32 s{s0+2}, s{s0+2}, s{spw}
    s_mul_i32 s{s0}, s{s0+2}, 40960
    s_lshl_b32 s{s0+1}, s{s0+1}, 12
    s_add_u32 s{s0}, s{s0}, s{s0+1}
    s_add_u32 s{s0}, s{s0}, {WGUP}
    s_lshl_b32 s{s0+3}, s{s0+2}, 7
    s_add_u32 s{s0+3}, s{s0+3}, {GSUM}
    s_add_u32 s{s0+4}, s{s0+3}, 12288""")
    for q in range(4):
        w = WR + 4 * q; o = WO_ + 4 * q; G = v0 + 8 + 16 * q; Sv = G + 8; sp = SP + 4 * (q % 2)
        for d in range(4): k(f"v_cvt_pk_bf16_f32 v{sp+d}, v{Sv+2*d}, v{Sv+2*d+1}")
        k(f"v_mfma_f32_32x32x16_bf16 v[{D1}:{D1+15}], v[{sp}:{sp+3}], v[{w}:{w+3}], {'v[%d:%d]' % (D1, D1+15) if q else 0}")
        for d in range(4):
            k(f"v_lshlrev_b32 v{T+2*d}, 16, v{w+d}")
            k(f"v_and_b32 v{T+2*d+1}, s{smask}, v{w+d}")
        for d in range(8): k(f"v_mul_f32 v{T+d}, v{T+d}, v{G+d}")
        for d in range(4): k(f"v_cvt_pk_bf16_f32 v{o+d}, v{T+2*d}, v{T+2*d+1}")
        k(f"v_mfma_f32_32x32x16_bf16 v[{D2}:{D2+15}], v[{ON}:{ON+3}], v[{o}:{o+3}], {'v[%d:%d]' % (D2, D2+15) if q else 0}")
        k(f"buffer_store_dwordx4 v[{o}:{o+3}], v{w0+1}, s[{sr_ws}:{sr_ws+3}], s{s0} offen offset:{1024*q} sc1")
    k(f"v_mov_b32 v{T}, v{D1}"); k(f"v_mov_b32 v{T+1}, v{D2}")
    k("s_mov_b32 exec_hi, 0")
    k(f"buffer_atomic_add_f32 v{T}, v{w0+2}, s[{sr_ws}:{sr_ws+3}], s{s0+4} offen")
    k(f"buffer_atomic_add_f32 v{T+1}, v{w0+2}, s[{sr_ws}:{sr_ws+3}], s{s0+3} offen")
    k("s_mov_b64 exec, -1")

import copy
def snap(k): return copy.deepcopy((k.pos, k.wr, k.mfma_c_rd, k.store_rd, k.vmq, k.lgq, k.pend_vm, k.pend_lg))
def restore(k, st): (k.pos, k.wr, k.mfma_c_rd, k.store_rd, k.vmq, k.lgq, k.pend_vm, k.pend_lg) = copy.deepcopy(st)

def gen_gemm32(mode):
    qkv = (mode == 'qkv')
    nm = 'k1' if qkv else 'k4'
    k = Kern("k1_qkv_kernel" if qkv else "k4_ffn_kernel")
    if qkv:
        NSLOT = 5; SS = 16384; NT = 2; GRP = 4
    else:
        NSLOT = 4; UOFF = 12320; SS = 24640; NT = 3; GRP = 2
    SCR = NSLOT * SS
    XHB = SCR + 16384
    GSB_L = XHB + 49152
    LDS = GSB_L + 5120
    stamp(k, 0)
    k(f"""s_cmp_ge_u32 s2, 256
    s_cbranch_scc1 L_{nm}_end""")
    k(f"s_load_dwordx2 s[4:5], s[0:1], {ARG['wqkv']}")
    k(f"s_load_dwordx4 s[36:39], s[0:1], {ARG['wg']}")
    k(f"s_load_dwordx2 s[44:45], s[0:1], {ARG['wd']}")
    k(f"""s_load_dwordx2 s[6:7], s[0:1], {ARG['ws']}
    s_and_b32 s20, s2, 7              ; xcd
    s_lshr_b32 s21, s2, 3             ; idx
{MAP14}""")
    if qkv:
        k(f"""s_cmp_ge_u32 s23, 15
        s_cbranch_scc1 L_{nm}_idle""")
    k(f"""v_lshrrev_b32 v1, 6, v0
    v_and_b32 v2, 63, v0              ; lane
    v_readfirstlane_b32 s24, v1       ; wave
    s_mov_b32 s30, 0xffff0000
    v_lshrrev_b32 v20, 5, v2          ; h
    v_lshlrev_b32 v5, 4, v2           ; lane*16""")
    k.waitall()
    srd(k, 12, 6, NB['ws'])
    k(f"""s_cmp_ge_u32 s24, 4
    s_cbranch_scc1 L_{nm}_prod""")
    st0 = snap(k)

    ACC = 32; XF = 128; WF = 144; TMP = 168
    k(f"""s_lshr_b32 s25, s24, 1            ; tm
    s_and_b32 s26, s24, 1             ; tn
    v_bfe_u32 v21, v2, 4, 1           ; fh
    v_bfe_u32 v22, v2, 2, 2           ; r
    v_and_b32 v23, 3, v2              ; c4""")
    ngrp = (NSLOT + GRP - 1) // GRP
    if qkv:
        k("""v_lshlrev_b32 v24, 11, v20        ; h*2048
        v_lshl_add_u32 v24, v22, 8, v24   ; + r*256
        v_lshl_add_u32 v24, v21, 5, v24   ; + fh*32
        v_lshl_add_u32 v24, v23, 3, v24   ; + c4*8
        s_lshl_b32 s27, s26, 1""")
        for j in range(2):
            k(f"s_add_u32 s28, s27, {j}")
            k(f"v_xor_b32 v25, s28, v22")
            k(f"v_lshl_add_u32 v{8+j*2}, v25, 6, v24")
            k(f"v_add_u32 v{9+j*2}, {GRP*SS}, v{8+j*2}")
    else:
        k(f"""v_lshl_add_u32 v24, v20, 3, v22   ; 8h + r
        v_mul_u32_u24 v24, 192, v24
        v_mul_u32_u24 v25, {UOFF}, v21
        v_add_u32 v24, v24, v25
        v_lshl_add_u32 v24, v23, 3, v24
        s_mul_i32 s27, s26, 96
        v_add_u32 v8, s27, v24
        v_add_u32 v9, {GRP*SS}, v8
        v_add_u32 v10, {2*GRP*SS}, v8""")
    k(f"""s_lshl_b32 s27, s25, 11
    s_add_u32 s27, s27, {XHB}
    v_add_u32 v12, s27, v5""")
    if qkv:
        srd(k, 8, 4, NB['wqkv'])
        k(f"""v_lshrrev_b32 v13, 4, v2           ; rr
        v_and_b32 v14, 15, v2              ; pos
        v_lshlrev_b32 v15, 2, v13
        v_xor_b32 v14, v14, v15
        v_mul_u32_u24 v13, 3840, v13
        v_lshl_add_u32 v13, v14, 4, v13
        s_mul_i32 s40, s24, {16*3840}
        s_lshl_b32 s41, s23, 8
        s_add_u32 s40, s40, s41
        s_lshl_b32 s41, s24, 12""")
    else:
        srd(k, 8, 36, NB['wg']); srd(k, 16, 38, NB['wu'])
        for t in range(3):
            k(f"""v_add_u32 v16, {64*t}, v2
            v_mul_u32_u24 v17, 0xaaab, v16
            v_lshrrev_b32 v17, 19, v17        ; row = p/12
            v_mul_u32_u24 v18, 12, v17
            v_sub_u32 v18, v16, v18           ; ch
            v_mul_u32_u24 v17, 3072, v17
            v_lshl_add_u32 v{13+t}, v18, 4, v17""")
        k(f"""s_mul_i32 s40, s24, {16*3072}
        s_mul_i32 s41, s23, 192
        s_add_u32 s40, s40, s41
        s_mul_i32 s41, s24, 3072""")
    dma_ids = {}
    def wdma(c):
        slot = c % NSLOT
        out = []
        if qkv:
            for i in range(4):
                def f(i=i):
                    k(f"s_add_u32 m0, s41, {slot*SS + i*1024}")
                    k(f"s_add_u32 s42, s40, {(64*c + 4*i)*3840}")
                    dma_ids[c] = k(f"buffer_load_dwordx4 v13, s[8:11], s42 offen lds")
                out.append(f)
        else:
            for u in range(2):
                for t in range(3):
                    def f(u=u, t=t):
                        if u == 0 and t == 0: k(f"s_add_u32 s42, s40, {64*c*3072}")
                        k(f"s_add_u32 m0, s41, {slot*SS + u*UOFF + t*1024}")
                        dma_ids[c] = k(f"buffer_load_dwordx4 v{13+t}, s[{8+8*u}:{11+8*u}], s42 offen lds")
                    out.append(f)
        return out
    LAW = int([e for e in EXP if e.startswith('law')][0][3:]) if any(e.startswith('law') for e in EXP) else 3
    for c in range(LAW):
        for f in wdma(c): f()
    for i in range(2 * NT * 16):
        k(f"v_mov_b32 v{ACC+i}, 0")

    def reads(s):
        c = s // 4; ks = s % 4; slot = c % NSLOT
        grp = slot // GRP; so = (slot % GRP) * SS
        out = []
        for i in range(2):
            d = XF + (s % 2) * 8 + i * 4
            out.append(f"ds_read_b128 v[{d}:{d+3}], v12 offset:{(c%3)*16384 + ks*4096 + i*1024}")
        for j in range(NT):
            for a in range(2):
                d = WF + (s % 2) * 12 + j * 4 + a * 2
                if qkv:
                    out.append(f"ds_read_b64_tr_b16 v[{d}:{d+1}], v{8+j*2+grp} offset:{so + ks*4096 + a*1024}")
                else:
                    out.append(f"ds_read_b64_tr_b16 v[{d}:{d+1}], v{8+grp} offset:{so + ks*3072 + a*768 + j*32}")
        return [out[0]] + out[2:4] + [out[1]] + out[4:]
    stamp(k, 1)
    k.wait_vm_id(dma_ids[0])
    k("s_barrier")
    stamp(k, 2)
    for t in reads(0): k(t)
    if qkv:
        k("s_cmp_ge_u32 s23, 10")
        k(f"s_cbranch_scc1 L_{nm}_v")
    st1 = snap(k); dma1 = dict(dma_ids)
    def mainloop(swap):
        pend = wdma(LAW)
        for s in range(40):
            c = s // 4
            if s % 4 == 3 and c < 9:
                k.wait_vm_id(dma_ids[c + 1]); k.wait_lg(0)
                k("s_barrier")
                stamp(k, 3 + c)
                if c + 1 + LAW <= 9: pend = wdma(c + 1 + LAW)
            fill = reads(s + 1) if s + 1 < 40 else []
            nd = (len(pend) + 1) // 2 if s % 4 != 2 else len(pend)
            nd = min(len(pend), 2 if qkv else 3)
            fill = fill + pend[:nd]; pend = pend[nd:]
            mf = []
            for j in range(NT):
                for i in range(2):
                    w = f"v[{WF+(s%2)*12+j*4}:{WF+(s%2)*12+j*4+3}]"; x = f"v[{XF+(s%2)*8+i*4}:{XF+(s%2)*8+i*4+3}]"
                    d0 = ACC + 16 * (i * NT + j)
                    d = f"v[{d0}:{d0+15}]"
                    mf.append(f"v_mfma_f32_32x32x16_bf16 {d}, {x if swap else w}, {w if swap else x}, {d}")
            n = len(mf); per = 2
            fi = 0
            if 'noreads' in EXP: fill = []
            for m in mf:
                if 'nomfma' not in EXP: k(m)
                for _ in range(per):
                    if fi < len(fill):
                        f = fill[fi]; fi += 1
                        if callable(f): f()
                        else: k(f)
    mainloop(False)
    stamp(k, 12)
    if qkv:
        k(f"""s_cmp_ge_u32 s23, 5
        s_cselect_b32 s29, {KB-QB}, 0
        s_cselect_b32 s31, 5, 0
        s_add_u32 s29, s29, {QB}
        s_sub_u32 s31, s23, s31           ; nb'
        s_lshl_b32 s31, s31, 12           ; 16 groups * 256
        s_lshl_b32 s32, s26, 11
        s_add_u32 s29, s29, s31
        s_add_u32 s29, s29, s32
        s_lshl_b32 s32, s22, 3
        s_lshl_b32 s33, s25, 2
        s_add_u32 s32, s32, s33
        s_mul_i32 s32, s32, 20480
        s_add_u32 s29, s29, s32
        s_add_u32 s31, s29, 40960         ; i = 1
        v_bfe_u32 v3, v2, 4, 1
        v_mul_u32_u24 v4, 20480, v3
        v_and_b32 v3, 15, v2
        v_lshl_add_u32 v4, v3, 4, v4
        v_lshl_add_u32 v4, v20, 8, v4     ; + h*256""")
        n = 0
        for j in range(2):
            for i in range(2):
                for ap in range(2):
                    r = ACC + 16 * (i * NT + j) + 8 * ap
                    t = TMP + 4 * (n % 4); n += 1
                    for e in range(4): k(f"v_cvt_pk_bf16_f32 v{t+e}, v{r+2*e}, v{r+2*e+1}")
                    k(f"v_permlane32_swap_b32 v{t}, v{t+2}")
                    k(f"v_permlane32_swap_b32 v{t+1}, v{t+3}")
                    k(f"buffer_store_dwordx4 v[{t}:{t+3}], v4, s[12:15], s{29 if i == 0 else 31} offen offset:{j*1024 + ap*512} sc1")
        stamp_flush(k, 13)
        k("s_endpgm")
        k.label(f"L_{nm}_v")
        restore(k, st1); dma_ids.clear(); dma_ids.update(dma1)
        mainloop(True)
        k(f"""s_sub_u32 s31, s23, 10
        s_lshl_b32 s31, s31, 7            ; 128 nb'
        s_lshl_b32 s32, s26, 6
        s_add_u32 s31, s31, s32           ; + 64 tn
        s_lshl_b32 s32, s22, 2
        s_lshl_b32 s33, s25, 1
        s_add_u32 s32, s32, s33
        s_mul_i32 s32, s32, 1280
        s_add_u32 s29, s32, {VB}
        v_and_b32 v3, 31, v2              ; j
        v_add_u32 v5, s31, v3             ; f0
        s_mov_b32 s33, 81920""")
        n = 0
        for j in range(2):
            k(f"""v_add_u32 v6, {32*j}, v5
            v_mul_u32_u24 v7, 0xcccd, v6
            v_lshrrev_b32 v7, 20, v7          ; head = f/20
            v_mul_u32_u24 v8, 20, v7
            v_sub_u32 v8, v6, v8              ; d
            v_mul_lo_u32 v7, v7, s33
            v_lshl_add_u32 v7, v8, 4, v7      ; + d*16
            v_cmp_gt_u32 vcc, 16, v8
            v_lshlrev_b32 v9, 8, v20          ; h*256
            v_lshlrev_b32 v10, 6, v20
            v_add_u32 v10, 768, v10           ; 1024 - 256 + h*64
            v_cndmask_b32 v9, v10, v9, vcc
            v_add_u32 v7, v7, v9
            v_mov_b32 v9, 128
            v_mov_b32 v10, 512
            v_cndmask_b32 v9, v9, v10, vcc
            v_add_u32 v9, v7, v9""")
            for i in range(2):
                for a1 in range(2):
                    t = TMP + 4 * (n % 4); n += 1
                    r0 = ACC + 16 * (i * NT + j) + 4 * a1; r1 = r0 + 8
                    k(f"v_cvt_pk_bf16_f32 v{t}, v{r0}, v{r0+1}")
                    k(f"v_cvt_pk_bf16_f32 v{t+1}, v{r0+2}, v{r0+3}")
                    k(f"v_cvt_pk_bf16_f32 v{t+2}, v{r1}, v{r1+1}")
                    k(f"v_cvt_pk_bf16_f32 v{t+3}, v{r1+2}, v{r1+3}")
                    k(f"buffer_store_dwordx4 v[{t}:{t+3}], v{7 if a1 == 0 else 9}, s[12:15], s29 offen offset:{1280*i} sc1")
        stamp_flush(k, 13)
        k("s_endpgm")
    else:
        k(f"""s_mul_i32 s31, s23, 6
        s_mul_i32 s32, s26, 3
        s_add_u32 s31, s31, s32           ; b16 base
        s_lshl_b32 s32, s22, 3
        s_lshl_b32 s33, s25, 2
        s_add_u32 s32, s32, s33           ; T16 base
        s_mul_i32 s32, s32, {48*1024}
        s_add_u32 s29, s32, {ACT}
        v_bfe_u32 v3, v2, 4, 1
        v_mul_u32_u24 v4, {48*1024}, v3
        v_and_b32 v3, 15, v2
        v_lshl_add_u32 v4, v3, 4, v4      ; + tok16*16
        v_lshl_add_u32 v4, v20, 8, v4     ; + h*256
        v_add_u32 v6, {2*48*1024}, v4     ; i = 1
        s_mov_b32 s34, 0xbfb8aa3b""")
        n = 0
        for j in range(3):
            k(f"""s_add_u32 s32, s31, {j}
            s_lshr_b32 s33, s32, 1
            s_lshl_b32 s33, s33, 10
            s_and_b32 s32, s32, 1
            s_lshl_b32 s32, s32, 3
            s_add_u32 s33, s33, s32
            s_add_u32 s33, s33, s29""")
            for i in range(2):
                r = ACC + 16 * (i * NT + j)
                T = TMP + 8 * (n % 2); O = TMP + 16 + 4 * (n % 4); n += 1
                for e in range(8): k(f"v_mul_f32 v{T+e}, s34, v{r+e}")
                for e in range(8): k(f"v_exp_f32 v{T+e}, v{T+e}")
                for e in range(8): k(f"v_add_f32 v{T+e}, 1.0, v{T+e}")
                for e in range(8): k(f"v_rcp_f32 v{T+e}, v{T+e}")
                for e in range(8): k(f"v_mul_f32 v{r+e}, v{r+e}, v{r+8+e}")
                for e in range(8): k(f"v_mul_f32 v{r+e}, v{r+e}, v{T+e}")
                for e in range(4): k(f"v_cvt_pk_bf16_f32 v{O+e}, v{r+2*e}, v{r+2*e+1}")
                for a in range(2):
                    k(f"buffer_store_dwordx2 v[{O+2*a}:{O+2*a+1}], v{4 if i == 0 else 6}, s[12:15], s33 offen offset:{512*a}")
        stamp_flush(k, 13)
        k("s_endpgm")

    k.label(f"L_{nm}_prod")
    restore(k, st0)
    GSR = 32; TMP = 64; OUT = 80; STAT = 96; XR = 104
    XSRC = XN if qkv else X1
    k(f"""s_sub_u32 s24, s24, 4             ; pw""")
    goff = (MOD + 2560) if qkv else (MOD + 4 * 2560)
    soff = MOD if qkv else (MOD + 3 * 2560)
    k(f"""v_lshrrev_b32 v3, 2, v2
    v_and_b32 v4, 3, v2
    v_lshlrev_b32 v6, 8, v3
    v_lshl_add_u32 v6, v4, 4, v6
    v_cmp_gt_u32 vcc, 40, v2
    v_mov_b32 v7, 0x7ffffff0
    v_cndmask_b32 v6, v7, v6, vcc
    s_lshl_b32 s25, s24, 6
    s_add_u32 s26, s25, {goff}
    s_add_u32 s25, s25, {soff}
    buffer_load_dwordx4 v[{GSR}:{GSR+3}], v6, s[12:15], s26 offen
    buffer_load_dwordx4 v[{GSR+4}:{GSR+7}], v6, s[12:15], s25 offen""")
    if not qkv:
        k(f"""v_and_b32 v7, 31, v2
        v_lshlrev_b32 v7, 6, v7
        v_lshl_add_u32 v7, v20, 5, v7
        s_lshl_b32 s25, s22, 13
        s_add_u32 s25, s25, {ST}""")
        for t in range(4):
            k(f"buffer_load_dwordx4 v[{GSR+8+8*t if t < 3 else TMP}:{GSR+11+8*t if t < 3 else TMP+3}], v7, s[12:15], s25 offen offset:{2048*(t%2)}")
            k(f"buffer_load_dwordx4 v[{GSR+12+8*t if t < 3 else TMP+4}:{GSR+15+8*t if t < 3 else TMP+7}], v7, s[12:15], s25 offen offset:{2048*(t%2)+16}")
            if t == 1: k("s_add_u32 s25, s25, 4096")
    k(f"""s_mul_i32 s26, s22, {4*40960}
    s_lshl_b32 s27, s24, 10
    s_add_u32 s26, s26, s27
    s_add_u32 s26, s26, {XSRC}""")
    wr_ids = {}
    D = 4
    LAX = int([e for e in EXP if e.startswith('lax')][0][3:]) if any(e.startswith('lax') for e in EXP) else 2
    def issue(c):
        if c > 9: return
        for t in range(4):
            r = XR + (c % D) * 16 + t * 4
            k(f"s_add_u32 s29, s26, {t*40960 + c*4096}")
            k(f"buffer_load_dwordx4 v[{r}:{r+3}], v5, s[12:15], s29 offen")
    for c in range(LAX): issue(c)
    k(f"""s_mul_i32 s25, s24, 1280
    s_add_u32 s25, s25, {GSB_L}
    v_lshlrev_b32 v14, 7, v3
    v_lshrrev_b32 v15, 1, v4
    v_lshl_add_u32 v14, v15, 6, v14
    v_and_b32 v15, 1, v4
    v_lshl_add_u32 v14, v15, 4, v14
    v_add_u32 v14, s25, v14
    v_cmp_gt_u32 vcc, 40, v2
    s_and_saveexec_b64 s[34:35], vcc
    ds_write_b128 v14, v[{GSR}:{GSR+3}]
    ds_write_b128 v14, v[{GSR+4}:{GSR+7}] offset:32
    s_mov_b64 exec, s[34:35]
    v_lshlrev_b32 v15, 6, v20
    v_add_u32 v15, s25, v15
    s_lshl_b32 s25, s24, 12
    s_add_u32 s25, s25, {XHB}
    v_add_u32 v16, s25, v5""")
    if not qkv:
        for t in range(4):
            b = GSR + 8 + 8 * t if t < 3 else TMP
            k(f"""v_add_f32 v{b}, v{b}, v{b+2}
            v_add_f32 v{b+1}, v{b+1}, v{b+3}
            v_add_f32 v{b+4}, v{b+4}, v{b+6}
            v_add_f32 v{b+5}, v{b+5}, v{b+7}
            v_add_f32 v{b}, v{b}, v{b+4}
            v_add_f32 v{b+1}, v{b+1}, v{b+5}
            v_mov_b32 v{b+2}, v{b}
            v_mov_b32 v{b+3}, v{b+1}
            v_permlane32_swap_b32 v{b}, v{b+2}
            v_permlane32_swap_b32 v{b+1}, v{b+3}
            v_add_f32 v{b}, v{b}, v{b+2}
            v_add_f32 v{b+1}, v{b+1}, v{b+3}
            v_mul_f32 v{b}, 0x3acccccd, v{b}          ; mean
            v_mul_f32 v{b+1}, 0x3acccccd, v{b+1}      ; E[x2]
            v_fma_f32 v{b+1}, -v{b}, v{b}, v{b+1}     ; var
            v_max_f32 v{b+1}, 0, v{b+1}""")
            bf16r(k, b, b); bf16r(k, b + 1, b + 1)
            k(f"v_add_f32 v{b+1}, 0x3727c5ac, v{b+1}")
            bf16r(k, b + 1, b + 1)
            k(f"v_sqrt_f32 v{b+1}, v{b+1}")
            bf16r(k, b + 1, b + 1)
            k(f"v_rcp_f32 v{STAT+2*t}, v{b+1}")
            k(f"v_mul_f32 v{STAT+2*t+1}, v{b}, v{STAT+2*t}")
            k(f"v_sub_f32 v{STAT+2*t+1}, 0, v{STAT+2*t+1}")
    k.wait_lg(0)
    def gs_reads(c):
        b = GSR + (c % 2) * 16
        for i in range(4): k(f"ds_read_b128 v[{b+4*i}:{b+4*i+3}], v15 offset:{c*128 + 16*i}")
    def norm(c):
        b = GSR + (c % 2) * 16
        for t in range(4):
            r = XR + (c % D) * 16 + t * 4; o = OUT + t * 4; T = TMP + (t % 2) * 8
            if 'novalu' not in EXP:
              if qkv:
                for d in range(8):
                  k(f"v_fma_mix_f32 v{T+d}, v{r+d//2}, v{b+d}, v{b+8+d} op_sel:[{d%2},0,0] op_sel_hi:[1,0,0]")
              else:
                for d in range(4):
                  k(f"v_lshlrev_b32 v{T+2*d}, 16, v{r+d}")
                  k(f"v_and_b32 v{T+2*d+1}, s30, v{r+d}")
                for d in range(8): k(f"v_fma_f32 v{T+d}, v{T+d}, v{STAT+2*t}, v{STAT+2*t+1}")
                for d in range(8): k(f"v_fma_f32 v{T+d}, v{T+d}, v{b+d}, v{b+8+d}")
              for d in range(4): k(f"v_cvt_pk_bf16_f32 v{o+d}, v{T+2*d}, v{T+2*d+1}")
            if 'nodsw' not in EXP:
              wr_ids[c] = k(f"ds_write_b128 v16, v[{o}:{o+3}] offset:{(c%3)*16384 + t*1024}")
    stamp(k, 1)
    gs_reads(0); gs_reads(1)
    issue(LAX)
    norm(0)
    issue(LAX + 1)
    gs_reads(2)
    norm(1)
    k.wait_lg_id(wr_ids[0])
    stamp(k, 2)
    k("s_barrier")
    for p in range(9):
        issue(p + 2 + LAX)
        if p == 7:
            k(f"""s_mul_i32 s46, s22, 15
            s_add_u32 s46, s46, s23
            s_lshl_b32 s46, s46, 13
            v_lshlrev_b32 v168, 7, v2
            s_cmp_eq_u32 s24, 0
            s_cselect_b32 s48, s36, s38
            s_cselect_b32 s49, s37, s39
            s_cmp_eq_u32 s24, 2
            s_cselect_b32 s48, s44, s48
            s_cselect_b32 s49, s45, s49
            s_and_b32 s49, s49, 0xffff
            s_mov_b32 s50, {NB['wg']}
            s_mov_b32 s51, 0x00020000
            buffer_load_dword v169, v168, s[48:51], s46 offen""")
        if p + 3 <= 9: gs_reads(p + 3)
        if p + 2 <= 9: norm(p + 2)
        k.wait_lg_id(wr_ids[p + 1])
        stamp(k, 3 + p)
        k("s_barrier")
    stamp_flush(k, 12, tid=256, base=64)
    k("s_endpgm")
    k.label(f"L_{nm}_idle")
    k.vmq = []; k.lgq = []; k.pend_vm = {}; k.pend_lg = {}
    k(f"""s_load_dwordx2 s[18:19], s[0:1], {ARG['wo']}
    v_lshrrev_b32 v1, 6, v0
    v_and_b32 v2, 63, v0
    v_readfirstlane_b32 s24, v1
    s_lshl_b32 s16, s24, 4
    s_add_u32 s16, s16, s22           ; unit
    s_cmp_ge_u32 s16, 40
    s_cbranch_scc1 L_{nm}_end
    s_mul_i32 s17, s24, 20480
    s_mul_i32 s20, s16, 26
    s_lshr_b32 s20, s20, 8            ; q
    s_mul_i32 s21, s20, 10
    s_sub_u32 s21, s16, s21           ; cg
    s_mul_i32 s25, s20, {160*1280}
    s_lshl_b32 s26, s21, 7
    s_add_u32 s25, s25, s26
    v_lshrrev_b32 v8, 3, v2
    v_mul_u32_u24 v8, 1280, v8
    v_and_b32 v9, 7, v2
    v_lshl_add_u32 v8, v9, 4, v8""")
    k.waitall()
    srd(k, 12, 6, NB['ws']); srd(k, 28, 18, NB['wo'])
    for i in range(20):
        k(f"s_add_u32 m0, s17, {1024*i}")
        k(f"buffer_load_dwordx4 v8, s[28:31], s25 offen lds")
        k(f"s_add_u32 s25, s25, {8*1280}")
    k("""v_lshrrev_b32 v4, 4, v2
    v_bfe_u32 v5, v2, 2, 2
    v_and_b32 v6, 3, v2
    v_lshlrev_b32 v7, 4, v2""")
    for sp in range(5):
        k(f"""v_add_u32 v9, {4*sp}, v4
        v_mul_u32_u24 v10, 52, v9
        v_lshrrev_b32 v10, 8, v10         ; m'
        v_mul_u32_u24 v10, 20, v10
        v_lshl_add_u32 v10, v9, 2, v10    ; 4 sigma + 20 m' = 40m' + 4u
        v_add_u32 v10, v10, v5
        v_lshlrev_b32 v10, 7, v10
        v_lshl_add_u32 v10, v6, 3, v10
        v_add_u32 v{12+sp}, s17, v10""")
    k.wait_vm(0)
    k(f"""s_mul_i32 s20, s20, {5*5120}
    s_add_u32 s20, s20, {WOP}
    s_lshl_b32 s21, s21, 2""")
    for f in range(4):
        k(f"""s_add_u32 s32, s21, {f}
        s_mul_i32 s33, s32, 52
        s_lshr_b32 s33, s33, 8
        s_mul_i32 s34, s33, 5
        s_sub_u32 s34, s32, s34
        s_mul_i32 s33, s33, {20*5120}
        s_lshl_b32 s34, s34, 10
        s_add_u32 s33, s33, s34
        s_add_u32 s33, s33, s20""")
        for sp in range(5):
            d = 24 + (f % 2) * 20 + sp * 4
            for a_ in range(2):
                k(f"ds_read_b64_tr_b16 v[{d+2*a_}:{d+2*a_+1}], v{12+sp} offset:{a_*2560 + f*32}")
        for sp in range(5):
            d = 24 + (f % 2) * 20 + sp * 4
            k(f"buffer_store_dwordx4 v[{d}:{d+3}], v7, s[12:15], s33 offen sc1")
            if sp < 4: k(f"s_add_u32 s33, s33, 5120")
    k.label(f"L_{nm}_end")
    k("s_endpgm")
    return k, LDS

def gen_k2():
    k = Kern("k2_attn_kernel")
    KL = 0; VL = 30720; RP = 61440; LDS = RP + 7 * 4096
    S = [24, 96]
    QF = 168; KF = 176; T = 192; VF = 60; O = [84, 132]
    stamp(k, 0)
    k(f"""s_cmp_ge_u32 s2, 256
    s_cbranch_scc1 L_k2_end
    s_load_dwordx2 s[6:7], s[0:1], {ARG['ws']}
    s_load_dwordx2 s[18:19], s[0:1], {ARG['wd']}
    s_load_dwordx4 s[8:11], s[0:1], {ARG['wg']}
    s_and_b32 s20, s2, 7
    s_lshl_b32 s21, s20, 1
    s_bfe_u32 s20, s2, 0x10003
    s_add_u32 s21, s21, s20
    s_lshr_b32 s22, s2, 4
    v_lshrrev_b32 v1, 6, v0
    v_and_b32 v2, 63, v0
    v_readfirstlane_b32 s24, v1       ; wave
    v_and_b32 v3, 15, v2              ; i / q
    v_lshrrev_b32 v4, 4, v2           ; g
    v_lshlrev_b32 v7, 4, v2           ; lane*16
    s_lshl_b32 s25, s22, 3
    s_add_u32 s25, s25, s24
    s_mul_i32 s26, s21, 1280
    s_lshl_b32 s27, s22, 3
    s_mul_i32 s28, s24, 3
    s_add_u32 s27, s27, s28
    s_sub_u32 s27, s27, 16
    s_mul_i32 s28, s24, 3840""")
    for t in range(4):
        k(f"""v_add_u32 v12, {64*t}, v2
        v_mul_u32_u24 v13, 820, v12
        v_lshrrev_b32 v13, 16, v13        ; p/80
        v_mul_u32_u24 v14, 80, v13
        v_sub_u32 v14, v12, v14
        v_add_u32 v13, s27, v13
        v_cmp_gt_i32 vcc, 0, v13
        v_mul_i32_i24 v13, 20480, v13
        v_lshl_add_u32 v13, v14, 4, v13
        v_mov_b32 v14, 0x7ffffff0
        v_cndmask_b32 v{8+t}, v13, v14, vcc""")
    k.waitall()
    srd(k, 12, 6, NB['ws'])
    k(f"s_add_u32 s29, s26, {KB}")
    for t in range(4):
        k(f"s_add_u32 m0, s28, {1024*t}")
        if t == 3: k("s_mov_b32 exec_hi, 0x0000ffff")
        k(f"buffer_load_dwordx4 v{8+t}, s[12:15], s29 offen lds")
    k("s_mov_b64 exec, -1")
    k(f"""v_min_u32 v12, 2, v4
    v_lshlrev_b32 v12, 8, v12
    v_lshl_add_u32 v12, v3, 4, v12    ; min(g,2)*256 + i*16
    s_mul_i32 s30, s25, 20480
    s_add_u32 s30, s30, s26
    s_add_u32 s30, s30, {QB}
    buffer_load_dwordx4 v[{QF}:{QF+3}], v12, s[12:15], s30 offen""")
    kid = k(f"buffer_load_dwordx4 v[{QF+4}:{QF+7}], v12, s[12:15], s30 offen offset:512")
    k(f"""s_lshr_b32 s31, s24, 2            ; hb
    s_and_b32 s32, s24, 3
    s_lshl_b32 s33, s21, 1
    s_add_u32 s33, s33, s31           ; head
    s_mul_i32 s33, s33, 81920
    s_add_u32 s33, s33, {VB}
    s_mul_i32 s34, s22, 5120
    s_sub_u32 s34, s34, 10240
    s_lshl_b32 s35, s32, 12
    s_add_u32 s34, s34, s35
    s_mul_i32 s36, s31, 15360
    s_add_u32 s36, s36, s35
    s_add_u32 s36, s36, {VL}
    v_mov_b32 v14, 0x7ffffff0""")
    for t in range(4):
        k(f"""v_add_u32 v13, s34, v7
        v_cmp_gt_i32 vcc, 0, v13
        v_cndmask_b32 v13, v13, v14, vcc
        s_add_u32 m0, s36, {1024*t}""")
        if t == 3:
            k("""s_cmp_eq_u32 s32, 3
            s_cbranch_scc1 L_k2_v3""")
        k(f"buffer_load_dwordx4 v13, s[12:15], s33 offen lds")
        if t < 3: k("s_add_u32 s34, s34, 1024")
    k.label("L_k2_v3")
    k(f"""s_and_b32 s31, s24, 6
    s_mul_i32 s32, s31, 1280
    v_add_u32 v8, s32, v12
    s_mul_i32 s32, s31, 640
    s_add_u32 s32, s32, {VL}
    v_add_u32 v9, s32, v7
    v_and_b32 v11, 3, v3
    v_lshl_add_u32 v11, v4, 2, v11
    v_lshlrev_b32 v11, 4, v11
    v_add_u32 v11, s32, v11
    v_cmp_gt_u32 s[48:49], 4, v3
    v_mov_b32 v18, 0x3f803f80
    v_lshlrev_b32 v13, 2, v4
    s_and_b32 s33, s24, 1             ; parity""")
    MK = {0: 64, 1: 72, 16: 80, 17: 40}
    if PROF: MK = {0: 64, 1: 72, 16: 80, 17: 40}
    for r in range(4):
        k(f"""v_add_u32 v14, {r}, v13
        v_cmp_le_u32 s[50:51], v14, v3
        s_not_b64 s[52:53], s[50:51]
        s_cmp_eq_u32 s33, 0
        s_cselect_b64 s[{MK[0]+2*r}:{MK[0]+2*r+1}], s[52:53], 0
        s_cselect_b64 s[{MK[1]+2*r}:{MK[1]+2*r+1}], -1, s[52:53]
        s_cselect_b64 s[{MK[16]+2*r}:{MK[16]+2*r+1}], s[50:51], -1
        s_cselect_b64 s[{MK[17]+2*r}:{MK[17]+2*r+1}], 0, s[50:51]""")
    k(f"""s_mul_i32 s35, s25, 20480
    s_add_u32 s35, s35, s26
    s_add_u32 s35, s35, {OB}
    v_lshlrev_b32 v15, 8, v4
    v_lshl_add_u32 v15, v3, 4, v15    ; g*256 + q*16
    v_lshlrev_b32 v16, 4, v3
    v_mov_b32 v10, 0x7ffffff0
    v_cmp_gt_u32 vcc, 16, v2
    v_cndmask_b32 v16, v10, v16, vcc
    s_mov_b32 s36, 0x3ea52b5c
    v_mov_b32 v17, 0xf149f2ca
    v_cmp_gt_u32 s[50:51], 2, v4      ; g < 2
    v_cmp_gt_u32 s[52:53], 3, v4      ; g < 3
    v_cmp_ne_u32 s[54:55], 0, v4
    s_and_b64 s[54:55], s[54:55], s[52:53]   ; g in {{1,2}}""")
    k.wait_vm(3)
    for e, mk in ((0, 52), (1, 52), (2, 50), (3, 50), (4, 54), (5, 54), (6, 52), (7, 52)):
        k(f"v_cndmask_b32 v{QF+e}, 0, v{QF+e}, s[{mk}:{mk+1}]")
    k("s_barrier")
    def kread(t, i): return f"ds_read_b128 v[{KF+4*(i%4)}:{KF+4*(i%4)+3}], v8 offset:{i*1280 + t*512}"
    def qk(t):
        out = [kread(t, 0), kread(t, 1), kread(t, 2)]
        for i in range(18):
            if i + 3 < 18: out.append(kread(t, i + 3))
            out.append(f"v_mfma_f32_16x16x32_bf16 v[{S[t]+4*i}:{S[t]+4*i+3}], v[{KF+4*(i%4)}:{KF+4*(i%4)+3}], v[{QF+4*t}:{QF+4*t+3}], 0")
        return out
    def vread(t, c):
        d = VF + (c % 3) * 8
        return [f"ds_read_b128 v[{d}:{d+3}], v9 offset:{t*15360 + c*1280}", f"ds_read_b128 v[{d+4}:{d+7}], v11 offset:{t*15360 + c*1280+1024}"]
    def pv(t):
        out = vread(t, 0) + vread(t, 1)
        for c in range(9):
            d = VF + (c % 3) * 8
            if c + 2 < 9: out += vread(t, c + 2)
            for e in range(4): out.append(f"v_cndmask_b32 v{d+4+e}, v18, v{d+4+e}, s[48:49]")
            for dd in range(2):
                acc = f"v[{O[t]+4*dd}:{O[t]+4*dd+3}]"
                out.append(f"v_mfma_f32_16x16x32_bf16 {acc}, v[{d+4*dd}:{d+4*dd+3}], v[{S[t]+4*c}:{S[t]+4*c+3}], {acc if c else 0}")
        return out
    def fixup(t):
        lab = f"L_k2_fix{t}"
        k._nop(10)
        k(f"""s_cmp_ge_u32 s22, 2
        s_cbranch_scc1 {lab}
        s_and_b32 s37, s25, 0xfffe
        s_sub_u32 s37, 16, s37""")
        for tau in range(16):
            k.raw(f"    s_cmp_le_i32 s37, {tau}\n    s_cbranch_scc1 {lab}")
            for r in range(4): k.raw(f"    v_mov_b32 v{S[t]+4*tau+r}, v17")
        k.label(lab)
        k._nop(2)
    def softmax(t):
        s0 = S[t]; TT = T + 4 * t
        out = [lambda: fixup(t)]
        for ti in (0, 1, 16, 17):
            for r in range(4):
                out.append(f"v_cndmask_b32 v{s0+4*ti+r}, v17, v{s0+4*ti+r}, s[{MK[ti]+2*r}:{MK[ti]+2*r+1}]")
        regs = list(range(s0, s0 + 72))
        for j in range(4):
            out.append(f"v_max_f32 v{TT+j}, v{regs[j*18]}, v{regs[j*18+1]}")
        for i in range(8):
            for j in range(4):
                out.append(f"v_max3_f32 v{TT+j}, v{TT+j}, v{regs[j*18+2+2*i]}, v{regs[j*18+3+2*i]}")
        out += [f"v_max3_f32 v{TT}, v{TT}, v{TT+1}, v{TT+2}", f"v_max_f32 v{TT}, v{TT}, v{TT+3}",
                f"v_mov_b32 v{TT+1}, v{TT}", f"v_permlane16_swap_b32 v{TT}, v{TT+1}", f"v_max_f32 v{TT}, v{TT}, v{TT+1}",
                f"v_mov_b32 v{TT+1}, v{TT}", f"v_permlane32_swap_b32 v{TT}, v{TT+1}", f"v_max_f32 v{TT}, v{TT}, v{TT+1}",
                f"v_mul_f32 v{TT}, s36, v{TT}", f"v_sub_f32 v{TT}, 0, v{TT}"]
        G = 8
        for g0 in range(0, 72, G):
            for i in range(G): out.append(f"v_fma_f32 v{s0+g0+i}, v{s0+g0+i}, s36, v{TT}")
            for i in range(G): out.append(f"v_exp_f32 v{s0+g0+i}, v{s0+g0+i}")
            if g0 >= G:
                for i in range(0, G, 2): out.append(f"v_cvt_pk_bf16_f32 v{s0+(g0-G+i)//2}, v{s0+g0-G+i}, v{s0+g0-G+i+1}")
        for i in range(64, 72, 2): out.append(f"v_cvt_pk_bf16_f32 v{s0+i//2}, v{s0+i}, v{s0+i+1}")
        return out
    FO = 160
    def final(t):
        F = 140 + 10 * t
        out = [f"v_mov_b32 v{F}, v{O[t]+4}", f"v_mov_b32 v{F+1}, v{O[t]+4}",
               f"v_permlane16_swap_b32 v{F}, v{F+1}", f"v_rcp_f32 v{F+1}, v{F+1}"]
        for i in range(8): out.append(f"v_mul_f32 v{F+2+i}, v{O[t]+i}, v{F+1}")
        o = F + 2
        out += [f"v_cvt_pk_bf16_f32 v{FO+2*t}, v{o}, v{o+1}", f"v_cvt_pk_bf16_f32 v{FO+2*t+1}, v{o+2}, v{o+3}",
                f"v_cvt_pk_bf16_f32 v{FO+4+2*t}, v{o+4}, v{o+5}", f"v_cvt_pk_bf16_f32 v{FO+4+2*t+1}, v{o+6}, v{o+7}"]
        return out
    def mix(valu, mf):
        n = len(valu); m = len(mf); j = 0
        for i, v in enumerate(valu):
            if callable(v): v()
            else: k(v)
            while j < m and (j + 1) * n <= (i + 1) * m: k(mf[j]); j += 1
        while j < m: k(mf[j]); j += 1
    for m in qk(0): k(m)
    k.wait_vm(0)
    k("s_barrier")
    k(f"""s_cmp_ge_u32 s24, 4
    s_cbranch_scc1 L_k2_rpB
    s_cmp_ge_u32 s2, 240
    s_cbranch_scc1 L_k2_norp1""")
    srd(k, 28, 8, NB['wg']); srd(k, 4, 10, NB['wu'])
    repackgu_issue(k, 2, 24, RP, 28, 4, 100, 52, 2, 12, RP + 6*4096)
    k("s_branch L_k2_norp1")
    k.label("L_k2_rpB")
    k(f"""s_sub_u32 s16, s24, 4
    s_lshl_b32 s16, s16, 8
    s_add_u32 s16, s16, s2
    s_add_u32 s16, s16, 200
    s_lshl_b32 s17, s24, 12
    s_add_u32 s17, s17, {RP}
    s_cmp_ge_u32 s16, 680
    s_cbranch_scc1 L_k2_norp1""")
    srd(k, 28, 18, NB['wd'])
    rid = repack16_issue(k, 16, 17, 28, 28, 100, 52, 2)
    k.label("L_k2_norp1")
    k._nop(4)
    prefetch_lin(k, 12, WOP, 8*20*5120, 512, 0, 104, 38, dst='v200', full=True)
    mix(softmax(0), qk(1))
    k.wait_vm(1)
    k("s_barrier")
    mix(softmax(1), pv(0))
    mix(final(0), pv(1))
    for v in final(1): k(v)
    k(f"buffer_store_dwordx4 v[{FO}:{FO+3}], v15, s[12:15], s35 offen sc1")
    k(f"buffer_store_dwordx4 v[{FO+4}:{FO+7}], v16, s[12:15], s35 offen offset:1024 sc1")
    k(f"""s_cmp_ge_u32 s24, 4
    s_cbranch_scc1 L_k2_rpB2
    s_cmp_ge_u32 s2, 240
    s_cbranch_scc1 L_k2_norp2
    v_lshrrev_b32 v20, 5, v2
    s_mov_b32 s30, 0xffff0000""")
    repackgu_gs_lds(k, RP + 6*4096, 24, 20)
    repackgu_finish(k, 24, RP, 12, 24, 96, 52, 2, 20, 30)
    k("s_branch L_k2_norp2")
    k.label("L_k2_rpB2")
    k.vmq = []; k.lgq = []; k.pend_vm = {}; k.pend_lg = {}
    k(f"""s_cmp_ge_u32 s16, 680
    s_cbranch_scc1 L_k2_norp2""")
    repack16_finish(k, 16, 17, 12, 24, 52, 2, rid, wd=True)
    k.label("L_k2_norp2")
    stamp_flush(k, 1, wg=41)
    k.label("L_k2_end")
    k("s_endpgm")
    return k, LDS

def gen_gemm16(mode):
    wo = (mode == 'wo')
    nm = 'k3' if wo else 'k5'
    k = Kern("k3_wo_kernel" if wo else "k5_down_kernel")
    NS32 = 20 if wo else 48
    NC = NS32 // 4
    NS = 5 if wo else 7
    LA = 5
    R = 3
    XB = OB if wo else ACT
    WP = WOP if wo else WDP
    SS = 20480
    LDS = NS * SS
    ACC = 40; WF = 64; EX = 148; TMP = 180
    XA = 0; XD = LA + 2
    stamp(k, 0)
    k(f"""s_cmp_ge_u32 s2, 256
    s_cbranch_scc1 L_{nm}_end
    s_load_dwordx2 s[6:7], s[0:1], {ARG['ws']}
    s_load_dwordx2 s[36:37], s[0:1], {ARG['x'] if wo else ARG['out']}
    s_and_b32 s20, s2, 7
    s_lshr_b32 s21, s2, 3
{MAP35}
    v_lshrrev_b32 v1, 6, v0
    v_and_b32 v2, 63, v0
    v_readfirstlane_b32 s24, v1       ; wave
    v_lshlrev_b32 v5, 4, v2           ; lane*16
    v_and_b32 v3, 15, v2              ; tok
    v_lshrrev_b32 v4, 4, v2           ; g
    s_lshl_b32 s31, s22, 2
    s_add_u32 s31, s31, s24           ; T16 owned
    s_mul_i32 s25, s23, {NS32*5120}
    s_mul_i32 s26, s24, 5120
    s_add_u32 s25, s25, s26
    s_add_u32 s25, s25, {WP}
    s_mul_i32 s27, s31, {NS32*1024}
    s_add_u32 s27, s27, {XB}          ; X base
    v_add_u32 v6, 4096, v5""")
    k.waitall()
    srd(k, 12, 6, NB['ws'])
    srd(k, 16, 36, NB['x'])
    dma = {}
    def issue(c):
        out = []
        slot = c % NS
        def fx():
            k(f"s_add_u32 s30, s27, {c*4096}")
            for i in range(4):
                r = XA + (c % XD) * 16 + i * 4
                k(f"buffer_load_dwordx4 a[{r}:{r+3}], v5, s[12:15], s30 offen offset:{1024*i}")
        out.append(fx)
        def fw():
            k(f"s_add_u32 s29, s25, {c*SS}")
            k(f"s_add_u32 m0, s26, {slot*SS}")
            for t in range(4):
                k(f"buffer_load_dwordx4 v5, s[12:15], s29 offen offset:{1024*t} lds")
            k(f"s_add_u32 m0, s26, {slot*SS + 4096}")
            dma[c] = k(f"buffer_load_dwordx4 v6, s[12:15], s29 offen lds")
        out.append(fw)
        return out
    LA0 = 2
    for c in range(LA0):
        for f in issue(c): f()
    goff = MOD + (2 if wo else 5) * 2560
    k(f"""s_mul_i32 s32, s23, 320
    s_add_u32 s32, s32, {goff}
    v_lshlrev_b32 v13, 4, v4          ; g*16
    s_lshr_b32 s33, s31, 1
    s_mul_i32 s33, s33, 40960
    s_mul_i32 s34, s23, 5120
    s_add_u32 s33, s33, s34
    s_add_u32 s33, s33, {X1}          ; X1 soffset
    s_and_b32 s34, s31, 1
    s_lshl_b32 s34, s34, 8
    v_lshl_add_u32 v14, v3, 4, s34    ; tok32*16
    v_lshrrev_b32 v15, 1, v4
    v_lshl_add_u32 v14, v15, 9, v14   ; + h*512
    v_and_b32 v15, 1, v4
    v_lshl_add_u32 v14, v15, 3, v14
    s_mul_i32 s34, s31, {16*1280}
    s_mul_i32 s35, s23, 160
    s_add_u32 s34, s34, s35
    v_mul_u32_u24 v15, 1280, v3
    v_lshl_add_u32 v15, v4, 3, v15
    v_add_u32 v21, 4096, v14
    v_add_u32 v7, {3*SS}, v5
    v_add_u32 v8, {6*SS}, v5""")
    epi_loads = []
    for j in range(5):
        epi_loads.append(f"buffer_load_dwordx4 v[{EX+4*j}:{EX+4*j+3}], v13, s[12:15], s32 offen offset:{64*j}")
        if wo: epi_loads.append(f"buffer_load_dwordx2 v[{EX+20+2*j}:{EX+21+2*j}], v15, s[16:19], s34 offen offset:{32*j}")
        else:  epi_loads.append(f"buffer_load_dwordx2 v[{EX+20+2*j}:{EX+21+2*j}], v14, s[12:15], s33 offen offset:{1024*j}" if j < 4 else
                                f"buffer_load_dwordx2 v[{EX+20+2*j}:{EX+21+2*j}], v21, s[12:15], s33 offen")
    if wo: epi_loads.append(lambda: prefetch_lin(k, 12, WGUP, 48*40960, 256, 0, 30, 40, dst='v34'))
    def reads(s):
        c = s // 4; ks = s % 4; slot = c % NS
        base = (5, 7, 8)[slot // 3]; so = (slot % 3) * SS
        return [f"ds_read_b128 v[{WF+(s%4)*20+j*4}:{WF+(s%4)*20+j*4+3}], v{base} offset:{so + ks*5120 + j*1024}" for j in range(5)]
    stamp(k, 1)
    k.wait_vm_id(dma[0])
    k("s_barrier")
    for q in range(R):
        for t in reads(q): k(t)
    stamp(k, 2)
    pend = issue(2); nxt = 3
    for s in range(NS32):
        if (s + R) % 4 == 0 and (s + R) // 4 < NC:
            cb = (s + R) // 4
            for t in pend:
                if callable(t): t()
                else: k(t)
            pend = []
            k.wait_vm_id(dma[cb])
            k("s_barrier")
            for _ in range(2):
                if nxt < NC and nxt <= cb - 1 + LA:
                    pend = pend + issue(nxt); nxt += 1
            if nxt >= NC and epi_loads and len(pend) <= 2: pend = pend + epi_loads; epi_loads = []
        c = s // 4
        fill = reads(s + R) if s + R < NS32 else []
        n = 1 if len(pend) <= 4 else 4
        fill = fill + pend[:n]; pend = pend[n:]
        mf = []
        for j in range(5):
            w = f"v[{WF+(s%4)*20+j*4}:{WF+(s%4)*20+j*4+3}]"
            xr = XA + (c % XD) * 16 + (s % 4) * 4
            d0 = ACC + j * 4
            mf.append(f"v_mfma_f32_16x16x32_bf16 v[{d0}:{d0+3}], {w}, a[{xr}:{xr+3}], {'v[%d:%d]' % (d0, d0+3) if s else 0}")
        interleave(k, mf, fill)
    for t in pend + epi_loads:
        if callable(t): t()
        else: k(t)
    stamp(k, 3)
    stamp(k, 4)
    k("s_mov_b32 s30, 0xffff0000")
    PK = TMP + 16
    if wo:
        k("v_mov_b32 v26, 0"); k("v_mov_b32 v27, 0")
        k(f"""v_and_b32 v22, 1, v4
        v_lshlrev_b32 v23, 3, v22
        v_sub_u32 v23, v14, v23
        v_lshl_add_u32 v22, v22, 10, v23  ; + (g&1)*1024
        v_add_u32 v23, 4096, v23""")
    else:
        k(f"""v_and_b32 v22, 1, v4
        v_lshlrev_b32 v23, 3, v22
        v_sub_u32 v23, v15, v23           ; tok*1280 + (g>>1)*16
        v_lshl_add_u32 v22, v22, 5, v23   ; + (g&1)*32""")
    for j in range(5):
        a0 = ACC + 4 * j; gq = EX + 4 * j; xr = EX + 20 + 2 * j; T = TMP + 8 * (j % 2); P_ = PK + 2 * j
        k(f"""v_cvt_pk_bf16_f32 v{T}, v{a0}, v{a0+1}
        v_cvt_pk_bf16_f32 v{T+1}, v{a0+2}, v{a0+3}
        v_lshlrev_b32 v{a0}, 16, v{T}
        v_and_b32 v{a0+1}, s30, v{T}
        v_lshlrev_b32 v{a0+2}, 16, v{T+1}
        v_and_b32 v{a0+3}, s30, v{T+1}
        v_mul_f32 v{a0}, v{a0}, v{gq}
        v_mul_f32 v{a0+1}, v{a0+1}, v{gq+1}
        v_mul_f32 v{a0+2}, v{a0+2}, v{gq+2}
        v_mul_f32 v{a0+3}, v{a0+3}, v{gq+3}
        v_cvt_pk_bf16_f32 v{T}, v{a0}, v{a0+1}
        v_cvt_pk_bf16_f32 v{T+1}, v{a0+2}, v{a0+3}
        v_lshlrev_b32 v{a0}, 16, v{T}
        v_and_b32 v{a0+1}, s30, v{T}
        v_lshlrev_b32 v{a0+2}, 16, v{T+1}
        v_and_b32 v{a0+3}, s30, v{T+1}
        v_lshlrev_b32 v{T+2}, 16, v{xr}
        v_and_b32 v{T+3}, s30, v{xr}
        v_lshlrev_b32 v{T+4}, 16, v{xr+1}
        v_and_b32 v{T+5}, s30, v{xr+1}
        v_add_f32 v{a0}, v{a0}, v{T+2}
        v_add_f32 v{a0+1}, v{a0+1}, v{T+3}
        v_add_f32 v{a0+2}, v{a0+2}, v{T+4}
        v_add_f32 v{a0+3}, v{a0+3}, v{T+5}
        v_cvt_pk_bf16_f32 v{P_}, v{a0}, v{a0+1}
        v_cvt_pk_bf16_f32 v{P_+1}, v{a0+2}, v{a0+3}""")
        if wo:
            k(f"""v_lshlrev_b32 v{a0}, 16, v{P_}
            v_and_b32 v{a0+1}, s30, v{P_}
            v_lshlrev_b32 v{a0+2}, 16, v{P_+1}
            v_and_b32 v{a0+3}, s30, v{P_+1}""")
            for e in range(4):
                k(f"v_add_f32 v26, v26, v{a0+e}")
                k(f"v_fmac_f32 v27, v{a0+e}, v{a0+e}")
        if j == 4:
            k(f"v_mov_b32 v{P_+2}, v{P_}"); k(f"v_mov_b32 v{P_+3}, v{P_+1}")
        if j % 2 == 1 or j == 4:
            q = PK + 2 * (j - 1 if j % 2 else j)
            k(f"v_permlane16_swap_b32 v{q}, v{q+2}")
            k(f"v_permlane16_swap_b32 v{q+1}, v{q+3}")
            jj = j - 1 if j % 2 else j
            if wo:
                if j < 4: k(f"buffer_store_dwordx4 v[{q}:{q+3}], v22, s[12:15], s33 offen offset:{1024*jj} sc1")
                else: k(f"buffer_store_dwordx4 v[{q}:{q+3}], v23, s[12:15], s33 offen sc1")
            else:
                k(f"buffer_store_dwordx4 v[{q}:{q+3}], v{22 if j < 4 else 23}, s[16:19], s34 offen offset:{32*jj}")
    if wo:
        for r in (26, 27):
            k(f"""v_mov_b32 v28, v{r}
            v_permlane16_swap_b32 v{r}, v28
            v_add_f32 v{r}, v{r}, v28
            v_mov_b32 v28, v{r}
            v_permlane32_swap_b32 v{r}, v28
            v_add_f32 v{r}, v{r}, v28""")
        k(f"""s_lshl_b32 s38, s31, 10           ; T16*16*64
        s_lshl_b32 s39, s23, 3
        s_add_u32 s38, s38, s39
        s_add_u32 s38, s38, {ST}
        v_lshlrev_b32 v28, 6, v3
        v_mov_b32 v29, 0x7ffffff0
        v_cmp_gt_u32 vcc, 16, v2
        v_cndmask_b32 v28, v29, v28, vcc
        buffer_store_dwordx2 v[26:27], v28, s[12:15], s38 offen""")
    stamp_flush(k, 5)
    k.label(f"L_{nm}_end")
    k("s_endpgm")
    return k, LDS

def gen_k4():
    k = Kern("k4_ffn_kernel")
    NS = 4; SS = 40960; LA = 3
    LDS = NS * SS
    ACC = 32; XF = 80; WF = 92; GWR = 128; SWR = 176; TMP = 224; STT = 24; R = 2
    stamp(k, 0)
    k(f"""s_cmp_ge_u32 s2, 256
    s_cbranch_scc1 L_k4_end
    s_load_dwordx2 s[6:7], s[0:1], {ARG['ws']}
    s_and_b32 s20, s2, 7
    s_lshr_b32 s21, s2, 3
{MAP14}
    v_lshrrev_b32 v1, 6, v0
    v_and_b32 v2, 63, v0
    v_readfirstlane_b32 s24, v1       ; wave
    v_lshrrev_b32 v20, 5, v2          ; h
    v_lshlrev_b32 v5, 4, v2           ; lane*16
    s_and_b32 s25, s24, 3             ; tm
    s_lshr_b32 s26, s24, 2            ; tn
    s_lshr_b32 s27, s24, 1
    s_lshl_b32 s28, s22, 2
    s_add_u32 s27, s27, s28
    s_mul_i32 s27, s27, 40960
    s_and_b32 s28, s24, 1
    s_lshl_b32 s28, s28, 11
    s_add_u32 s27, s27, s28
    s_add_u32 s27, s27, {X1}          ; X src
    s_lshl_b32 s28, s24, 11
    s_mul_i32 s29, s24, 3             ; q0
    s_mul_i32 s30, s23, {6*40960}
    s_add_u32 s30, s30, {WGUP}""")
    for i in range(3):
        k(f"""s_add_u32 s31, s29, {i}
        s_lshr_b32 s32, s31, 2
        s_mul_i32 s32, s32, 40960
        s_and_b32 s31, s31, 3
        s_lshl_b32 s31, s31, 10
        s_add_u32 s32, s32, s31
        s_add_u32 s{40+i}, s32, s30""")
    k(f"""s_lshl_b32 s29, s29, 10
    s_add_u32 s29, s29, 16384""")
    k.waitall()
    srd(k, 12, 6, NB['ws'])
    dma = {}
    def issue(c):
        slot = c % NS
        out = []
        def fx():
            k(f"s_add_u32 m0, s28, {slot*SS}")
            k(f"s_add_u32 s33, s27, {c*4096}")
            k(f"buffer_load_dwordx4 v5, s[12:15], s33 offen lds")
            k(f"buffer_load_dwordx4 v5, s[12:15], s33 offen offset:1024 lds")
        out.append(fx)
        for i in range(3):
            def fw(i=i):
                k(f"s_add_u32 m0, s29, {slot*SS + i*1024}")
                k(f"s_add_u32 s33, s{40+i}, {c*4096}")
                dma[c] = k(f"buffer_load_dwordx4 v5, s[12:15], s33 offen lds")
            out.append(fw)
        for f in out: f.c = c
        return out
    for f in issue(0): f()
    k(f"""v_and_b32 v7, 31, v2
    v_lshlrev_b32 v7, 6, v7
    v_lshl_add_u32 v7, v20, 5, v7
    s_lshl_b32 s34, s22, 2
    s_add_u32 s34, s34, s25           ; T32
    s_lshl_b32 s35, s34, 11
    s_add_u32 s35, s35, {ST}
    buffer_load_dwordx4 v[{TMP}:{TMP+3}], v7, s[12:15], s35 offen
    buffer_load_dwordx4 v[{TMP+4}:{TMP+7}], v7, s[12:15], s35 offen offset:16""")
    for f in issue(1): f()
    k(f"""s_lshl_b32 s35, s25, 12
    v_add_u32 v8, s35, v5
    s_mul_i32 s35, s26, 12288
    s_add_u32 s35, s35, 16384
    v_add_u32 v12, s35, v5""")
    for g in range(1, 4):
        k(f"v_add_u32 v{8+g}, {g*SS}, v8")
        k(f"v_add_u32 v{12+g}, {g*SS}, v12")
    for i in range(48): k(f"v_mov_b32 v{ACC+i}, 0")
    def reads(s):
        c = s // 4; ks = s % 4; slot = c % NS
        out = [f"ds_read_b128 v[{XF+(s%3)*4}:{XF+(s%3)*4+3}], v{8+slot} offset:{ks*1024}"]
        for j in range(3):
            d = WF + (s % 3) * 12 + j * 4
            out.append(f"ds_read_b128 v[{d}:{d+3}], v{12+slot} offset:{j*4096 + ks*1024}")
        return out
    def stats():
        b = TMP
        k(f"""v_add_f32 v{b}, v{b}, v{b+2}
        v_add_f32 v{b+1}, v{b+1}, v{b+3}
        v_add_f32 v{b+4}, v{b+4}, v{b+6}
        v_add_f32 v{b+5}, v{b+5}, v{b+7}
        v_add_f32 v{b}, v{b}, v{b+4}
        v_add_f32 v{b+1}, v{b+1}, v{b+5}
        v_mov_b32 v{b+2}, v{b}
        v_mov_b32 v{b+3}, v{b+1}
        v_permlane32_swap_b32 v{b}, v{b+2}
        v_permlane32_swap_b32 v{b+1}, v{b+3}
        v_add_f32 v{b}, v{b}, v{b+2}
        v_add_f32 v{b+1}, v{b+1}, v{b+3}
        v_mul_f32 v{b}, 0x3acccccd, v{b}
        v_mul_f32 v{b+1}, 0x3acccccd, v{b+1}
        v_fma_f32 v{b+1}, -v{b}, v{b}, v{b+1}
        v_max_f32 v{b+1}, 0, v{b+1}""")
        bf16r(k, b, b); bf16r(k, b + 1, b + 1)
        k(f"v_add_f32 v{b+1}, 0x3727c5ac, v{b+1}")
        bf16r(k, b + 1, b + 1)
        k(f"v_sqrt_f32 v{b+1}, v{b+1}")
        bf16r(k, b + 1, b + 1)
        k(f"v_rcp_f32 v{STT}, v{b+1}")
        k(f"v_sub_f32 v{STT+1}, 0, v{b}")
    stamp(k, 1)
    k.wait_vm_id(dma[0])
    k("s_barrier")
    stamp(k, 2)
    for q in range(R):
        for t in reads(q): k(t)
    pend = issue(2) + issue(3)
    gs_id = None
    for s in range(40):
        if (s + R) % 4 == 0 and (s + R) // 4 <= 10:
            cb = (s + R) // 4
            while cb < 10 and cb not in dma or (cb < 10 and any(getattr(f, 'c', None) == cb for f in pend)):
                f = pend.pop(0); f()
            if cb < 10: k.wait_vm_id(dma[cb])
            if cb == 10: k.wait_vm_id(gs_id)
            k("s_barrier")
            stamp(k, 2 + cb)
            if cb >= 2 and cb - 2 + NS <= 9: pend = pend + issue(cb - 2 + NS)
            if cb == 9:
                pend = pend + [stats]
            if cb == 8:
                def fg():
                    nonlocal gs_id
                    k(f"""s_and_b32 s33, s24, 1
                    s_mul_i32 s35, s33, 12288
                    s_lshl_b32 s33, s33, 10
                    s_add_u32 m0, s33, {2*SS}
                    s_mul_i32 s33, s23, 768
                    s_add_u32 s33, s33, s35
                    s_add_u32 s33, s33, {GSUM}""")
                    gs_id = k(f"buffer_load_dwordx4 v5, s[12:15], s33 offen lds")
                pend = pend + [fg, lambda: prefetch_lin(k, 12, WDP, 8*48*5120, 512, 0, 26, 36, dst='v30', full=True)]
        fill = reads(s + R) if s + R < 40 else []
        if s >= 38:
            if s == 38:
                k(f"""s_mul_i32 s33, s26, 384
                s_add_u32 s33, s33, {2*SS}
                v_lshlrev_b32 v16, 4, v20
                v_add_u32 v16, s33, v16""")
            for a in (2 * (s - 38), 2 * (s - 38) + 1):
                for j in range(3):
                    fill.append(f"ds_read_b128 v[{GWR+16*j+4*a}:{GWR+16*j+4*a+3}], v16 offset:{j*128 + a*32}")
                    fill.append(f"ds_read_b128 v[{SWR+16*j+4*a}:{SWR+16*j+4*a+3}], v16 offset:{1024 + j*128 + a*32}")
        n = min(len(pend), 2)
        fill = fill + pend[:n]; pend = pend[n:]
        mf = []
        for j in range(3):
            w = f"v[{WF+(s%3)*12+j*4}:{WF+(s%3)*12+j*4+3}]"; x = f"v[{XF+(s%3)*4}:{XF+(s%3)*4+3}]"
            d = f"v[{ACC+16*j}:{ACC+16*j+15}]"
            mf.append(f"v_mfma_f32_32x32x16_bf16 {d}, {w}, {x}, {d}")
        interleave(k, mf, fill)
    k(f"""s_mul_i32 s31, s23, 6
    s_mul_i32 s32, s26, 3
    s_add_u32 s31, s31, s32           ; b16 base
    s_mul_i32 s32, s34, {2*48*1024}
    s_add_u32 s29, s32, {ACT}
    v_bfe_u32 v3, v2, 4, 1
    v_mul_u32_u24 v4, {48*1024}, v3
    v_and_b32 v3, 15, v2
    v_lshl_add_u32 v4, v3, 4, v4
    v_lshl_add_u32 v4, v20, 8, v4
    s_mov_b32 s35, 0xbfb8aa3b""")
    for j in range(3):
        k(f"""s_add_u32 s32, s31, {j}
        s_lshl_b32 s33, s32, 9            ; b16*512 = s32*1024 + (b16&1)*512
        s_add_u32 s33, s33, s29""")
        r = ACC + 16 * j; gw = GWR + 16 * j; sw = SWR + 16 * j
        T = TMP + 8 * (j % 2); O = TMP + 16 + 4 * j
        for e in range(16): k(f"v_fmac_f32 v{r+e}, v{gw+e}, v{STT+1}")
        for e in range(16): k(f"v_fmac_f32 v{sw+e}, v{r+e}, v{STT}")
        for e in range(8): k(f"v_mul_f32 v{T+e}, s35, v{sw+e}")
        for e in range(8): k(f"v_exp_f32 v{T+e}, v{T+e}")
        for e in range(8): k(f"v_add_f32 v{T+e}, 1.0, v{T+e}")
        for e in range(8): k(f"v_rcp_f32 v{T+e}, v{T+e}")
        for e in range(8): k(f"v_mul_f32 v{sw+e}, v{sw+e}, v{sw+8+e}")
        for e in range(8): k(f"v_mul_f32 v{sw+e}, v{sw+e}, v{T+e}")
        for e in range(4): k(f"v_cvt_pk_bf16_f32 v{O+e}, v{sw+2*e}, v{sw+2*e+1}")
        k(f"buffer_store_dwordx4 v[{O}:{O+3}], v4, s[12:15], s33 offen sc1")
    stamp_flush(k, 13)
    k.label("L_k4_end")
    k("s_endpgm")
    return k, LDS

def all_kernels():
    k0 = gen_k0()
    k1, l1 = gen_gemm32('qkv')
    k2, l2 = gen_k2()
    k3, l3 = gen_gemm16('wo')
    k4, l4 = gen_k4()
    k5, l5 = gen_gemm16('down')
    return [(k0, 256, 256, 4096), (k1, 256, 512, l1), (k2, 256, 512, l2), (k3, 256, 256, l3), (k4, 256, 512, l4), (k5, 256, 256, l5)]

if __name__ == "__main__":
    if len(sys.argv) > 1 and sys.argv[1] == "prof": PROF = True
    for e in sys.argv[2:]: EXP.add(e)
    open("cur" + "_".join([""] + sys.argv[2:]) + ".s", "w").write(build_file(all_kernels()))
```

```python
import sys
sys.path.insert(0, "work")
from asmlib import *

MOD = 0
XN = 0x10000
QB = 0x290000
KB0 = 0x520000; KB = KB0 + 16384
VB0 = KB + 0x280000; VB = VB0 + 16384
OB = 0xA40000
X1 = 0xCC0000
ST = 0xF40000
ACT = 0xF60000
WOP = 0x1560000
WDP = 0x1630000
WGUP = 0x1810000
GSUM = 0x1BD0000
WS_END = 0x1BE0000

ARG = dict(x=0, wqkv=8, wo=16, bx=24, wg=32, wu=40, wd=48, c=56, wmod=64, out=72, dbg=80, ws=88)
NB = dict(x=2048*640*2, wqkv=640*1920*2, wo=640*640*2, wg=640*1536*2, wu=640*1536*2, wd=1536*640*2, c=1280, wmod=640*3840*2, out=2048*640*2, ws=WS_END)

def srd(k, sd, sb, nbytes):
    k(f"""s_mov_b32 s{sd}, s{sb}
    s_and_b32 s{sd+1}, s{sb+1}, 0xffff
    s_mov_b32 s{sd+2}, {nbytes}
    s_mov_b32 s{sd+3}, 0x00020000""")

def bf16r(k, dst, src):
    k(f"v_cvt_pk_bf16_f32 v{dst}, v{src}, v{src}")
    k(f"v_and_b32 v{dst}, 0xffff0000, v{dst}")

def row16_sum(k, v):
    for r in (8, 4, 2, 1):
        k(f"v_add_f32_dpp v{v}, v{v}, v{v} row_ror:{r} row_mask:0xf bank_mask:0xf")

PROF = False
M8 = False
MAPS = {True: ("""    s_lshl_b32 s22, s20, 1
    s_and_b32 s23, s21, 1
    s_add_u32 s22, s22, s23           ; mb
    s_lshr_b32 s23, s21, 1            ; nb""", """    s_lshl_b32 s22, s20, 2
    s_and_b32 s23, s21, 3
    s_add_u32 s22, s22, s23           ; mb
    s_lshr_b32 s23, s21, 2            ; nb""", """    s_mov_b32 s22, s20                ; qb"""), False: ("""    s_and_b32 s22, s20, 3
    s_lshl_b32 s22, s22, 2
    s_and_b32 s23, s21, 3
    s_add_u32 s22, s22, s23           ; mb
    s_lshr_b32 s23, s20, 2
    s_lshl_b32 s23, s23, 3
    s_lshr_b32 s21, s21, 2
    s_add_u32 s23, s23, s21           ; nb""", """    s_and_b32 s22, s20, 3
    s_lshl_b32 s22, s22, 3
    s_and_b32 s23, s21, 7
    s_add_u32 s22, s22, s23           ; mb
    s_lshr_b32 s23, s20, 2
    s_lshl_b32 s23, s23, 2
    s_lshr_b32 s21, s21, 3
    s_add_u32 s23, s23, s21           ; nb""", """    s_and_b32 s22, s20, 3
    s_lshl_b32 s22, s22, 1
    s_lshr_b32 s20, s20, 2
    s_add_u32 s22, s22, s20           ; qb""")}
MAP14, MAP35, MAP2 = MAPS[M8]
MAP35 = MAPS[True][1]
EXP = set()
PROFOFF = 0x1C00000
KIDX = {}
def stamp(k, i):
    if PROF:
        if i == 0: k.raw(f"    s_memrealtime s[92:93]")
        k.raw(f"    s_memtime s[{60+2*i}:{61+2*i}]")
        k.maxs = max(k.maxs, 100)
def stamp_flush(k, n, wg=8, tid=0, base=0):
    if PROF:
        lab = f"L_prof_{k.name}_{len(k.lines)}"
        k.raw(f"    s_waitcnt vmcnt(0) lgkmcnt(0)")
        stamp(k, n)
        kidx = KIDX.setdefault(k.name, len(KIDX))
        k.raw(f"""    s_memrealtime s[90:91]
    s_load_dwordx2 s[96:97], s[0:1], {ARG['ws']}
    s_waitcnt lgkmcnt(0)
    v_cmp_eq_u32 vcc, {tid}, v0
    s_and_saveexec_b64 s[98:99], vcc
    s_cbranch_execz {lab}
    s_lshl_b32 s95, s2, 4
    s_add_u32 s95, s95, {PROFOFF + kidx * 8192 + (8 if base else 0)}
    v_mov_b32 v1, s95
    v_mov_b32 v2, s92
    v_mov_b32 v3, s90
    global_store_dwordx2 v1, v[2:3], s[96:97]
    s_cmp_lg_u32 s2, {wg}
    s_cbranch_scc1 {lab}
    s_load_dwordx2 s[96:97], s[0:1], {ARG['dbg']}
    s_waitcnt lgkmcnt(0)
    v_mov_b32 v1, 0""")
        for i in range(n + 1):
            k.raw(f"    s_sub_u32 s95, s{60+2*i}, s60\n    v_mov_b32 v2, s95\n    global_store_dword v1, v2, s[96:97] offset:{4*i+base}")
        k.raw(f"{lab}:")

def prefetch(k, sr, nthreads, tidreg, pitch, rows, lines_per_row, half_bytes, vt, st, mall=False, tid_off=0, dst=None):
    if 'nopf' in EXP: return
    ngroups = 128 if mall else 32
    rows_per = rows // ngroups
    nl = rows_per * lines_per_row
    k(f"s_lshr_b32 s{st}, s2, 3")
    if mall:
        k(f"""s_lshl_b32 s{st}, s{st}, 2
        s_and_b32 s{st+1}, s2, 3
        s_add_u32 s{st}, s{st}, s{st+1}""")
    k(f"""s_mul_i32 s{st}, s{st}, {rows_per*pitch}
    s_bfe_u32 s{st+1}, s2, 0x10002
    s_mul_i32 s{st+1}, s{st+1}, {half_bytes}
    s_add_u32 s{st}, s{st}, s{st+1}""")
    magic = (65536 + lines_per_row - 1) // lines_per_row
    for base in range(0, nl, nthreads):
        assert all(((p * magic) >> 16) == p // lines_per_row for p in range(base + nthreads))
        k(f"""v_add_u32 v{vt}, {base - tid_off}, v{tidreg}
        v_mul_u32_u24 v{vt+1}, {magic}, v{vt}
        v_lshrrev_b32 v{vt+1}, 16, v{vt+1}
        v_mul_u32_u24 v{vt+2}, {lines_per_row}, v{vt+1}
        v_sub_u32 v{vt+2}, v{vt}, v{vt+2}
        v_mul_u32_u24 v{vt+1}, {pitch}, v{vt+1}
        v_lshl_add_u32 v{vt+1}, v{vt+2}, 7, v{vt+1}
        v_cmp_gt_u32 vcc, {nl}, v{vt}
        v_mov_b32 v{vt+2}, 0x7ffffff0
        v_cndmask_b32 v{vt+1}, v{vt+2}, v{vt+1}, vcc
        buffer_load_dword {dst or 'v%d' % (vt+3)}, v{vt+1}, s[{sr}:{sr+3}], s{st} offen""")
        for r_ in regs_of(dst or 'v%d' % (vt+3)): k.pend_vm.pop(r_, None)

def prefetch_lin(k, sr_ws, base, half_bytes, nthreads, tidreg, vt, st, tid_off=0, dst=None, full=False):
    if 'nopf' in EXP: return
    per = half_bytes // 32
    nl = per // 128
    k(f"""s_lshr_b32 s{st}, s2, 3
    s_mul_i32 s{st}, s{st}, {per}
    s_bfe_u32 s{st+1}, s2, 0x10002
    s_mul_i32 s{st+1}, s{st+1}, {0 if full else half_bytes}
    s_add_u32 s{st}, s{st}, s{st+1}
    s_add_u32 s{st}, s{st}, {base}""")
    for b0 in range(0, nl, nthreads):
        k(f"""v_add_u32 v{vt}, {b0 - tid_off}, v{tidreg}
        v_lshlrev_b32 v{vt+1}, 7, v{vt}
        v_cmp_gt_u32 vcc, {nl}, v{vt}
        v_mov_b32 v{vt+2}, 0x7ffffff0
        v_cndmask_b32 v{vt+1}, v{vt+2}, v{vt+1}, vcc
        buffer_load_dword {dst or 'v%d' % (vt+3)}, v{vt+1}, s[{sr_ws}:{sr_ws+3}], s{st} offen""")
        for r_ in regs_of(dst or 'v%d' % (vt+3)): k.pend_vm.pop(r_, None)

def k0_prefetch(k):
    if M8: prefetch(k, 44, 256, 0, 3840, 640, 30, 0, 100, 48)
    else: prefetch(k, 44, 256, 0, 3840, 640, 16, 2048, 100, 48)

def gen_k0():
    k = Kern("k0_prep_kernel")
    stamp(k, 0)
    k(f"""s_cmp_ge_u32 s2, 256
    s_cbranch_scc1 L_k0_end
    s_load_dwordx2 s[4:5], s[0:1], {ARG['x']}
    s_load_dwordx4 s[8:11], s[0:1], {ARG['c']}
    s_load_dwordx2 s[12:13], s[0:1], {ARG['ws']}
    s_load_dwordx2 s[40:41], s[0:1], {ARG['wqkv']}""")
    k.waitall()
    srd(k, 16, 12, NB['ws'])
    srd(k, 44, 40, NB['wqkv'])
    k("""s_cmp_ge_u32 s2, 248
    s_cbranch_scc1 L_k0_zero
    s_cmp_ge_u32 s2, 128
    s_cbranch_scc1 L_k0_gemv""")
    srd(k, 20, 4, NB['x'])
    k("""s_and_b32 s3, s2, 3
    s_lshl_b32 s3, s3, 5
    s_bfe_u32 s14, s2, 0x10002
    s_lshl_b32 s14, s14, 4
    s_add_u32 s3, s3, s14
    s_lshr_b32 s14, s2, 3
    s_add_u32 s3, s3, s14
    s_lshl_b32 s3, s3, 4
    v_lshrrev_b32 v1, 4, v0
    v_add_u32 v1, s3, v1            ; row
    v_and_b32 v2, 15, v0            ; c
    v_mul_u32_u24 v3, 1280, v1
    v_lshl_add_u32 v3, v2, 4, v3""")
    for i in range(5):
        k(f"buffer_load_dwordx4 v[{8+4*i}:{11+4*i}], v3, s[20:23], 0 offen offset:{256*i}")
    k0_prefetch(k)
    for i in range(20):
        k(f"v_lshlrev_b32 v{32+2*i}, 16, v{8+i}")
        k(f"v_and_b32 v{33+2*i}, 0xffff0000, v{8+i}")
    k("v_add_f32 v4, v32, v33")
    for i in range(2, 40):
        k(f"v_add_f32 v4, v4, v{32+i}")
    row16_sum(k, 4)
    k("v_mul_f32 v4, 0x3acccccd, v4")
    k("v_mov_b32 v5, 0")
    for i in range(40):
        k(f"v_sub_f32 v6, v{32+i}, v4")
        k(f"v_fmac_f32 v5, v6, v6")
    row16_sum(k, 5)
    k("v_mul_f32 v5, 0x3acccccd, v5")
    bf16r(k, 4, 4)
    bf16r(k, 5, 5)
    k("v_add_f32 v5, 0x3727c5ac, v5")
    bf16r(k, 5, 5)
    k("v_sqrt_f32 v5, v5")
    bf16r(k, 5, 5)
    k("v_rcp_f32 v5, v5")
    for i in range(20):
        k(f"v_sub_f32 v{32+2*i}, v{32+2*i}, v4")
        k(f"v_sub_f32 v{33+2*i}, v{33+2*i}, v4")
        k(f"v_cvt_pk_bf16_f32 v6, v{32+2*i}, v{33+2*i}")
        k(f"v_lshlrev_b32 v{32+2*i}, 16, v6")
        k(f"v_and_b32 v{33+2*i}, 0xffff0000, v6")
        k(f"v_mul_f32 v{32+2*i}, v{32+2*i}, v5")
        k(f"v_mul_f32 v{33+2*i}, v{33+2*i}, v5")
        k(f"v_cvt_pk_bf16_f32 v6, v{32+2*i}, v{33+2*i}")
        k(f"v_lshlrev_b32 v{32+2*i}, 16, v6")
        k(f"v_and_b32 v{33+2*i}, 0xffff0000, v6")
        k(f"v_cvt_pkrtz_f16_f32 v{8+i}, v{32+2*i}, v{33+2*i}")
    k(f"""v_lshrrev_b32 v6, 5, v1          ; T32
    v_mul_u32_u24 v6, 40960, v6
    v_lshrrev_b32 v7, 1, v2          ; c>>1
    v_lshl_add_u32 v6, v7, 10, v6
    v_and_b32 v7, 1, v2
    v_lshl_add_u32 v6, v7, 9, v6
    v_and_b32 v7, 31, v1
    v_lshl_add_u32 v6, v7, 4, v6""")
    for i in range(5):
        k(f"s_mov_b32 s3, {XN + i*8192}")
        k(f"buffer_store_dwordx4 v[{8+4*i}:{11+4*i}], v6, s[16:19], s3 offen sc1")
    stamp_flush(k, 1)
    k("s_endpgm")
    k.label("L_k0_zero")
    k0_prefetch(k)
    if 'notlb' not in EXP:
        k(f"""v_lshlrev_b32 v90, 17, v0
        buffer_load_dword v91, v90, s[16:19], 0 offen
        s_load_dwordx2 s[52:53], s[0:1], {ARG['wo']}
        s_load_dwordx4 s[56:59], s[0:1], {ARG['wg']}
        s_load_dwordx2 s[60:61], s[0:1], {ARG['wd']}
        s_load_dwordx2 s[62:63], s[0:1], {ARG['out']}""")
        k.wait_lg(0)
        for i, (sp, nb_) in enumerate(((52, 'wo'), (56, 'wg'), (58, 'wu'), (60, 'wd'), (62, 'out'))):
            srd(k, 64, sp, NB[nb_])
            k(f"buffer_load_dword v{92+i}, v90, s[64:67], 0 offen")
    k(f"""s_cmp_ge_u32 s2, 253
    s_cbranch_scc1 L_k0_end
    s_sub_u32 s3, s2, 248
    s_mul_i32 s3, s3, {VB0 - KB0}
    s_add_u32 s3, s3, {KB0}
    s_sub_u32 s14, s2, 250
    s_lshl_b32 s14, s14, 14
    s_add_u32 s14, s14, {GSUM}
    s_cmp_ge_u32 s2, 250
    s_cselect_b32 s3, s14, s3
    v_lshlrev_b32 v1, 4, v0
    v_mov_b32 v4, 0
    v_mov_b32 v5, 0
    v_mov_b32 v6, 0
    v_mov_b32 v7, 0""")
    for i in range(4):
        k(f"buffer_store_dwordx4 v[4:7], v1, s[16:19], s3 offen sc1")
        k(f"s_add_u32 s3, s3, 4096")
    k("s_endpgm")
    k.label("L_k0_gemv")
    srd(k, 20, 10, NB['wmod'])
    srd(k, 24, 8, NB['c'])
    k("""s_sub_u32 s3, s2, 128           ; j
    s_lshl_b32 s14, s3, 6
    v_lshrrev_b32 v1, 2, v0           ; r
    v_and_b32 v2, 3, v0               ; cc
    v_mul_u32_u24 v3, 7680, v1
    v_lshl_add_u32 v3, v2, 4, v3
    v_lshlrev_b32 v4, 1, v1""")
    for i in range(10):
        k(f"buffer_load_ushort v{50+i}, v4, s[24:27], 0 offen offset:{128*i}")
    for i in range(10):
        k(f"buffer_load_dwordx4 v[{8+4*i}:{11+4*i}], v3, s[20:23], s14 offen")
        if i < 9: k(f"s_add_u32 s14, s14, {64*7680}")
    k0_prefetch(k)
    for i in range(10):
        c = 50 + i
        k(f"""v_lshlrev_b32 v{c}, 16, v{c}
        v_mul_f32 v5, 0xbfb8aa3b, v{c}
        v_exp_f32 v5, v5
        v_add_f32 v5, 1.0, v5
        v_rcp_f32 v5, v5
        v_mul_f32 v{c}, v{c}, v5""")
        bf16r(k, c, c)
    for j in range(8):
        k(f"v_mov_b32 v{60+j}, 0")
    for i in range(10):
        for d in range(4):
            k(f"v_lshlrev_b32 v5, 16, v{8+4*i+d}")
            k(f"v_and_b32 v6, 0xffff0000, v{8+4*i+d}")
            k(f"v_fmac_f32 v{60+2*d}, v5, v{50+i}")
            k(f"v_fmac_f32 v{61+2*d}, v6, v{50+i}")
    for j in range(8):
        for r in (8, 4):
            k(f"v_add_f32_dpp v{60+j}, v{60+j}, v{60+j} row_ror:{r} row_mask:0xf bank_mask:0xf")
    k("""v_lshrrev_b32 v5, 4, v0
    v_lshlrev_b32 v5, 7, v5
    v_lshl_add_u32 v5, v2, 5, v5
    v_and_b32 v6, 15, v0
    v_cmp_gt_u32 vcc, 4, v6
    s_and_saveexec_b64 s[28:29], vcc
    ds_write_b128 v5, v[60:63]
    ds_write_b128 v5, v[64:67] offset:16
    s_mov_b64 exec, s[28:29]""")
    k.waitall()
    k("s_barrier")
    k("""v_cmp_gt_u32 vcc, 32, v0
    s_and_saveexec_b64 s[28:29], vcc
    s_cbranch_execz L_k0_end
    v_lshlrev_b32 v5, 2, v0""")
    for i in range(16):
        k(f"ds_read_b32 v{8+i}, v5 offset:{128*i}")
    for i in range(1, 16):
        k(f"v_add_f32 v8, v8, v{8+i}")
    bf16r(k, 8, 8)
    k("""s_mul_i32 s14, s3, 205
    s_lshr_b32 s14, s14, 12           ; j/20
    s_cmp_eq_u32 s14, 1
    s_cselect_b32 s15, 1, 0
    s_cmp_eq_u32 s14, 4
    s_cselect_b32 s15, 1, s15
    s_cmp_eq_u32 s15, 0
    s_cbranch_scc1 L_k0_st""")
    k("v_add_f32 v8, 1.0, v8")
    bf16r(k, 8, 8)
    k.label("L_k0_st")
    k(f"""s_lshl_b32 s14, s3, 7
    s_add_u32 s14, s14, {MOD}
    buffer_store_dword v8, v5, s[16:19], s14 offen""")
    stamp_flush(k, 1, wg=130)
    k.label("L_k0_end")
    k("s_endpgm")
    return k

def interleave(k, mf, fill):
    n = len(mf)
    per = [len(fill) * (i + 1) // n - len(fill) * i // n for i in range(n)]
    j = 0
    for i, m in enumerate(mf):
        k(m)
        for _ in range(per[i]):
            f = fill[j]; j += 1
            if callable(f): f()
            else: k(f)


def repack16_issue(k, su, slds, sr_wo, sr_wd, v0, s0, lane):
    k(f"""s_cmp_lt_u32 s{su}, 200
    s_cselect_b32 s{s0+4}, s{sr_wo}, s{sr_wd}
    s_cselect_b32 s{s0+5}, s{sr_wo+1}, s{sr_wd+1}
    s_cselect_b32 s{s0+6}, s{sr_wo+2}, s{sr_wd+2}
    s_mov_b32 s{s0+7}, 0x00020000
    s_cselect_b32 s{s0}, 0, 200
    s_sub_u32 s{s0}, s{su}, s{s0}        ; u'
    s_mul_i32 s{s0+1}, s{s0}, 6554
    s_lshr_b32 s{s0+1}, s{s0+1}, 16      ; s32 = u'/10
    s_mul_i32 s{s0+2}, s{s0+1}, 10
    s_sub_u32 s{s0+2}, s{s0}, s{s0+2}    ; cg
    s_mul_i32 s{s0}, s{s0+1}, {32*1280}
    s_lshl_b32 s{s0+3}, s{s0+2}, 7
    s_add_u32 s{s0}, s{s0}, s{s0+3}
    v_lshrrev_b32 v{v0}, 3, v{lane}
    v_mul_u32_u24 v{v0}, 1280, v{v0}
    v_and_b32 v{v0+1}, 7, v{lane}
    v_lshl_add_u32 v{v0}, v{v0+1}, 4, v{v0}""")
    for i in range(4):
        k(f"s_add_u32 m0, s{slds}, {1024*i}")
        last = k(f"buffer_load_dwordx4 v{v0}, s[{s0+4}:{s0+7}], s{s0} offen lds")
        if i < 3: k(f"s_add_u32 s{s0}, s{s0}, {8*1280}")
    return last

def repack16_finish(k, su, slds, sr_ws, v0, s0, lane, dma_id, wd=False):
    if wd:
        k(f"""v_lshrrev_b32 v{v0}, 5, v{lane}
        v_lshlrev_b32 v{v0}, 2, v{v0}
        v_bfe_u32 v{v0+1}, v{lane}, 4, 1
        v_add_u32 v{v0}, v{v0}, v{v0+1}          ; 4(g>>1) + (g&1)""")
    else:
        k(f"v_lshrrev_b32 v{v0}, 4, v{lane}        ; g")
    k(f"""v_bfe_u32 v{v0+1}, v{lane}, 2, 2          ; r
    v_lshl_add_u32 v{v0}, v{v0}, 2, v{v0+1}
    v_lshlrev_b32 v{v0}, 7, v{v0}
    v_and_b32 v{v0+1}, 3, v{lane}
    v_lshl_add_u32 v{v0}, v{v0+1}, 3, v{v0}
    v_add_u32 v{v0}, s{slds}, v{v0}
    v_lshlrev_b32 v{v0+1}, 4, v{lane}""")
    k.wait_vm_id(dma_id)
    for f in range(4):
        for a in range(2):
            d = v0 + 4 + 4 * f + 2 * a
            k(f"ds_read_b64_tr_b16 v[{d}:{d+1}], v{v0} offset:{a*(1024 if wd else 2048) + f*32}")
    k(f"""s_cmp_lt_u32 s{su}, 200
    s_cselect_b32 s{s0}, {20*5120}, 0
    s_cselect_b32 s{s0+3}, 0, {48*5120}
    s_add_u32 s{s0}, s{s0}, s{s0+3}
    s_cselect_b32 s{s0+3}, 0, {WDP-WOP}
    s_cmp_lt_u32 s{su}, 200
    s_cselect_b32 s{s0+3}, 0, {WDP-WOP}
    s_add_u32 s{s0+3}, s{s0+3}, {WOP}
    s_mul_i32 s{s0+1}, s{s0+1}, 5120
    s_add_u32 s{s0+3}, s{s0+3}, s{s0+1}      ; base + s32*5120
    s_lshl_b32 s{s0+2}, s{s0+2}, 2           ; ft0""")
    for f in range(4):
        k(f"""s_add_u32 s{s0+4}, s{s0+2}, {f}
        s_mul_i32 s{s0+5}, s{s0+4}, 52
        s_lshr_b32 s{s0+5}, s{s0+5}, 8
        s_mul_i32 s{s0+6}, s{s0+5}, 5
        s_sub_u32 s{s0+6}, s{s0+4}, s{s0+6}      ; j
        s_mul_i32 s{s0+5}, s{s0+5}, s{s0}
        s_lshl_b32 s{s0+6}, s{s0+6}, 10
        s_add_u32 s{s0+5}, s{s0+5}, s{s0+6}
        s_add_u32 s{s0+5}, s{s0+5}, s{s0+3}
        buffer_store_dwordx4 v[{v0+4+4*f}:{v0+7+4*f}], v{v0+1}, s[{sr_ws}:{sr_ws+3}], s{s0+5} offen sc1""")

def repackgu_issue(k, su, spw, scr, sr_g, sr_u, v0, s0, lane, sr_ws, gsl):
    k(f"""s_mul_i32 s{s0+1}, s{su}, 2731
    s_lshr_b32 s{s0+1}, s{s0+1}, 16      ; c64 = u/24
    s_mul_i32 s{s0+2}, s{s0+1}, 24
    s_sub_u32 s{s0+2}, s{su}, s{s0+2}    ; cg
    s_lshl_b32 s{s0}, s{s0+1}, 2
    s_add_u32 s{s0}, s{s0}, s{spw}
    s_mul_i32 s{s0}, s{s0}, {16*3072}
    s_lshl_b32 s{s0+3}, s{s0+2}, 7
    s_add_u32 s{s0}, s{s0}, s{s0+3}
    s_add_u32 s{s0+3}, s{s0}, {8*3072}
    s_lshl_b32 s{s0+4}, s{spw}, 12
    v_lshrrev_b32 v{v0}, 3, v{lane}
    v_mul_u32_u24 v{v0}, 3072, v{v0}
    v_and_b32 v{v0+1}, 7, v{lane}
    v_lshl_add_u32 v{v0}, v{v0+1}, 4, v{v0}""")
    for i, (sr, so) in enumerate(((sr_g, s0), (sr_g, s0 + 3), (sr_u, s0), (sr_u, s0 + 3))):
        k(f"s_add_u32 m0, s{s0+4}, {scr + 1024*i}")
        last = k(f"buffer_load_dwordx4 v{v0}, s[{sr}:{sr+3}], s{so} offen lds")
    k(f"""v_and_b32 v{v0}, 15, v{lane}
    v_lshlrev_b32 v{v0}, 4, v{v0}
    v_bfe_u32 v{v0+1}, v{lane}, 4, 1
    v_mul_u32_u24 v{v0+1}, 2560, v{v0+1}
    v_add_u32 v{v0}, v{v0}, v{v0+1}
    s_lshl_b32 s{s0+4}, s{s0+1}, 8
    s_add_u32 s{s0+4}, s{s0+4}, {MOD + 3*2560}
    s_mov_b32 m0, {gsl}""")
    last = k(f"buffer_load_dwordx4 v{v0}, s[{sr_ws}:{sr_ws+3}], s{s0+4} offen lds")
    return last

def repackgu_gs_lds(k, gsl, v0, hreg):
    k(f"""v_lshlrev_b32 v{v0+1}, 5, v{hreg}
    v_add_u32 v{v0+1}, {gsl}, v{v0+1}""")
    for q in range(4):
        b = v0 + 8 + 16 * q
        k(f"""ds_read_b128 v[{b}:{b+3}], v{v0+1} offset:{256 + 64*q}
        ds_read_b128 v[{b+4}:{b+7}], v{v0+1} offset:{256 + 64*q+16}
        ds_read_b128 v[{b+8}:{b+11}], v{v0+1} offset:{64*q}
        ds_read_b128 v[{b+12}:{b+15}], v{v0+1} offset:{64*q+16}""")

def repackgu_gs(k, sr_ws, v0, s0, hreg):
    k(f"""v_lshlrev_b32 v{v0+1}, 5, v{hreg}
    s_lshl_b32 s{s0+4}, s{s0+1}, 8
    s_add_u32 s{s0+5}, s{s0+4}, {MOD + 4*2560}
    s_add_u32 s{s0+4}, s{s0+4}, {MOD + 3*2560}""")
    for q in range(4):
        b = v0 + 8 + 16 * q
        k(f"""buffer_load_dwordx4 v[{b}:{b+3}], v{v0+1}, s[{sr_ws}:{sr_ws+3}], s{s0+5} offen offset:{64*q}
        buffer_load_dwordx4 v[{b+4}:{b+7}], v{v0+1}, s[{sr_ws}:{sr_ws+3}], s{s0+5} offen offset:{64*q+16}
        buffer_load_dwordx4 v[{b+8}:{b+11}], v{v0+1}, s[{sr_ws}:{sr_ws+3}], s{s0+4} offen offset:{64*q}
        buffer_load_dwordx4 v[{b+12}:{b+15}], v{v0+1}, s[{sr_ws}:{sr_ws+3}], s{s0+4} offen offset:{64*q+16}""")

def repackgu_finish(k, spw, scr, sr_ws, v0, w0, s0, lane, hreg, smask):
    ON = w0 + 4; WR = w0 + 8; T = w0 + 24; D1 = w0 + 32; D2 = w0 + 48; WO_ = w0 + 64; SP = v0
    k(f"""v_bfe_u32 v{w0+1}, v{lane}, 2, 2          ; r
    v_lshl_add_u32 v{w0}, v{hreg}, 3, v{w0+1}
    v_lshlrev_b32 v{w0}, 7, v{w0}
    v_bfe_u32 v{w0+1}, v{lane}, 4, 1          ; fh
    v_lshl_add_u32 v{w0}, v{w0+1}, 11, v{w0}
    v_and_b32 v{w0+1}, 3, v{lane}
    v_lshl_add_u32 v{w0}, v{w0+1}, 3, v{w0}
    s_lshl_b32 s{s0}, s{spw}, 5
    s_add_u32 s{s0}, s{s0}, {scr}
    v_add_u32 v{w0}, s{s0}, v{w0}
    v_lshlrev_b32 v{w0+1}, 4, v{lane}
    v_lshlrev_b32 v{w0+2}, 2, v{lane}""")
    for d in range(4): k(f"v_mov_b32 v{ON+d}, 0x3f803f80")
    for q in range(4):
        for a in range(2):
            d = WR + 4 * q + 2 * a
            k(f"ds_read_b64_tr_b16 v[{d}:{d+1}], v{w0} offset:{q*4096 + a*512}")
    k(f"""s_lshl_b32 s{s0+2}, s{s0+2}, 2
    s_add_u32 s{s0+2}, s{s0+2}, s{spw}
    s_mul_i32 s{s0}, s{s0+2}, 40960
    s_lshl_b32 s{s0+1}, s{s0+1}, 12
    s_add_u32 s{s0}, s{s0}, s{s0+1}
    s_add_u32 s{s0}, s{s0}, {WGUP}
    s_lshl_b32 s{s0+3}, s{s0+2}, 7
    s_add_u32 s{s0+3}, s{s0+3}, {GSUM}
    s_add_u32 s{s0+4}, s{s0+3}, 12288""")
    for q in range(4):
        w = WR + 4 * q; o = WO_ + 4 * q; G = v0 + 8 + 16 * q; Sv = G + 8; sp = SP + 4 * (q % 2)
        for d in range(4): k(f"v_cvt_pk_bf16_f32 v{sp+d}, v{Sv+2*d}, v{Sv+2*d+1}")
        k(f"v_mfma_f32_32x32x16_bf16 v[{D1}:{D1+15}], v[{sp}:{sp+3}], v[{w}:{w+3}], {'v[%d:%d]' % (D1, D1+15) if q else 0}")
        for d in range(4):
            k(f"v_lshlrev_b32 v{T+2*d}, 16, v{w+d}")
            k(f"v_and_b32 v{T+2*d+1}, s{smask}, v{w+d}")
        for d in range(8): k(f"v_mul_f32 v{T+d}, v{T+d}, v{G+d}")
        for d in range(4): k(f"v_cvt_pk_bf16_f32 v{o+d}, v{T+2*d}, v{T+2*d+1}")
        k(f"v_mfma_f32_32x32x16_bf16 v[{D2}:{D2+15}], v[{ON}:{ON+3}], v[{o}:{o+3}], {'v[%d:%d]' % (D2, D2+15) if q else 0}")
        k(f"buffer_store_dwordx4 v[{o}:{o+3}], v{w0+1}, s[{sr_ws}:{sr_ws+3}], s{s0} offen offset:{1024*q} sc1")
    k(f"v_mov_b32 v{T}, v{D1}"); k(f"v_mov_b32 v{T+1}, v{D2}")
    k("s_mov_b32 exec_hi, 0")
    k(f"buffer_atomic_add_f32 v{T}, v{w0+2}, s[{sr_ws}:{sr_ws+3}], s{s0+4} offen")
    k(f"buffer_atomic_add_f32 v{T+1}, v{w0+2}, s[{sr_ws}:{sr_ws+3}], s{s0+3} offen")
    k("s_mov_b64 exec, -1")

import copy
def snap(k): return copy.deepcopy((k.pos, k.wr, k.mfma_c_rd, k.store_rd, k.vmq, k.lgq, k.pend_vm, k.pend_lg))
def restore(k, st): (k.pos, k.wr, k.mfma_c_rd, k.store_rd, k.vmq, k.lgq, k.pend_vm, k.pend_lg) = copy.deepcopy(st)

def gen_gemm32(mode):
    qkv = (mode == 'qkv')
    nm = 'k1' if qkv else 'k4'
    k = Kern("k1_qkv_kernel" if qkv else "k4_ffn_kernel")
    if qkv:
        NSLOT = 5; SS = 16384; NT = 2; GRP = 4
    else:
        NSLOT = 4; UOFF = 12320; SS = 24640; NT = 3; GRP = 2
    SCR = NSLOT * SS
    XHB = SCR + 16384
    GSB_L = XHB + 49152
    LDS = GSB_L + 5120
    stamp(k, 0)
    k(f"""s_cmp_ge_u32 s2, 256
    s_cbranch_scc1 L_{nm}_end""")
    k(f"s_load_dwordx2 s[4:5], s[0:1], {ARG['wqkv']}")
    k(f"s_load_dwordx4 s[36:39], s[0:1], {ARG['wg']}")
    k(f"s_load_dwordx2 s[44:45], s[0:1], {ARG['wd']}")
    k(f"""s_load_dwordx2 s[6:7], s[0:1], {ARG['ws']}
    s_and_b32 s20, s2, 7              ; xcd
    s_lshr_b32 s21, s2, 3             ; idx
{MAP14}""")
    if qkv:
        k(f"""s_cmp_ge_u32 s23, 15
        s_cbranch_scc1 L_{nm}_idle""")
    k(f"""v_lshrrev_b32 v1, 6, v0
    v_and_b32 v2, 63, v0              ; lane
    v_readfirstlane_b32 s24, v1       ; wave
    s_mov_b32 s30, 0xffff0000
    v_lshrrev_b32 v20, 5, v2          ; h
    v_lshlrev_b32 v5, 4, v2           ; lane*16""")
    k.waitall()
    srd(k, 12, 6, NB['ws'])
    k(f"""s_cmp_ge_u32 s24, 4
    s_cbranch_scc1 L_{nm}_prod""")
    st0 = snap(k)

    ACC = 32; XF = 128; WF = 144; TMP = 168
    k(f"""s_lshr_b32 s25, s24, 1            ; tm
    s_and_b32 s26, s24, 1             ; tn
    v_bfe_u32 v21, v2, 4, 1           ; fh
    v_bfe_u32 v22, v2, 2, 2           ; r
    v_and_b32 v23, 3, v2              ; c4""")
    ngrp = (NSLOT + GRP - 1) // GRP
    if qkv:
        k("""v_lshlrev_b32 v24, 11, v20        ; h*2048
        v_lshl_add_u32 v24, v22, 8, v24   ; + r*256
        v_lshl_add_u32 v24, v21, 5, v24   ; + fh*32
        v_lshl_add_u32 v24, v23, 3, v24   ; + c4*8
        s_lshl_b32 s27, s26, 1""")
        for j in range(2):
            k(f"s_add_u32 s28, s27, {j}")
            k(f"v_xor_b32 v25, s28, v22")
            k(f"v_lshl_add_u32 v{8+j*2}, v25, 6, v24")
            k(f"v_add_u32 v{9+j*2}, {GRP*SS}, v{8+j*2}")
    else:
        k(f"""v_lshl_add_u32 v24, v20, 3, v22   ; 8h + r
        v_mul_u32_u24 v24, 192, v24
        v_mul_u32_u24 v25, {UOFF}, v21
        v_add_u32 v24, v24, v25
        v_lshl_add_u32 v24, v23, 3, v24
        s_mul_i32 s27, s26, 96
        v_add_u32 v8, s27, v24
        v_add_u32 v9, {GRP*SS}, v8
        v_add_u32 v10, {2*GRP*SS}, v8""")
    k(f"""s_lshl_b32 s27, s25, 11
    s_add_u32 s27, s27, {XHB}
    v_add_u32 v12, s27, v5""")
    if qkv:
        srd(k, 8, 4, NB['wqkv'])
        k(f"""v_lshrrev_b32 v13, 4, v2           ; rr
        v_and_b32 v14, 15, v2              ; pos
        v_lshlrev_b32 v15, 2, v13
        v_xor_b32 v14, v14, v15
        v_mul_u32_u24 v13, 3840, v13
        v_lshl_add_u32 v13, v14, 4, v13
        s_mul_i32 s40, s24, {16*3840}
        s_lshl_b32 s41, s23, 8
        s_add_u32 s40, s40, s41
        s_lshl_b32 s41, s24, 12""")
    else:
        srd(k, 8, 36, NB['wg']); srd(k, 16, 38, NB['wu'])
        for t in range(3):
            k(f"""v_add_u32 v16, {64*t}, v2
            v_mul_u32_u24 v17, 0xaaab, v16
            v_lshrrev_b32 v17, 19, v17        ; row = p/12
            v_mul_u32_u24 v18, 12, v17
            v_sub_u32 v18, v16, v18           ; ch
            v_mul_u32_u24 v17, 3072, v17
            v_lshl_add_u32 v{13+t}, v18, 4, v17""")
        k(f"""s_mul_i32 s40, s24, {16*3072}
        s_mul_i32 s41, s23, 192
        s_add_u32 s40, s40, s41
        s_mul_i32 s41, s24, 3072""")
    dma_ids = {}
    def wdma(c):
        slot = c % NSLOT
        out = []
        if qkv:
            for i in range(4):
                def f(i=i):
                    k(f"s_add_u32 m0, s41, {slot*SS + i*1024}")
                    k(f"s_add_u32 s42, s40, {(64*c + 4*i)*3840}")
                    dma_ids[c] = k(f"buffer_load_dwordx4 v13, s[8:11], s42 offen lds")
                out.append(f)
        else:
            for u in range(2):
                for t in range(3):
                    def f(u=u, t=t):
                        if u == 0 and t == 0: k(f"s_add_u32 s42, s40, {64*c*3072}")
                        k(f"s_add_u32 m0, s41, {slot*SS + u*UOFF + t*1024}")
                        dma_ids[c] = k(f"buffer_load_dwordx4 v{13+t}, s[{8+8*u}:{11+8*u}], s42 offen lds")
                    out.append(f)
        return out
    LAW = int([e for e in EXP if e.startswith('law')][0][3:]) if any(e.startswith('law') for e in EXP) else 3
    for c in range(LAW):
        for f in wdma(c): f()
    for i in range(2 * NT * 16):
        k(f"v_mov_b32 v{ACC+i}, 0")

    def reads(s):
        c = s // 4; ks = s % 4; slot = c % NSLOT
        grp = slot // GRP; so = (slot % GRP) * SS
        out = []
        for i in range(2):
            d = XF + (s % 2) * 8 + i * 4
            out.append(f"ds_read_b128 v[{d}:{d+3}], v12 offset:{(c%3)*16384 + ks*4096 + i*1024}")
        for j in range(NT):
            for a in range(2):
                d = WF + (s % 2) * 12 + j * 4 + a * 2
                if qkv:
                    out.append(f"ds_read_b64_tr_b16 v[{d}:{d+1}], v{8+j*2+grp} offset:{so + ks*4096 + a*1024}")
                else:
                    out.append(f"ds_read_b64_tr_b16 v[{d}:{d+1}], v{8+grp} offset:{so + ks*3072 + a*768 + j*32}")
        return [out[0]] + out[2:4] + [out[1]] + out[4:]
    stamp(k, 1)
    k.wait_vm_id(dma_ids[0])
    k("s_barrier")
    stamp(k, 2)
    for t in reads(0): k(t)
    if qkv:
        k("s_cmp_ge_u32 s23, 10")
        k(f"s_cbranch_scc1 L_{nm}_v")
    st1 = snap(k); dma1 = dict(dma_ids)
    def mainloop(swap):
        pend = wdma(LAW)
        for s in range(40):
            c = s // 4
            if s % 4 == 3 and c < 9:
                k.wait_vm_id(dma_ids[c + 1]); k.wait_lg(0)
                k("s_barrier")
                stamp(k, 3 + c)
                if c + 1 + LAW <= 9: pend = wdma(c + 1 + LAW)
            fill = reads(s + 1) if s + 1 < 40 else []
            nd = (len(pend) + 1) // 2 if s % 4 != 2 else len(pend)
            nd = min(len(pend), 2 if qkv else 3)
            fill = fill + pend[:nd]; pend = pend[nd:]
            mf = []
            for j in range(NT):
                for i in range(2):
                    w = f"v[{WF+(s%2)*12+j*4}:{WF+(s%2)*12+j*4+3}]"; x = f"v[{XF+(s%2)*8+i*4}:{XF+(s%2)*8+i*4+3}]"
                    d0 = ACC + 16 * (i * NT + j)
                    d = f"v[{d0}:{d0+15}]"
                    mf.append(f"v_mfma_f32_32x32x16_bf16 {d}, {x if swap else w}, {w if swap else x}, {d}")
            n = len(mf); per = 2
            fi = 0
            if 'noreads' in EXP: fill = []
            for m in mf:
                if 'nomfma' not in EXP: k(m)
                for _ in range(per):
                    if fi < len(fill):
                        f = fill[fi]; fi += 1
                        if callable(f): f()
                        else: k(f)
    mainloop(False)
    stamp(k, 12)
    if qkv:
        k(f"""s_cmp_ge_u32 s23, 5
        s_cselect_b32 s29, {KB-QB}, 0
        s_cselect_b32 s31, 5, 0
        s_add_u32 s29, s29, {QB}
        s_sub_u32 s31, s23, s31           ; nb'
        s_lshl_b32 s31, s31, 12           ; 16 groups * 256
        s_lshl_b32 s32, s26, 11
        s_add_u32 s29, s29, s31
        s_add_u32 s29, s29, s32
        s_lshl_b32 s32, s22, 3
        s_lshl_b32 s33, s25, 2
        s_add_u32 s32, s32, s33
        s_mul_i32 s32, s32, 20480
        s_add_u32 s29, s29, s32
        s_add_u32 s31, s29, 40960         ; i = 1
        v_bfe_u32 v3, v2, 4, 1
        v_mul_u32_u24 v4, 20480, v3
        v_and_b32 v3, 15, v2
        v_lshl_add_u32 v4, v3, 4, v4
        v_lshl_add_u32 v4, v20, 8, v4     ; + h*256""")
        n = 0
        for j in range(2):
            for i in range(2):
                for ap in range(2):
                    r = ACC + 16 * (i * NT + j) + 8 * ap
                    t = TMP + 4 * (n % 4); n += 1
                    for e in range(4): k(f"v_cvt_pk_bf16_f32 v{t+e}, v{r+2*e}, v{r+2*e+1}")
                    k(f"v_permlane32_swap_b32 v{t}, v{t+2}")
                    k(f"v_permlane32_swap_b32 v{t+1}, v{t+3}")
                    k(f"buffer_store_dwordx4 v[{t}:{t+3}], v4, s[12:15], s{29 if i == 0 else 31} offen offset:{j*1024 + ap*512} sc1")
        stamp_flush(k, 13)
        k("s_endpgm")
        k.label(f"L_{nm}_v")
        restore(k, st1); dma_ids.clear(); dma_ids.update(dma1)
        mainloop(True)
        k(f"""s_sub_u32 s31, s23, 10
        s_lshl_b32 s31, s31, 7            ; 128 nb'
        s_lshl_b32 s32, s26, 6
        s_add_u32 s31, s31, s32           ; + 64 tn
        s_lshl_b32 s32, s22, 2
        s_lshl_b32 s33, s25, 1
        s_add_u32 s32, s32, s33
        s_mul_i32 s32, s32, 1280
        s_add_u32 s29, s32, {VB}
        v_and_b32 v3, 31, v2              ; j
        v_add_u32 v5, s31, v3             ; f0
        s_mov_b32 s33, 81920""")
        n = 0
        for j in range(2):
            k(f"""v_add_u32 v6, {32*j}, v5
            v_mul_u32_u24 v7, 0xcccd, v6
            v_lshrrev_b32 v7, 20, v7          ; head = f/20
            v_mul_u32_u24 v8, 20, v7
            v_sub_u32 v8, v6, v8              ; d
            v_mul_lo_u32 v7, v7, s33
            v_lshl_add_u32 v7, v8, 4, v7      ; + d*16
            v_cmp_gt_u32 vcc, 16, v8
            v_lshlrev_b32 v9, 8, v20          ; h*256
            v_lshlrev_b32 v10, 6, v20
            v_add_u32 v10, 768, v10           ; 1024 - 256 + h*64
            v_cndmask_b32 v9, v10, v9, vcc
            v_add_u32 v7, v7, v9
            v_mov_b32 v9, 128
            v_mov_b32 v10, 512
            v_cndmask_b32 v9, v9, v10, vcc
            v_add_u32 v9, v7, v9""")
            for i in range(2):
                for a1 in range(2):
                    t = TMP + 4 * (n % 4); n += 1
                    r0 = ACC + 16 * (i * NT + j) + 4 * a1; r1 = r0 + 8
                    k(f"v_cvt_pk_bf16_f32 v{t}, v{r0}, v{r0+1}")
                    k(f"v_cvt_pk_bf16_f32 v{t+1}, v{r0+2}, v{r0+3}")
                    k(f"v_cvt_pk_bf16_f32 v{t+2}, v{r1}, v{r1+1}")
                    k(f"v_cvt_pk_bf16_f32 v{t+3}, v{r1+2}, v{r1+3}")
                    k(f"buffer_store_dwordx4 v[{t}:{t+3}], v{7 if a1 == 0 else 9}, s[12:15], s29 offen offset:{1280*i} sc1")
        stamp_flush(k, 13)
        k("s_endpgm")
    else:
        k(f"""s_mul_i32 s31, s23, 6
        s_mul_i32 s32, s26, 3
        s_add_u32 s31, s31, s32           ; b16 base
        s_lshl_b32 s32, s22, 3
        s_lshl_b32 s33, s25, 2
        s_add_u32 s32, s32, s33           ; T16 base
        s_mul_i32 s32, s32, {48*1024}
        s_add_u32 s29, s32, {ACT}
        v_bfe_u32 v3, v2, 4, 1
        v_mul_u32_u24 v4, {48*1024}, v3
        v_and_b32 v3, 15, v2
        v_lshl_add_u32 v4, v3, 4, v4      ; + tok16*16
        v_lshl_add_u32 v4, v20, 8, v4     ; + h*256
        v_add_u32 v6, {2*48*1024}, v4     ; i = 1
        s_mov_b32 s34, 0xbfb8aa3b""")
        n = 0
        for j in range(3):
            k(f"""s_add_u32 s32, s31, {j}
            s_lshr_b32 s33, s32, 1
            s_lshl_b32 s33, s33, 10
            s_and_b32 s32, s32, 1
            s_lshl_b32 s32, s32, 3
            s_add_u32 s33, s33, s32
            s_add_u32 s33, s33, s29""")
            for i in range(2):
                r = ACC + 16 * (i * NT + j)
                T = TMP + 8 * (n % 2); O = TMP + 16 + 4 * (n % 4); n += 1
                for e in range(8): k(f"v_mul_f32 v{T+e}, s34, v{r+e}")
                for e in range(8): k(f"v_exp_f32 v{T+e}, v{T+e}")
                for e in range(8): k(f"v_add_f32 v{T+e}, 1.0, v{T+e}")
                for e in range(8): k(f"v_rcp_f32 v{T+e}, v{T+e}")
                for e in range(8): k(f"v_mul_f32 v{r+e}, v{r+e}, v{r+8+e}")
                for e in range(8): k(f"v_mul_f32 v{r+e}, v{r+e}, v{T+e}")
                for e in range(4): k(f"v_cvt_pk_bf16_f32 v{O+e}, v{r+2*e}, v{r+2*e+1}")
                for a in range(2):
                    k(f"buffer_store_dwordx2 v[{O+2*a}:{O+2*a+1}], v{4 if i == 0 else 6}, s[12:15], s33 offen offset:{512*a}")
        stamp_flush(k, 13)
        k("s_endpgm")

    k.label(f"L_{nm}_prod")
    restore(k, st0)
    GSR = 32; TMP = 64; OUT = 80; STAT = 96; XR = 104
    XSRC = XN if qkv else X1
    k(f"""s_sub_u32 s24, s24, 4             ; pw""")
    goff = (MOD + 2560) if qkv else (MOD + 4 * 2560)
    soff = MOD if qkv else (MOD + 3 * 2560)
    k(f"""v_lshrrev_b32 v3, 2, v2
    v_and_b32 v4, 3, v2
    v_lshlrev_b32 v6, 8, v3
    v_lshl_add_u32 v6, v4, 4, v6
    v_cmp_gt_u32 vcc, 40, v2
    v_mov_b32 v7, 0x7ffffff0
    v_cndmask_b32 v6, v7, v6, vcc
    s_lshl_b32 s25, s24, 6
    s_add_u32 s26, s25, {goff}
    s_add_u32 s25, s25, {soff}
    buffer_load_dwordx4 v[{GSR}:{GSR+3}], v6, s[12:15], s26 offen
    buffer_load_dwordx4 v[{GSR+4}:{GSR+7}], v6, s[12:15], s25 offen""")
    if not qkv:
        k(f"""v_and_b32 v7, 31, v2
        v_lshlrev_b32 v7, 6, v7
        v_lshl_add_u32 v7, v20, 5, v7
        s_lshl_b32 s25, s22, 13
        s_add_u32 s25, s25, {ST}""")
        for t in range(4):
            k(f"buffer_load_dwordx4 v[{GSR+8+8*t if t < 3 else TMP}:{GSR+11+8*t if t < 3 else TMP+3}], v7, s[12:15], s25 offen offset:{2048*(t%2)}")
            k(f"buffer_load_dwordx4 v[{GSR+12+8*t if t < 3 else TMP+4}:{GSR+15+8*t if t < 3 else TMP+7}], v7, s[12:15], s25 offen offset:{2048*(t%2)+16}")
            if t == 1: k("s_add_u32 s25, s25, 4096")
    k(f"""s_mul_i32 s26, s22, {4*40960}
    s_lshl_b32 s27, s24, 10
    s_add_u32 s26, s26, s27
    s_add_u32 s26, s26, {XSRC}""")
    wr_ids = {}
    D = 4
    LAX = int([e for e in EXP if e.startswith('lax')][0][3:]) if any(e.startswith('lax') for e in EXP) else 2
    def issue(c):
        if c > 9: return
        for t in range(4):
            r = XR + (c % D) * 16 + t * 4
            k(f"s_add_u32 s29, s26, {t*40960 + c*4096}")
            k(f"buffer_load_dwordx4 v[{r}:{r+3}], v5, s[12:15], s29 offen")
    for c in range(LAX): issue(c)
    k(f"""s_mul_i32 s25, s24, 1280
    s_add_u32 s25, s25, {GSB_L}
    v_lshlrev_b32 v14, 7, v3
    v_lshrrev_b32 v15, 1, v4
    v_lshl_add_u32 v14, v15, 6, v14
    v_and_b32 v15, 1, v4
    v_lshl_add_u32 v14, v15, 4, v14
    v_add_u32 v14, s25, v14
    v_cmp_gt_u32 vcc, 40, v2
    s_and_saveexec_b64 s[34:35], vcc
    ds_write_b128 v14, v[{GSR}:{GSR+3}]
    ds_write_b128 v14, v[{GSR+4}:{GSR+7}] offset:32
    s_mov_b64 exec, s[34:35]
    v_lshlrev_b32 v15, 6, v20
    v_add_u32 v15, s25, v15
    s_lshl_b32 s25, s24, 12
    s_add_u32 s25, s25, {XHB}
    v_add_u32 v16, s25, v5""")
    if not qkv:
        for t in range(4):
            b = GSR + 8 + 8 * t if t < 3 else TMP
            k(f"""v_add_f32 v{b}, v{b}, v{b+2}
            v_add_f32 v{b+1}, v{b+1}, v{b+3}
            v_add_f32 v{b+4}, v{b+4}, v{b+6}
            v_add_f32 v{b+5}, v{b+5}, v{b+7}
            v_add_f32 v{b}, v{b}, v{b+4}
            v_add_f32 v{b+1}, v{b+1}, v{b+5}
            v_mov_b32 v{b+2}, v{b}
            v_mov_b32 v{b+3}, v{b+1}
            v_permlane32_swap_b32 v{b}, v{b+2}
            v_permlane32_swap_b32 v{b+1}, v{b+3}
            v_add_f32 v{b}, v{b}, v{b+2}
            v_add_f32 v{b+1}, v{b+1}, v{b+3}
            v_mul_f32 v{b}, 0x3acccccd, v{b}          ; mean
            v_mul_f32 v{b+1}, 0x3acccccd, v{b+1}      ; E[x2]
            v_fma_f32 v{b+1}, -v{b}, v{b}, v{b+1}     ; var
            v_max_f32 v{b+1}, 0, v{b+1}""")
            bf16r(k, b, b); bf16r(k, b + 1, b + 1)
            k(f"v_add_f32 v{b+1}, 0x3727c5ac, v{b+1}")
            bf16r(k, b + 1, b + 1)
            k(f"v_sqrt_f32 v{b+1}, v{b+1}")
            bf16r(k, b + 1, b + 1)
            k(f"v_rcp_f32 v{STAT+2*t}, v{b+1}")
            k(f"v_mul_f32 v{STAT+2*t+1}, v{b}, v{STAT+2*t}")
            k(f"v_sub_f32 v{STAT+2*t+1}, 0, v{STAT+2*t+1}")
    k.wait_lg(0)
    def gs_reads(c):
        b = GSR + (c % 2) * 16
        for i in range(4): k(f"ds_read_b128 v[{b+4*i}:{b+4*i+3}], v15 offset:{c*128 + 16*i}")
    def norm(c):
        b = GSR + (c % 2) * 16
        for t in range(4):
            r = XR + (c % D) * 16 + t * 4; o = OUT + t * 4; T = TMP + (t % 2) * 8
            if 'novalu' not in EXP:
              if qkv:
                for d in range(8):
                  k(f"v_fma_mix_f32 v{T+d}, v{r+d//2}, v{b+d}, v{b+8+d} op_sel:[{d%2},0,0] op_sel_hi:[1,0,0]")
              else:
                for d in range(4):
                  k(f"v_lshlrev_b32 v{T+2*d}, 16, v{r+d}")
                  k(f"v_and_b32 v{T+2*d+1}, s30, v{r+d}")
                for d in range(8): k(f"v_fma_f32 v{T+d}, v{T+d}, v{STAT+2*t}, v{STAT+2*t+1}")
                for d in range(8): k(f"v_fma_f32 v{T+d}, v{T+d}, v{b+d}, v{b+8+d}")
              for d in range(4): k(f"v_cvt_pk_bf16_f32 v{o+d}, v{T+2*d}, v{T+2*d+1}")
            if 'nodsw' not in EXP:
              wr_ids[c] = k(f"ds_write_b128 v16, v[{o}:{o+3}] offset:{(c%3)*16384 + t*1024}")
    stamp(k, 1)
    gs_reads(0); gs_reads(1)
    issue(LAX)
    norm(0)
    issue(LAX + 1)
    gs_reads(2)
    norm(1)
    k.wait_lg_id(wr_ids[0])
    stamp(k, 2)
    k("s_barrier")
    for p in range(9):
        issue(p + 2 + LAX)
        if p == 7:
            k(f"""s_mul_i32 s46, s22, 15
            s_add_u32 s46, s46, s23
            s_lshl_b32 s46, s46, 13
            v_lshlrev_b32 v168, 7, v2
            s_cmp_eq_u32 s24, 0
            s_cselect_b32 s48, s36, s38
            s_cselect_b32 s49, s37, s39
            s_cmp_eq_u32 s24, 2
            s_cselect_b32 s48, s44, s48
            s_cselect_b32 s49, s45, s49
            s_and_b32 s49, s49, 0xffff
            s_mov_b32 s50, {NB['wg']}
            s_mov_b32 s51, 0x00020000
            buffer_load_dword v169, v168, s[48:51], s46 offen""")
        if p + 3 <= 9: gs_reads(p + 3)
        if p + 2 <= 9: norm(p + 2)
        k.wait_lg_id(wr_ids[p + 1])
        stamp(k, 3 + p)
        k("s_barrier")
    stamp_flush(k, 12, tid=256, base=64)
    k("s_endpgm")
    k.label(f"L_{nm}_idle")
    k.vmq = []; k.lgq = []; k.pend_vm = {}; k.pend_lg = {}
    k(f"""s_load_dwordx2 s[18:19], s[0:1], {ARG['wo']}
    v_lshrrev_b32 v1, 6, v0
    v_and_b32 v2, 63, v0
    v_readfirstlane_b32 s24, v1
    s_lshl_b32 s16, s24, 4
    s_add_u32 s16, s16, s22           ; unit
    s_cmp_ge_u32 s16, 40
    s_cbranch_scc1 L_{nm}_end
    s_mul_i32 s17, s24, 20480
    s_mul_i32 s20, s16, 26
    s_lshr_b32 s20, s20, 8            ; q
    s_mul_i32 s21, s20, 10
    s_sub_u32 s21, s16, s21           ; cg
    s_mul_i32 s25, s20, {160*1280}
    s_lshl_b32 s26, s21, 7
    s_add_u32 s25, s25, s26
    v_lshrrev_b32 v8, 3, v2
    v_mul_u32_u24 v8, 1280, v8
    v_and_b32 v9, 7, v2
    v_lshl_add_u32 v8, v9, 4, v8""")
    k.waitall()
    srd(k, 12, 6, NB['ws']); srd(k, 28, 18, NB['wo'])
    for i in range(20):
        k(f"s_add_u32 m0, s17, {1024*i}")
        k(f"buffer_load_dwordx4 v8, s[28:31], s25 offen lds")
        k(f"s_add_u32 s25, s25, {8*1280}")
    k("""v_lshrrev_b32 v4, 4, v2
    v_bfe_u32 v5, v2, 2, 2
    v_and_b32 v6, 3, v2
    v_lshlrev_b32 v7, 4, v2""")
    for sp in range(5):
        k(f"""v_add_u32 v9, {4*sp}, v4
        v_mul_u32_u24 v10, 52, v9
        v_lshrrev_b32 v10, 8, v10         ; m'
        v_mul_u32_u24 v10, 20, v10
        v_lshl_add_u32 v10, v9, 2, v10    ; 4 sigma + 20 m' = 40m' + 4u
        v_add_u32 v10, v10, v5
        v_lshlrev_b32 v10, 7, v10
        v_lshl_add_u32 v10, v6, 3, v10
        v_add_u32 v{12+sp}, s17, v10""")
    k.wait_vm(0)
    k(f"""s_mul_i32 s20, s20, {5*5120}
    s_add_u32 s20, s20, {WOP}
    s_lshl_b32 s21, s21, 2""")
    for f in range(4):
        k(f"""s_add_u32 s32, s21, {f}
        s_mul_i32 s33, s32, 52
        s_lshr_b32 s33, s33, 8
        s_mul_i32 s34, s33, 5
        s_sub_u32 s34, s32, s34
        s_mul_i32 s33, s33, {20*5120}
        s_lshl_b32 s34, s34, 10
        s_add_u32 s33, s33, s34
        s_add_u32 s33, s33, s20""")
        for sp in range(5):
            d = 24 + (f % 2) * 20 + sp * 4
            for a_ in range(2):
                k(f"ds_read_b64_tr_b16 v[{d+2*a_}:{d+2*a_+1}], v{12+sp} offset:{a_*2560 + f*32}")
        for sp in range(5):
            d = 24 + (f % 2) * 20 + sp * 4
            k(f"buffer_store_dwordx4 v[{d}:{d+3}], v7, s[12:15], s33 offen sc1")
            if sp < 4: k(f"s_add_u32 s33, s33, 5120")
    k.label(f"L_{nm}_end")
    k("s_endpgm")
    return k, LDS

def gen_k2():
    k = Kern("k2_attn_kernel")
    KL = 0; VL = 30720; RP = 61440; LDS = RP + 7 * 4096
    S = [24, 96]
    QF = 168; KF = 176; T = 192; VF = 60; O = [84, 132]
    stamp(k, 0)
    k(f"""s_cmp_ge_u32 s2, 256
    s_cbranch_scc1 L_k2_end
    s_load_dwordx2 s[6:7], s[0:1], {ARG['ws']}
    s_load_dwordx2 s[18:19], s[0:1], {ARG['wd']}
    s_load_dwordx4 s[8:11], s[0:1], {ARG['wg']}
    s_and_b32 s20, s2, 7
    s_lshl_b32 s21, s20, 1
    s_bfe_u32 s20, s2, 0x10003
    s_add_u32 s21, s21, s20
    s_lshr_b32 s22, s2, 4
    v_lshrrev_b32 v1, 6, v0
    v_and_b32 v2, 63, v0
    v_readfirstlane_b32 s24, v1       ; wave
    v_and_b32 v3, 15, v2              ; i / q
    v_lshrrev_b32 v4, 4, v2           ; g
    v_lshlrev_b32 v7, 4, v2           ; lane*16
    s_lshl_b32 s25, s22, 3
    s_add_u32 s25, s25, s24
    s_mul_i32 s26, s21, 1280
    s_lshl_b32 s27, s22, 3
    s_mul_i32 s28, s24, 3
    s_add_u32 s27, s27, s28
    s_sub_u32 s27, s27, 16
    s_mul_i32 s28, s24, 3840""")
    for t in range(4):
        k(f"""v_add_u32 v12, {64*t}, v2
        v_mul_u32_u24 v13, 820, v12
        v_lshrrev_b32 v13, 16, v13        ; p/80
        v_mul_u32_u24 v14, 80, v13
        v_sub_u32 v14, v12, v14
        v_add_u32 v13, s27, v13
        v_cmp_gt_i32 vcc, 0, v13
        v_mul_i32_i24 v13, 20480, v13
        v_lshl_add_u32 v13, v14, 4, v13
        v_mov_b32 v14, 0x7ffffff0
        v_cndmask_b32 v{8+t}, v13, v14, vcc""")
    k.waitall()
    srd(k, 12, 6, NB['ws'])
    k(f"s_add_u32 s29, s26, {KB}")
    for t in range(4):
        k(f"s_add_u32 m0, s28, {1024*t}")
        if t == 3: k("s_mov_b32 exec_hi, 0x0000ffff")
        k(f"buffer_load_dwordx4 v{8+t}, s[12:15], s29 offen lds")
    k("s_mov_b64 exec, -1")
    k(f"""v_min_u32 v12, 2, v4
    v_lshlrev_b32 v12, 8, v12
    v_lshl_add_u32 v12, v3, 4, v12    ; min(g,2)*256 + i*16
    s_mul_i32 s30, s25, 20480
    s_add_u32 s30, s30, s26
    s_add_u32 s30, s30, {QB}
    buffer_load_dwordx4 v[{QF}:{QF+3}], v12, s[12:15], s30 offen""")
    kid = k(f"buffer_load_dwordx4 v[{QF+4}:{QF+7}], v12, s[12:15], s30 offen offset:512")
    k(f"""s_lshr_b32 s31, s24, 2            ; hb
    s_and_b32 s32, s24, 3
    s_lshl_b32 s33, s21, 1
    s_add_u32 s33, s33, s31           ; head
    s_mul_i32 s33, s33, 81920
    s_add_u32 s33, s33, {VB}
    s_mul_i32 s34, s22, 5120
    s_sub_u32 s34, s34, 10240
    s_lshl_b32 s35, s32, 12
    s_add_u32 s34, s34, s35
    s_mul_i32 s36, s31, 15360
    s_add_u32 s36, s36, s35
    s_add_u32 s36, s36, {VL}
    v_mov_b32 v14, 0x7ffffff0""")
    for t in range(4):
        k(f"""v_add_u32 v13, s34, v7
        v_cmp_gt_i32 vcc, 0, v13
        v_cndmask_b32 v13, v13, v14, vcc
        s_add_u32 m0, s36, {1024*t}""")
        if t == 3:
            k("""s_cmp_eq_u32 s32, 3
            s_cbranch_scc1 L_k2_v3""")
        k(f"buffer_load_dwordx4 v13, s[12:15], s33 offen lds")
        if t < 3: k("s_add_u32 s34, s34, 1024")
    k.label("L_k2_v3")
    k(f"""s_and_b32 s31, s24, 6
    s_mul_i32 s32, s31, 1280
    v_add_u32 v8, s32, v12
    s_mul_i32 s32, s31, 640
    s_add_u32 s32, s32, {VL}
    v_add_u32 v9, s32, v7
    v_and_b32 v11, 3, v3
    v_lshl_add_u32 v11, v4, 2, v11
    v_lshlrev_b32 v11, 4, v11
    v_add_u32 v11, s32, v11
    v_cmp_gt_u32 s[48:49], 4, v3
    v_mov_b32 v18, 0x3f803f80
    v_lshlrev_b32 v13, 2, v4
    s_and_b32 s33, s24, 1             ; parity""")
    MK = {0: 64, 1: 72, 16: 80, 17: 40}
    if PROF: MK = {0: 64, 1: 72, 16: 80, 17: 40}
    for r in range(4):
        k(f"""v_add_u32 v14, {r}, v13
        v_cmp_le_u32 s[50:51], v14, v3
        s_not_b64 s[52:53], s[50:51]
        s_cmp_eq_u32 s33, 0
        s_cselect_b64 s[{MK[0]+2*r}:{MK[0]+2*r+1}], s[52:53], 0
        s_cselect_b64 s[{MK[1]+2*r}:{MK[1]+2*r+1}], -1, s[52:53]
        s_cselect_b64 s[{MK[16]+2*r}:{MK[16]+2*r+1}], s[50:51], -1
        s_cselect_b64 s[{MK[17]+2*r}:{MK[17]+2*r+1}], 0, s[50:51]""")
    k(f"""s_mul_i32 s35, s25, 20480
    s_add_u32 s35, s35, s26
    s_add_u32 s35, s35, {OB}
    v_lshlrev_b32 v15, 8, v4
    v_lshl_add_u32 v15, v3, 4, v15    ; g*256 + q*16
    v_lshlrev_b32 v16, 4, v3
    v_mov_b32 v10, 0x7ffffff0
    v_cmp_gt_u32 vcc, 16, v2
    v_cndmask_b32 v16, v10, v16, vcc
    s_mov_b32 s36, 0x3ea52b5c
    v_mov_b32 v17, 0xf149f2ca
    v_cmp_gt_u32 s[50:51], 2, v4      ; g < 2
    v_cmp_gt_u32 s[52:53], 3, v4      ; g < 3
    v_cmp_ne_u32 s[54:55], 0, v4
    s_and_b64 s[54:55], s[54:55], s[52:53]   ; g in {{1,2}}""")
    k.wait_vm(3)
    for e, mk in ((0, 52), (1, 52), (2, 50), (3, 50), (4, 54), (5, 54), (6, 52), (7, 52)):
        k(f"v_cndmask_b32 v{QF+e}, 0, v{QF+e}, s[{mk}:{mk+1}]")
    k("s_barrier")
    def kread(t, i): return f"ds_read_b128 v[{KF+4*(i%4)}:{KF+4*(i%4)+3}], v8 offset:{i*1280 + t*512}"
    def qk(t):
        out = [kread(t, 0), kread(t, 1), kread(t, 2)]
        for i in range(18):
            if i + 3 < 18: out.append(kread(t, i + 3))
            out.append(f"v_mfma_f32_16x16x32_bf16 v[{S[t]+4*i}:{S[t]+4*i+3}], v[{KF+4*(i%4)}:{KF+4*(i%4)+3}], v[{QF+4*t}:{QF+4*t+3}], 0")
        return out
    def vread(t, c):
        d = VF + (c % 3) * 8
        return [f"ds_read_b128 v[{d}:{d+3}], v9 offset:{t*15360 + c*1280}", f"ds_read_b128 v[{d+4}:{d+7}], v11 offset:{t*15360 + c*1280+1024}"]
    def pv(t):
        out = vread(t, 0) + vread(t, 1)
        for c in range(9):
            d = VF + (c % 3) * 8
            if c + 2 < 9: out += vread(t, c + 2)
            for e in range(4): out.append(f"v_cndmask_b32 v{d+4+e}, v18, v{d+4+e}, s[48:49]")
            for dd in range(2):
                acc = f"v[{O[t]+4*dd}:{O[t]+4*dd+3}]"
                out.append(f"v_mfma_f32_16x16x32_bf16 {acc}, v[{d+4*dd}:{d+4*dd+3}], v[{S[t]+4*c}:{S[t]+4*c+3}], {acc if c else 0}")
        return out
    def fixup(t):
        lab = f"L_k2_fix{t}"
        k._nop(10)
        k(f"""s_cmp_ge_u32 s22, 2
        s_cbranch_scc1 {lab}
        s_and_b32 s37, s25, 0xfffe
        s_sub_u32 s37, 16, s37""")
        for tau in range(16):
            k.raw(f"    s_cmp_le_i32 s37, {tau}\n    s_cbranch_scc1 {lab}")
            for r in range(4): k.raw(f"    v_mov_b32 v{S[t]+4*tau+r}, v17")
        k.label(lab)
        k._nop(2)
    def softmax(t):
        s0 = S[t]; TT = T + 4 * t
        out = [lambda: fixup(t)]
        for ti in (0, 1, 16, 17):
            for r in range(4):
                out.append(f"v_cndmask_b32 v{s0+4*ti+r}, v17, v{s0+4*ti+r}, s[{MK[ti]+2*r}:{MK[ti]+2*r+1}]")
        regs = list(range(s0, s0 + 72))
        for j in range(4):
            out.append(f"v_max_f32 v{TT+j}, v{regs[j*18]}, v{regs[j*18+1]}")
        for i in range(8):
            for j in range(4):
                out.append(f"v_max3_f32 v{TT+j}, v{TT+j}, v{regs[j*18+2+2*i]}, v{regs[j*18+3+2*i]}")
        out += [f"v_max3_f32 v{TT}, v{TT}, v{TT+1}, v{TT+2}", f"v_max_f32 v{TT}, v{TT}, v{TT+3}",
                f"v_mov_b32 v{TT+1}, v{TT}", f"v_permlane16_swap_b32 v{TT}, v{TT+1}", f"v_max_f32 v{TT}, v{TT}, v{TT+1}",
                f"v_mov_b32 v{TT+1}, v{TT}", f"v_permlane32_swap_b32 v{TT}, v{TT+1}", f"v_max_f32 v{TT}, v{TT}, v{TT+1}",
                f"v_mul_f32 v{TT}, s36, v{TT}", f"v_sub_f32 v{TT}, 0, v{TT}"]
        G = 8
        for g0 in range(0, 72, G):
            for i in range(G): out.append(f"v_fma_f32 v{s0+g0+i}, v{s0+g0+i}, s36, v{TT}")
            for i in range(G): out.append(f"v_exp_f32 v{s0+g0+i}, v{s0+g0+i}")
            if g0 >= G:
                for i in range(0, G, 2): out.append(f"v_cvt_pk_bf16_f32 v{s0+(g0-G+i)//2}, v{s0+g0-G+i}, v{s0+g0-G+i+1}")
        for i in range(64, 72, 2): out.append(f"v_cvt_pk_bf16_f32 v{s0+i//2}, v{s0+i}, v{s0+i+1}")
        return out
    FO = 160
    def final(t):
        F = 140 + 10 * t
        out = [f"v_mov_b32 v{F}, v{O[t]+4}", f"v_mov_b32 v{F+1}, v{O[t]+4}",
               f"v_permlane16_swap_b32 v{F}, v{F+1}", f"v_rcp_f32 v{F+1}, v{F+1}"]
        for i in range(8): out.append(f"v_mul_f32 v{F+2+i}, v{O[t]+i}, v{F+1}")
        o = F + 2
        out += [f"v_cvt_pk_bf16_f32 v{FO+2*t}, v{o}, v{o+1}", f"v_cvt_pk_bf16_f32 v{FO+2*t+1}, v{o+2}, v{o+3}",
                f"v_cvt_pk_bf16_f32 v{FO+4+2*t}, v{o+4}, v{o+5}", f"v_cvt_pk_bf16_f32 v{FO+4+2*t+1}, v{o+6}, v{o+7}"]
        return out
    def mix(valu, mf):
        n = len(valu); m = len(mf); j = 0
        for i, v in enumerate(valu):
            if callable(v): v()
            else: k(v)
            while j < m and (j + 1) * n <= (i + 1) * m: k(mf[j]); j += 1
        while j < m: k(mf[j]); j += 1
    for m in qk(0): k(m)
    k.wait_vm(0)
    k("s_barrier")
    k(f"""s_cmp_ge_u32 s24, 4
    s_cbranch_scc1 L_k2_rpB
    s_cmp_ge_u32 s2, 240
    s_cbranch_scc1 L_k2_norp1""")
    srd(k, 28, 8, NB['wg']); srd(k, 4, 10, NB['wu'])
    repackgu_issue(k, 2, 24, RP, 28, 4, 100, 52, 2, 12, RP + 6*4096)
    k("s_branch L_k2_norp1")
    k.label("L_k2_rpB")
    k(f"""s_sub_u32 s16, s24, 4
    s_lshl_b32 s16, s16, 8
    s_add_u32 s16, s16, s2
    s_add_u32 s16, s16, 200
    s_lshl_b32 s17, s24, 12
    s_add_u32 s17, s17, {RP}
    s_cmp_ge_u32 s16, 680
    s_cbranch_scc1 L_k2_norp1""")
    srd(k, 28, 18, NB['wd'])
    rid = repack16_issue(k, 16, 17, 28, 28, 100, 52, 2)
    k.label("L_k2_norp1")
    k._nop(4)
    prefetch_lin(k, 12, WOP, 8*20*5120, 512, 0, 104, 38, dst='v200', full=True)
    mix(softmax(0), qk(1))
    k.wait_vm(1)
    k("s_barrier")
    mix(softmax(1), pv(0))
    mix(final(0), pv(1))
    for v in final(1): k(v)
    k(f"buffer_store_dwordx4 v[{FO}:{FO+3}], v15, s[12:15], s35 offen sc1")
    k(f"buffer_store_dwordx4 v[{FO+4}:{FO+7}], v16, s[12:15], s35 offen offset:1024 sc1")
    k(f"""s_cmp_ge_u32 s24, 4
    s_cbranch_scc1 L_k2_rpB2
    s_cmp_ge_u32 s2, 240
    s_cbranch_scc1 L_k2_norp2
    v_lshrrev_b32 v20, 5, v2
    s_mov_b32 s30, 0xffff0000""")
    repackgu_gs_lds(k, RP + 6*4096, 24, 20)
    repackgu_finish(k, 24, RP, 12, 24, 96, 52, 2, 20, 30)
    k("s_branch L_k2_norp2")
    k.label("L_k2_rpB2")
    k.vmq = []; k.lgq = []; k.pend_vm = {}; k.pend_lg = {}
    k(f"""s_cmp_ge_u32 s16, 680
    s_cbranch_scc1 L_k2_norp2""")
    repack16_finish(k, 16, 17, 12, 24, 52, 2, rid, wd=True)
    k.label("L_k2_norp2")
    stamp_flush(k, 1, wg=41)
    k.label("L_k2_end")
    k("s_endpgm")
    return k, LDS

def gen_gemm16(mode):
    wo = (mode == 'wo')
    nm = 'k3' if wo else 'k5'
    k = Kern("k3_wo_kernel" if wo else "k5_down_kernel")
    NS32 = 20 if wo else 48
    NC = NS32 // 4
    NS = 5 if wo else 7
    LA = 5
    R = 3
    XB = OB if wo else ACT
    WP = WOP if wo else WDP
    SS = 20480
    LDS = NS * SS
    ACC = 40; WF = 64; EX = 148; TMP = 180
    XA = 0; XD = LA + 2
    stamp(k, 0)
    k(f"""s_cmp_ge_u32 s2, 256
    s_cbranch_scc1 L_{nm}_end
    s_load_dwordx2 s[6:7], s[0:1], {ARG['ws']}
    s_load_dwordx2 s[36:37], s[0:1], {ARG['x'] if wo else ARG['out']}
    s_and_b32 s20, s2, 7
    s_lshr_b32 s21, s2, 3
{MAP35}
    v_lshrrev_b32 v1, 6, v0
    v_and_b32 v2, 63, v0
    v_readfirstlane_b32 s24, v1       ; wave
    v_lshlrev_b32 v5, 4, v2           ; lane*16
    v_and_b32 v3, 15, v2              ; tok
    v_lshrrev_b32 v4, 4, v2           ; g
    s_lshl_b32 s31, s22, 2
    s_add_u32 s31, s31, s24           ; T16 owned
    s_mul_i32 s25, s23, {NS32*5120}
    s_mul_i32 s26, s24, 5120
    s_add_u32 s25, s25, s26
    s_add_u32 s25, s25, {WP}
    s_mul_i32 s27, s31, {NS32*1024}
    s_add_u32 s27, s27, {XB}          ; X base
    v_add_u32 v6, 4096, v5""")
    k.waitall()
    srd(k, 12, 6, NB['ws'])
    srd(k, 16, 36, NB['x'])
    dma = {}
    def issue(c):
        out = []
        slot = c % NS
        def fx():
            k(f"s_add_u32 s30, s27, {c*4096}")
            for i in range(4):
                r = XA + (c % XD) * 16 + i * 4
                k(f"buffer_load_dwordx4 a[{r}:{r+3}], v5, s[12:15], s30 offen offset:{1024*i}")
        out.append(fx)
        def fw():
            k(f"s_add_u32 s29, s25, {c*SS}")
            k(f"s_add_u32 m0, s26, {slot*SS}")
            for t in range(4):
                k(f"buffer_load_dwordx4 v5, s[12:15], s29 offen offset:{1024*t} lds")
            k(f"s_add_u32 m0, s26, {slot*SS + 4096}")
            dma[c] = k(f"buffer_load_dwordx4 v6, s[12:15], s29 offen lds")
        out.append(fw)
        return out
    LA0 = 2
    for c in range(LA0):
        for f in issue(c): f()
    goff = MOD + (2 if wo else 5) * 2560
    k(f"""s_mul_i32 s32, s23, 320
    s_add_u32 s32, s32, {goff}
    v_lshlrev_b32 v13, 4, v4          ; g*16
    s_lshr_b32 s33, s31, 1
    s_mul_i32 s33, s33, 40960
    s_mul_i32 s34, s23, 5120
    s_add_u32 s33, s33, s34
    s_add_u32 s33, s33, {X1}          ; X1 soffset
    s_and_b32 s34, s31, 1
    s_lshl_b32 s34, s34, 8
    v_lshl_add_u32 v14, v3, 4, s34    ; tok32*16
    v_lshrrev_b32 v15, 1, v4
    v_lshl_add_u32 v14, v15, 9, v14   ; + h*512
    v_and_b32 v15, 1, v4
    v_lshl_add_u32 v14, v15, 3, v14
    s_mul_i32 s34, s31, {16*1280}
    s_mul_i32 s35, s23, 160
    s_add_u32 s34, s34, s35
    v_mul_u32_u24 v15, 1280, v3
    v_lshl_add_u32 v15, v4, 3, v15
    v_add_u32 v21, 4096, v14
    v_add_u32 v7, {3*SS}, v5
    v_add_u32 v8, {6*SS}, v5""")
    epi_loads = []
    for j in range(5):
        epi_loads.append(f"buffer_load_dwordx4 v[{EX+4*j}:{EX+4*j+3}], v13, s[12:15], s32 offen offset:{64*j}")
        if wo: epi_loads.append(f"buffer_load_dwordx2 v[{EX+20+2*j}:{EX+21+2*j}], v15, s[16:19], s34 offen offset:{32*j}")
        else:  epi_loads.append(f"buffer_load_dwordx2 v[{EX+20+2*j}:{EX+21+2*j}], v14, s[12:15], s33 offen offset:{1024*j}" if j < 4 else
                                f"buffer_load_dwordx2 v[{EX+20+2*j}:{EX+21+2*j}], v21, s[12:15], s33 offen")
    if wo: epi_loads.append(lambda: prefetch_lin(k, 12, WGUP, 48*40960, 256, 0, 30, 40, dst='v34'))
    def reads(s):
        c = s // 4; ks = s % 4; slot = c % NS
        base = (5, 7, 8)[slot // 3]; so = (slot % 3) * SS
        return [f"ds_read_b128 v[{WF+(s%4)*20+j*4}:{WF+(s%4)*20+j*4+3}], v{base} offset:{so + ks*5120 + j*1024}" for j in range(5)]
    stamp(k, 1)
    k.wait_vm_id(dma[0])
    k("s_barrier")
    for q in range(R):
        for t in reads(q): k(t)
    stamp(k, 2)
    pend = issue(2); nxt = 3
    for s in range(NS32):
        if (s + R) % 4 == 0 and (s + R) // 4 < NC:
            cb = (s + R) // 4
            for t in pend:
                if callable(t): t()
                else: k(t)
            pend = []
            k.wait_vm_id(dma[cb])
            k("s_barrier")
            for _ in range(2):
                if nxt < NC and nxt <= cb - 1 + LA:
                    pend = pend + issue(nxt); nxt += 1
            if nxt >= NC and epi_loads and len(pend) <= 2: pend = pend + epi_loads; epi_loads = []
        c = s // 4
        fill = reads(s + R) if s + R < NS32 else []
        n = 1 if len(pend) <= 4 else 4
        fill = fill + pend[:n]; pend = pend[n:]
        mf = []
        for j in range(5):
            w = f"v[{WF+(s%4)*20+j*4}:{WF+(s%4)*20+j*4+3}]"
            xr = XA + (c % XD) * 16 + (s % 4) * 4
            d0 = ACC + j * 4
            mf.append(f"v_mfma_f32_16x16x32_bf16 v[{d0}:{d0+3}], {w}, a[{xr}:{xr+3}], {'v[%d:%d]' % (d0, d0+3) if s else 0}")
        interleave(k, mf, fill)
    for t in pend + epi_loads:
        if callable(t): t()
        else: k(t)
    stamp(k, 3)
    stamp(k, 4)
    k("s_mov_b32 s30, 0xffff0000")
    PK = TMP + 16
    if wo:
        k("v_mov_b32 v26, 0"); k("v_mov_b32 v27, 0")
        k(f"""v_and_b32 v22, 1, v4
        v_lshlrev_b32 v23, 3, v22
        v_sub_u32 v23, v14, v23
        v_lshl_add_u32 v22, v22, 10, v23  ; + (g&1)*1024
        v_add_u32 v23, 4096, v23""")
    else:
        k(f"""v_and_b32 v22, 1, v4
        v_lshlrev_b32 v23, 3, v22
        v_sub_u32 v23, v15, v23           ; tok*1280 + (g>>1)*16
        v_lshl_add_u32 v22, v22, 5, v23   ; + (g&1)*32""")
    for j in range(5):
        a0 = ACC + 4 * j; gq = EX + 4 * j; xr = EX + 20 + 2 * j; T = TMP + 8 * (j % 2); P_ = PK + 2 * j
        k(f"""v_cvt_pk_bf16_f32 v{T}, v{a0}, v{a0+1}
        v_cvt_pk_bf16_f32 v{T+1}, v{a0+2}, v{a0+3}
        v_lshlrev_b32 v{a0}, 16, v{T}
        v_and_b32 v{a0+1}, s30, v{T}
        v_lshlrev_b32 v{a0+2}, 16, v{T+1}
        v_and_b32 v{a0+3}, s30, v{T+1}
        v_mul_f32 v{a0}, v{a0}, v{gq}
        v_mul_f32 v{a0+1}, v{a0+1}, v{gq+1}
        v_mul_f32 v{a0+2}, v{a0+2}, v{gq+2}
        v_mul_f32 v{a0+3}, v{a0+3}, v{gq+3}
        v_cvt_pk_bf16_f32 v{T}, v{a0}, v{a0+1}
        v_cvt_pk_bf16_f32 v{T+1}, v{a0+2}, v{a0+3}
        v_lshlrev_b32 v{a0}, 16, v{T}
        v_and_b32 v{a0+1}, s30, v{T}
        v_lshlrev_b32 v{a0+2}, 16, v{T+1}
        v_and_b32 v{a0+3}, s30, v{T+1}
        v_lshlrev_b32 v{T+2}, 16, v{xr}
        v_and_b32 v{T+3}, s30, v{xr}
        v_lshlrev_b32 v{T+4}, 16, v{xr+1}
        v_and_b32 v{T+5}, s30, v{xr+1}
        v_add_f32 v{a0}, v{a0}, v{T+2}
        v_add_f32 v{a0+1}, v{a0+1}, v{T+3}
        v_add_f32 v{a0+2}, v{a0+2}, v{T+4}
        v_add_f32 v{a0+3}, v{a0+3}, v{T+5}
        v_cvt_pk_bf16_f32 v{P_}, v{a0}, v{a0+1}
        v_cvt_pk_bf16_f32 v{P_+1}, v{a0+2}, v{a0+3}""")
        if wo:
            k(f"""v_lshlrev_b32 v{a0}, 16, v{P_}
            v_and_b32 v{a0+1}, s30, v{P_}
            v_lshlrev_b32 v{a0+2}, 16, v{P_+1}
            v_and_b32 v{a0+3}, s30, v{P_+1}""")
            for e in range(4):
                k(f"v_add_f32 v26, v26, v{a0+e}")
                k(f"v_fmac_f32 v27, v{a0+e}, v{a0+e}")
        if j == 4:
            k(f"v_mov_b32 v{P_+2}, v{P_}"); k(f"v_mov_b32 v{P_+3}, v{P_+1}")
        if j % 2 == 1 or j == 4:
            q = PK + 2 * (j - 1 if j % 2 else j)
            k(f"v_permlane16_swap_b32 v{q}, v{q+2}")
            k(f"v_permlane16_swap_b32 v{q+1}, v{q+3}")
            jj = j - 1 if j % 2 else j
            if wo:
                if j < 4: k(f"buffer_store_dwordx4 v[{q}:{q+3}], v22, s[12:15], s33 offen offset:{1024*jj} sc1")
                else: k(f"buffer_store_dwordx4 v[{q}:{q+3}], v23, s[12:15], s33 offen sc1")
            else:
                k(f"buffer_store_dwordx4 v[{q}:{q+3}], v{22 if j < 4 else 23}, s[16:19], s34 offen offset:{32*jj}")
    if wo:
        for r in (26, 27):
            k(f"""v_mov_b32 v28, v{r}
            v_permlane16_swap_b32 v{r}, v28
            v_add_f32 v{r}, v{r}, v28
            v_mov_b32 v28, v{r}
            v_permlane32_swap_b32 v{r}, v28
            v_add_f32 v{r}, v{r}, v28""")
        k(f"""s_lshl_b32 s38, s31, 10           ; T16*16*64
        s_lshl_b32 s39, s23, 3
        s_add_u32 s38, s38, s39
        s_add_u32 s38, s38, {ST}
        v_lshlrev_b32 v28, 6, v3
        v_mov_b32 v29, 0x7ffffff0
        v_cmp_gt_u32 vcc, 16, v2
        v_cndmask_b32 v28, v29, v28, vcc
        buffer_store_dwordx2 v[26:27], v28, s[12:15], s38 offen""")
    stamp_flush(k, 5)
    k.label(f"L_{nm}_end")
    k("s_endpgm")
    return k, LDS

def gen_k4():
    k = Kern("k4_ffn_kernel")
    NS = 4; SS = 40960; LA = 3
    LDS = NS * SS
    ACC = 32; XF = 80; WF = 92; GWR = 128; SWR = 176; TMP = 224; STT = 24; R = 2
    stamp(k, 0)
    k(f"""s_cmp_ge_u32 s2, 256
    s_cbranch_scc1 L_k4_end
    s_load_dwordx2 s[6:7], s[0:1], {ARG['ws']}
    s_and_b32 s20, s2, 7
    s_lshr_b32 s21, s2, 3
{MAP14}
    v_lshrrev_b32 v1, 6, v0
    v_and_b32 v2, 63, v0
    v_readfirstlane_b32 s24, v1       ; wave
    v_lshrrev_b32 v20, 5, v2          ; h
    v_lshlrev_b32 v5, 4, v2           ; lane*16
    s_and_b32 s25, s24, 3             ; tm
    s_lshr_b32 s26, s24, 2            ; tn
    s_lshr_b32 s27, s24, 1
    s_lshl_b32 s28, s22, 2
    s_add_u32 s27, s27, s28
    s_mul_i32 s27, s27, 40960
    s_and_b32 s28, s24, 1
    s_lshl_b32 s28, s28, 11
    s_add_u32 s27, s27, s28
    s_add_u32 s27, s27, {X1}          ; X src
    s_lshl_b32 s28, s24, 11
    s_mul_i32 s29, s24, 3             ; q0
    s_mul_i32 s30, s23, {6*40960}
    s_add_u32 s30, s30, {WGUP}""")
    for i in range(3):
        k(f"""s_add_u32 s31, s29, {i}
        s_lshr_b32 s32, s31, 2
        s_mul_i32 s32, s32, 40960
        s_and_b32 s31, s31, 3
        s_lshl_b32 s31, s31, 10
        s_add_u32 s32, s32, s31
        s_add_u32 s{40+i}, s32, s30""")
    k(f"""s_lshl_b32 s29, s29, 10
    s_add_u32 s29, s29, 16384""")
    k.waitall()
    srd(k, 12, 6, NB['ws'])
    dma = {}
    def issue(c):
        slot = c % NS
        out = []
        def fx():
            k(f"s_add_u32 m0, s28, {slot*SS}")
            k(f"s_add_u32 s33, s27, {c*4096}")
            k(f"buffer_load_dwordx4 v5, s[12:15], s33 offen lds")
            k(f"buffer_load_dwordx4 v5, s[12:15], s33 offen offset:1024 lds")
        out.append(fx)
        for i in range(3):
            def fw(i=i):
                k(f"s_add_u32 m0, s29, {slot*SS + i*1024}")
                k(f"s_add_u32 s33, s{40+i}, {c*4096}")
                dma[c] = k(f"buffer_load_dwordx4 v5, s[12:15], s33 offen lds")
            out.append(fw)
        for f in out: f.c = c
        return out
    for f in issue(0): f()
    k(f"""v_and_b32 v7, 31, v2
    v_lshlrev_b32 v7, 6, v7
    v_lshl_add_u32 v7, v20, 5, v7
    s_lshl_b32 s34, s22, 2
    s_add_u32 s34, s34, s25           ; T32
    s_lshl_b32 s35, s34, 11
    s_add_u32 s35, s35, {ST}
    buffer_load_dwordx4 v[{TMP}:{TMP+3}], v7, s[12:15], s35 offen
    buffer_load_dwordx4 v[{TMP+4}:{TMP+7}], v7, s[12:15], s35 offen offset:16""")
    for f in issue(1): f()
    k(f"""s_lshl_b32 s35, s25, 12
    v_add_u32 v8, s35, v5
    s_mul_i32 s35, s26, 12288
    s_add_u32 s35, s35, 16384
    v_add_u32 v12, s35, v5""")
    for g in range(1, 4):
        k(f"v_add_u32 v{8+g}, {g*SS}, v8")
        k(f"v_add_u32 v{12+g}, {g*SS}, v12")
    for i in range(48): k(f"v_mov_b32 v{ACC+i}, 0")
    def reads(s):
        c = s // 4; ks = s % 4; slot = c % NS
        out = [f"ds_read_b128 v[{XF+(s%3)*4}:{XF+(s%3)*4+3}], v{8+slot} offset:{ks*1024}"]
        for j in range(3):
            d = WF + (s % 3) * 12 + j * 4
            out.append(f"ds_read_b128 v[{d}:{d+3}], v{12+slot} offset:{j*4096 + ks*1024}")
        return out
    def stats():
        b = TMP
        k(f"""v_add_f32 v{b}, v{b}, v{b+2}
        v_add_f32 v{b+1}, v{b+1}, v{b+3}
        v_add_f32 v{b+4}, v{b+4}, v{b+6}
        v_add_f32 v{b+5}, v{b+5}, v{b+7}
        v_add_f32 v{b}, v{b}, v{b+4}
        v_add_f32 v{b+1}, v{b+1}, v{b+5}
        v_mov_b32 v{b+2}, v{b}
        v_mov_b32 v{b+3}, v{b+1}
        v_permlane32_swap_b32 v{b}, v{b+2}
        v_permlane32_swap_b32 v{b+1}, v{b+3}
        v_add_f32 v{b}, v{b}, v{b+2}
        v_add_f32 v{b+1}, v{b+1}, v{b+3}
        v_mul_f32 v{b}, 0x3acccccd, v{b}
        v_mul_f32 v{b+1}, 0x3acccccd, v{b+1}
        v_fma_f32 v{b+1}, -v{b}, v{b}, v{b+1}
        v_max_f32 v{b+1}, 0, v{b+1}""")
        bf16r(k, b, b); bf16r(k, b + 1, b + 1)
        k(f"v_add_f32 v{b+1}, 0x3727c5ac, v{b+1}")
        bf16r(k, b + 1, b + 1)
        k(f"v_sqrt_f32 v{b+1}, v{b+1}")
        bf16r(k, b + 1, b + 1)
        k(f"v_rcp_f32 v{STT}, v{b+1}")
        k(f"v_sub_f32 v{STT+1}, 0, v{b}")
    stamp(k, 1)
    k.wait_vm_id(dma[0])
    k("s_barrier")
    stamp(k, 2)
    for q in range(R):
        for t in reads(q): k(t)
    pend = issue(2) + issue(3)
    gs_id = None
    for s in range(40):
        if (s + R) % 4 == 0 and (s + R) // 4 <= 10:
            cb = (s + R) // 4
            while cb < 10 and cb not in dma or (cb < 10 and any(getattr(f, 'c', None) == cb for f in pend)):
                f = pend.pop(0); f()
            if cb < 10: k.wait_vm_id(dma[cb])
            if cb == 10: k.wait_vm_id(gs_id)
            k("s_barrier")
            stamp(k, 2 + cb)
            if cb >= 2 and cb - 2 + NS <= 9: pend = pend + issue(cb - 2 + NS)
            if cb == 9:
                pend = pend + [stats]
            if cb == 8:
                def fg():
                    nonlocal gs_id
                    k(f"""s_and_b32 s33, s24, 1
                    s_mul_i32 s35, s33, 12288
                    s_lshl_b32 s33, s33, 10
                    s_add_u32 m0, s33, {2*SS}
                    s_mul_i32 s33, s23, 768
                    s_add_u32 s33, s33, s35
                    s_add_u32 s33, s33, {GSUM}""")
                    gs_id = k(f"buffer_load_dwordx4 v5, s[12:15], s33 offen lds")
                pend = pend + [fg, lambda: prefetch_lin(k, 12, WDP, 8*48*5120, 512, 0, 26, 36, dst='v30', full=True)]
        fill = reads(s + R) if s + R < 40 else []
        if s >= 38:
            if s == 38:
                k(f"""s_mul_i32 s33, s26, 384
                s_add_u32 s33, s33, {2*SS}
                v_lshlrev_b32 v16, 4, v20
                v_add_u32 v16, s33, v16""")
            for a in (2 * (s - 38), 2 * (s - 38) + 1):
                for j in range(3):
                    fill.append(f"ds_read_b128 v[{GWR+16*j+4*a}:{GWR+16*j+4*a+3}], v16 offset:{j*128 + a*32}")
                    fill.append(f"ds_read_b128 v[{SWR+16*j+4*a}:{SWR+16*j+4*a+3}], v16 offset:{1024 + j*128 + a*32}")
        n = min(len(pend), 2)
        fill = fill + pend[:n]; pend = pend[n:]
        mf = []
        for j in range(3):
            w = f"v[{WF+(s%3)*12+j*4}:{WF+(s%3)*12+j*4+3}]"; x = f"v[{XF+(s%3)*4}:{XF+(s%3)*4+3}]"
            d = f"v[{ACC+16*j}:{ACC+16*j+15}]"
            mf.append(f"v_mfma_f32_32x32x16_bf16 {d}, {w}, {x}, {d}")
        interleave(k, mf, fill)
    k(f"""s_mul_i32 s31, s23, 6
    s_mul_i32 s32, s26, 3
    s_add_u32 s31, s31, s32           ; b16 base
    s_mul_i32 s32, s34, {2*48*1024}
    s_add_u32 s29, s32, {ACT}
    v_bfe_u32 v3, v2, 4, 1
    v_mul_u32_u24 v4, {48*1024}, v3
    v_and_b32 v3, 15, v2
    v_lshl_add_u32 v4, v3, 4, v4
    v_lshl_add_u32 v4, v20, 8, v4
    s_mov_b32 s35, 0xbfb8aa3b""")
    for j in range(3):
        k(f"""s_add_u32 s32, s31, {j}
        s_lshl_b32 s33, s32, 9            ; b16*512 = s32*1024 + (b16&1)*512
        s_add_u32 s33, s33, s29""")
        r = ACC + 16 * j; gw = GWR + 16 * j; sw = SWR + 16 * j
        T = TMP + 8 * (j % 2); O = TMP + 16 + 4 * j
        for e in range(16): k(f"v_fmac_f32 v{r+e}, v{gw+e}, v{STT+1}")
        for e in range(16): k(f"v_fmac_f32 v{sw+e}, v{r+e}, v{STT}")
        for e in range(8): k(f"v_mul_f32 v{T+e}, s35, v{sw+e}")
        for e in range(8): k(f"v_exp_f32 v{T+e}, v{T+e}")
        for e in range(8): k(f"v_add_f32 v{T+e}, 1.0, v{T+e}")
        for e in range(8): k(f"v_rcp_f32 v{T+e}, v{T+e}")
        for e in range(8): k(f"v_mul_f32 v{sw+e}, v{sw+e}, v{sw+8+e}")
        for e in range(8): k(f"v_mul_f32 v{sw+e}, v{sw+e}, v{T+e}")
        for e in range(4): k(f"v_cvt_pk_bf16_f32 v{O+e}, v{sw+2*e}, v{sw+2*e+1}")
        k(f"buffer_store_dwordx4 v[{O}:{O+3}], v4, s[12:15], s33 offen sc1")
    stamp_flush(k, 13)
    k.label("L_k4_end")
    k("s_endpgm")
    return k, LDS

def all_kernels():
    k0 = gen_k0()
    k1, l1 = gen_gemm32('qkv')
    k2, l2 = gen_k2()
    k3, l3 = gen_gemm16('wo')
    k4, l4 = gen_k4()
    k5, l5 = gen_gemm16('down')
    return [(k0, 256, 256, 4096), (k1, 256, 512, l1), (k2, 256, 512, l2), (k3, 256, 256, l3), (k4, 256, 512, l4), (k5, 256, 256, l5)]

if __name__ == "__main__":
    if len(sys.argv) > 1 and sys.argv[1] == "prof": PROF = True
    for e in sys.argv[2:]: EXP.add(e)
    open("cur" + "_".join([""] + sys.argv[2:]) + ".s", "w").write(build_file(all_kernels()))
```

```python
import sys
sys.path.insert(0, "work")
import gen as G
from gen import *

CNT = 0x1BD8000
C1, C2, C3, C4, CWO, CRP = 0, 16, 32, 48, 64, 80
RP = 131072
MPROF = False
LDX = "sc1"

def reset(k):
    k.vmq = []; k.lgq = []; k.pend_vm = {}; k.pend_lg = {}

def mstamp(k, slot, wave=0):
    if not MPROF: return
    lab = f"L_ms{slot}_{len(k.lines)}"
    k.raw(f"""    s_cmp_lg_u32 s3, {wave}
    s_cbranch_scc1 {lab}
    s_memrealtime s[100:101]
    s_waitcnt lgkmcnt(0)
    s_lshl_b32 s101, s2, 2
    s_add_u32 s101, s101, {G.PROFOFF + slot * 1024}
    v_mov_b32 v255, s100
    v_mov_b32 v254, s101
    s_memtime s[100:101]
    s_waitcnt lgkmcnt(0)
    v_mov_b32 v253, s100
    s_mov_b64 exec, 1
    global_store_dword v254, v255, s[84:85]
    v_add_u32 v254, 16384, v254
    global_store_dword v254, v253, s[84:85]
    s_mov_b64 exec, -1
{lab}:""")
    k.maxv = max(k.maxv, 255); k.maxs = max(k.maxs, 101)
    k.vm_extra = True

def signal(k, sidx, name):
    k.waitall()
    k.label(f"L_sigb_{name}")
    k("s_barrier")
    k(f"""s_cmp_lg_u32 s3, 0
    s_cbranch_scc1 L_sig_{name}
    s_lshl_b32 s{sidx}, s{sidx}, 7
    s_add_u32 s{sidx}, s{sidx}, {CNT}
    v_mov_b32 v250, s{sidx}
    v_mov_b32 v251, 1
    s_mov_b64 exec, 1
    global_atomic_add v250, v251, s[84:85] sc1
    s_mov_b64 exec, -1""")
    k.label(f"L_sig_{name}")
    reset(k); k._nop(2)

SLP = 6
def wait(k, name, poller, vidx, vtgt, nl, barrier=True, slp=None):
    k(f"""s_cmp_lg_u32 s3, {poller}
    s_cbranch_scc1 L_wt_{name}
    v_lshlrev_b32 v250, 7, v{vidx}
    v_add_u32 v250, {CNT}, v250
    s_mov_b32 s82, 0x200000
    s_mov_b64 exec, {(1 << nl) - 1}""")
    k.label(f"L_wl_{name}")
    k.raw(f"""    global_load_dword v251, v250, s[84:85] sc1
    s_waitcnt vmcnt(0)
    v_cmp_lt_u32 vcc, v251, v{vtgt}
    s_nop 4
    s_cbranch_vccz L_wd_{name}
    s_sleep {slp or SLP}
    s_sub_u32 s82, s82, 1
    s_cmp_lg_u32 s82, 0
    s_cbranch_scc1 L_wl_{name}
L_wd_{name}:
    s_mov_b64 exec, -1""")
    k.label(f"L_wt_{name}")
    k._nop(2)
    if barrier: k("s_barrier")

def p1(k):
    NSLOT = 5; SS = 16384; NT = 2; GRP = 4
    XHB = 6 * SS; GSB_L = XHB + 49152
    k(f"""s_and_b32 s20, s2, 7
    s_lshr_b32 s21, s2, 3
{MAP14}
    s_mov_b32 s24, s3
    s_mov_b32 s30, 0xffff0000
    v_lshrrev_b32 v20, 5, v2          ; h
    v_lshlrev_b32 v5, 4, v2
    s_cmp_ge_u32 s23, 15
    s_cbranch_scc1 L_p1_idle
    s_cmp_ge_u32 s24, 4
    s_cbranch_scc1 L_p1_prod""")
    st0 = snap(k)
    ACC = 32; XF = 128; WF = 144; TMP = 168
    srd(k, 8, 88, NB['wqkv'])
    k(f"""v_lshrrev_b32 v13, 4, v2
    v_and_b32 v14, 15, v2
    v_lshlrev_b32 v15, 2, v13
    v_xor_b32 v14, v14, v15
    v_mul_u32_u24 v13, 3840, v13
    v_lshl_add_u32 v13, v14, 4, v13
    s_mul_i32 s40, s24, {16*3840}
    s_lshl_b32 s41, s23, 8
    s_add_u32 s40, s40, s41
    s_lshl_b32 s41, s24, 12""")
    dma_ids = {}
    def wdma(c):
        slot = c % NSLOT
        out = []
        for i in range(4):
            def f(i=i):
                k(f"s_add_u32 m0, s41, {slot*SS + i*1024}")
                k(f"s_add_u32 s42, s40, {(64*c + 4*i)*3840}")
                dma_ids[c] = k(f"buffer_load_dwordx4 v13, s[8:11], s42 offen lds")
            out.append(f)
        return out
    LAW = 3
    for c in range(LAW):
        for f in wdma(c): f()
    k(f"""s_lshr_b32 s25, s24, 1            ; tm
    s_and_b32 s26, s24, 1             ; tn
    v_bfe_u32 v21, v2, 4, 1
    v_bfe_u32 v22, v2, 2, 2
    v_and_b32 v23, 3, v2
    v_lshlrev_b32 v24, 11, v20
    v_lshl_add_u32 v24, v22, 8, v24
    v_lshl_add_u32 v24, v21, 5, v24
    v_lshl_add_u32 v24, v23, 3, v24
    s_lshl_b32 s27, s26, 1""")
    for j in range(2):
        k(f"s_add_u32 s28, s27, {j}")
        k(f"v_xor_b32 v25, s28, v22")
        k(f"v_lshl_add_u32 v{8+j*2}, v25, 6, v24")
        k(f"v_add_u32 v{9+j*2}, {GRP*SS}, v{8+j*2}")
    k(f"""s_lshl_b32 s27, s25, 11
    s_add_u32 s27, s27, {XHB}
    v_add_u32 v12, s27, v5""")
    for i in range(64): k(f"v_mov_b32 v{ACC+i}, 0")
    def reads(s):
        c = s // 4; ks = s % 4; slot = c % NSLOT
        grp = slot // GRP; so = (slot % GRP) * SS
        out = []
        for i in range(2):
            d = XF + (s % 2) * 8 + i * 4
            out.append(f"ds_read_b128 v[{d}:{d+3}], v12 offset:{(c%3)*16384 + ks*4096 + i*1024}")
        for j in range(NT):
            for a in range(2):
                d = WF + (s % 2) * 12 + j * 4 + a * 2
                out.append(f"ds_read_b64_tr_b16 v[{d}:{d+1}], v{8+j*2+grp} offset:{so + ks*4096 + a*1024}")
        return [out[0]] + out[2:4] + [out[1]] + out[4:]
    k.wait_vm_id(dma_ids[0])
    k("s_barrier")
    for t in reads(0): k(t)
    k("s_cmp_ge_u32 s23, 10")
    k("s_cbranch_scc1 L_p1_v")
    st1 = snap(k); dma1 = dict(dma_ids)
    def mainloop(swap):
        pend = wdma(LAW)
        for s in range(40):
            c = s // 4
            if s % 4 == 3 and c < 9:
                k.wait_vm_id(dma_ids[c + 1]); k.wait_lg(0)
                k("s_barrier")
                if c + 1 + LAW <= 9: pend = wdma(c + 1 + LAW)
            fill = reads(s + 1) if s + 1 < 40 else []
            nd = min(len(pend), 2)
            fill = fill + pend[:nd]; pend = pend[nd:]
            fi = 0
            for j in range(NT):
                for i in range(2):
                    w = f"v[{WF+(s%2)*12+j*4}:{WF+(s%2)*12+j*4+3}]"; x = f"v[{XF+(s%2)*8+i*4}:{XF+(s%2)*8+i*4+3}]"
                    d0 = ACC + 16 * (i * NT + j); d = f"v[{d0}:{d0+15}]"
                    k(f"v_mfma_f32_32x32x16_bf16 {d}, {x if swap else w}, {w if swap else x}, {d}")
                    for _ in range(2):
                        if fi < len(fill):
                            f = fill[fi]; fi += 1
                            if callable(f): f()
                            else: k(f)
    mainloop(False)
    k(f"""s_cmp_ge_u32 s23, 5
    s_cselect_b32 s29, {KB-QB}, 0
    s_cselect_b32 s31, 5, 0
    s_add_u32 s29, s29, {QB}
    s_sub_u32 s31, s23, s31
    s_lshl_b32 s31, s31, 12
    s_lshl_b32 s32, s26, 11
    s_add_u32 s29, s29, s31
    s_add_u32 s29, s29, s32
    s_lshl_b32 s32, s22, 3
    s_lshl_b32 s33, s25, 2
    s_add_u32 s32, s32, s33
    s_mul_i32 s32, s32, 20480
    s_add_u32 s29, s29, s32
    s_add_u32 s31, s29, 40960
    v_bfe_u32 v3, v2, 4, 1
    v_mul_u32_u24 v4, 20480, v3
    v_and_b32 v3, 15, v2
    v_lshl_add_u32 v4, v3, 4, v4
    v_lshl_add_u32 v4, v20, 8, v4""")
    n = 0
    for j in range(2):
        for i in range(2):
            for ap in range(2):
                r = ACC + 16 * (i * NT + j) + 8 * ap
                t = TMP + 4 * (n % 4); n += 1
                for e in range(4): k(f"v_cvt_pk_bf16_f32 v{t+e}, v{r+2*e}, v{r+2*e+1}")
                k(f"v_permlane32_swap_b32 v{t}, v{t+2}")
                k(f"v_permlane32_swap_b32 v{t+1}, v{t+3}")
                k(f"buffer_store_dwordx4 v[{t}:{t+3}], v4, s[12:15], s{29 if i == 0 else 31} offen offset:{j*1024 + ap*512} sc1")
    k(f"s_add_u32 s22, s22, {C1}")
    k("s_branch L_p1_done")
    k.label("L_p1_v")
    restore(k, st1); dma_ids.clear(); dma_ids.update(dma1)
    mainloop(True)
    k(f"""s_sub_u32 s31, s23, 10
    s_lshl_b32 s31, s31, 7
    s_lshl_b32 s32, s26, 6
    s_add_u32 s31, s31, s32
    s_lshl_b32 s32, s22, 2
    s_lshl_b32 s33, s25, 1
    s_add_u32 s32, s32, s33
    s_mul_i32 s32, s32, 1280
    s_add_u32 s29, s32, {VB}
    v_and_b32 v3, 31, v2
    v_add_u32 v5, s31, v3
    s_mov_b32 s33, 81920""")
    n = 0
    for j in range(2):
        k(f"""v_add_u32 v6, {32*j}, v5
        v_mul_u32_u24 v7, 0xcccd, v6
        v_lshrrev_b32 v7, 20, v7
        v_mul_u32_u24 v8, 20, v7
        v_sub_u32 v8, v6, v8
        v_mul_lo_u32 v7, v7, s33
        v_lshl_add_u32 v7, v8, 4, v7
        v_cmp_gt_u32 vcc, 16, v8
        v_lshlrev_b32 v9, 8, v20
        v_lshlrev_b32 v10, 6, v20
        v_add_u32 v10, 768, v10
        v_cndmask_b32 v9, v10, v9, vcc
        v_add_u32 v7, v7, v9
        v_mov_b32 v9, 128
        v_mov_b32 v10, 512
        v_cndmask_b32 v9, v9, v10, vcc
        v_add_u32 v9, v7, v9""")
        for i in range(2):
            for a1 in range(2):
                t = TMP + 4 * (n % 4); n += 1
                r0 = ACC + 16 * (i * NT + j) + 4 * a1; r1 = r0 + 8
                k(f"v_cvt_pk_bf16_f32 v{t}, v{r0}, v{r0+1}")
                k(f"v_cvt_pk_bf16_f32 v{t+1}, v{r0+2}, v{r0+3}")
                k(f"v_cvt_pk_bf16_f32 v{t+2}, v{r1}, v{r1+1}")
                k(f"v_cvt_pk_bf16_f32 v{t+3}, v{r1+2}, v{r1+3}")
                k(f"buffer_store_dwordx4 v[{t}:{t+3}], v{7 if a1 == 0 else 9}, s[12:15], s29 offen offset:{1280*i} sc1")
    k(f"s_add_u32 s22, s22, {C1}")
    k("s_branch L_p1_done")
    k.label("L_p1_prod")
    restore(k, st0)
    GSR = 32; TMP = 64; OUT = 80; XR = 104; D = 4; LAX = 2
    k(f"""s_sub_u32 s24, s24, 4
    v_lshrrev_b32 v3, 2, v2
    v_and_b32 v4, 3, v2
    v_lshlrev_b32 v6, 8, v3
    v_lshl_add_u32 v6, v4, 4, v6
    v_cmp_gt_u32 vcc, 40, v2
    v_mov_b32 v7, 0x7ffffff0
    v_cndmask_b32 v6, v7, v6, vcc
    s_lshl_b32 s25, s24, 6
    s_add_u32 s26, s25, {MOD + 2560}
    s_add_u32 s25, s25, {MOD}
    buffer_load_dwordx4 v[{GSR}:{GSR+3}], v6, s[12:15], s26 offen
    buffer_load_dwordx4 v[{GSR+4}:{GSR+7}], v6, s[12:15], s25 offen
    s_mul_i32 s26, s22, {4*40960}
    s_lshl_b32 s27, s24, 10
    s_add_u32 s26, s26, s27
    s_add_u32 s26, s26, {XN}""")
    wr_ids = {}
    def issue(c):
        if c > 9: return
        for t in range(4):
            r = XR + (c % D) * 16 + t * 4
            k(f"s_add_u32 s29, s26, {t*40960 + c*4096}")
            k(f"buffer_load_dwordx4 v[{r}:{r+3}], v5, s[12:15], s29 offen")
    for c in range(LAX): issue(c)
    k(f"""s_mul_i32 s25, s24, 1280
    s_add_u32 s25, s25, {GSB_L}
    v_lshlrev_b32 v14, 7, v3
    v_lshrrev_b32 v15, 1, v4
    v_lshl_add_u32 v14, v15, 6, v14
    v_and_b32 v15, 1, v4
    v_lshl_add_u32 v14, v15, 4, v14
    v_add_u32 v14, s25, v14
    v_cmp_gt_u32 vcc, 40, v2
    s_and_saveexec_b64 s[34:35], vcc
    ds_write_b128 v14, v[{GSR}:{GSR+3}]
    ds_write_b128 v14, v[{GSR+4}:{GSR+7}] offset:32
    s_mov_b64 exec, s[34:35]
    v_lshlrev_b32 v15, 6, v20
    v_add_u32 v15, s25, v15
    s_lshl_b32 s25, s24, 12
    s_add_u32 s25, s25, {XHB}
    v_add_u32 v16, s25, v5""")
    k.wait_lg(0)
    def gs_reads(c):
        b = GSR + (c % 2) * 16
        for i in range(4): k(f"ds_read_b128 v[{b+4*i}:{b+4*i+3}], v15 offset:{c*128 + 16*i}")
    def norm(c):
        b = GSR + (c % 2) * 16
        for t in range(4):
            r = XR + (c % D) * 16 + t * 4; o = OUT + t * 4; T = TMP + (t % 2) * 8
            for d in range(8):
                k(f"v_fma_mix_f32 v{T+d}, v{r+d//2}, v{b+d}, v{b+8+d} op_sel:[{d%2},0,0] op_sel_hi:[1,0,0]")
            for d in range(4): k(f"v_cvt_pk_bf16_f32 v{o+d}, v{T+2*d}, v{T+2*d+1}")
            wr_ids[c] = k(f"ds_write_b128 v16, v[{o}:{o+3}] offset:{(c%3)*16384 + t*1024}")
    gs_reads(0); gs_reads(1)
    issue(LAX)
    norm(0)
    issue(LAX + 1)
    gs_reads(2)
    norm(1)
    k.wait_lg_id(wr_ids[0])
    k("s_barrier")
    for p in range(9):
        issue(p + 2 + LAX)
        if p == 7:
            k(f"""s_mul_i32 s46, s22, 15
            s_add_u32 s46, s46, s23
            s_lshl_b32 s46, s46, 13
            v_lshlrev_b32 v168, 7, v2
            s_cmp_eq_u32 s24, 0
            s_cselect_b32 s48, s92, s94
            s_cselect_b32 s49, s93, s95
            s_cmp_eq_u32 s24, 2
            s_cselect_b32 s48, s96, s48
            s_cselect_b32 s49, s97, s49
            s_and_b32 s49, s49, 0xffff
            s_mov_b32 s50, {NB['wg']}
            s_mov_b32 s51, 0x00020000
            buffer_load_dword v169, v168, s[48:51], s46 offen""")
        if p + 3 <= 9: gs_reads(p + 3)
        if p + 2 <= 9: norm(p + 2)
        k.wait_lg_id(wr_ids[p + 1])
        k("s_barrier")
    k("s_branch L_sigb_p1")
    k.label("L_p1_idle")
    restore(k, st0)
    k(f"""s_lshl_b32 s16, s24, 4
    s_add_u32 s16, s16, s22
    s_mov_b32 s22, {CWO}
    s_cmp_ge_u32 s16, 40
    s_cbranch_scc1 L_p1_done
    s_mul_i32 s17, s24, 20480
    s_mul_i32 s20, s16, 26
    s_lshr_b32 s20, s20, 8
    s_mul_i32 s21, s20, 10
    s_sub_u32 s21, s16, s21
    s_mul_i32 s25, s20, {160*1280}
    s_lshl_b32 s26, s21, 7
    s_add_u32 s25, s25, s26
    v_lshrrev_b32 v8, 3, v2
    v_mul_u32_u24 v8, 1280, v8
    v_and_b32 v9, 7, v2
    v_lshl_add_u32 v8, v9, 4, v8""")
    srd(k, 28, 90, NB['wo'])
    for i in range(20):
        k(f"s_add_u32 m0, s17, {1024*i}")
        k(f"buffer_load_dwordx4 v8, s[28:31], s25 offen lds")
        k(f"s_add_u32 s25, s25, {8*1280}")
    k("""v_lshrrev_b32 v4, 4, v2
    v_bfe_u32 v5, v2, 2, 2
    v_and_b32 v6, 3, v2
    v_lshlrev_b32 v7, 4, v2""")
    for sp in range(5):
        k(f"""v_add_u32 v9, {4*sp}, v4
        v_mul_u32_u24 v10, 52, v9
        v_lshrrev_b32 v10, 8, v10
        v_mul_u32_u24 v10, 20, v10
        v_lshl_add_u32 v10, v9, 2, v10
        v_add_u32 v10, v10, v5
        v_lshlrev_b32 v10, 7, v10
        v_lshl_add_u32 v10, v6, 3, v10
        v_add_u32 v{12+sp}, s17, v10""")
    k.wait_vm(0)
    k(f"""s_mul_i32 s20, s20, {5*5120}
    s_add_u32 s20, s20, {WOP}
    s_lshl_b32 s21, s21, 2""")
    for f in range(4):
        k(f"""s_add_u32 s32, s21, {f}
        s_mul_i32 s33, s32, 52
        s_lshr_b32 s33, s33, 8
        s_mul_i32 s34, s33, 5
        s_sub_u32 s34, s32, s34
        s_mul_i32 s33, s33, {20*5120}
        s_lshl_b32 s34, s34, 10
        s_add_u32 s33, s33, s34
        s_add_u32 s33, s33, s20""")
        for sp in range(5):
            d = 24 + (f % 2) * 20 + sp * 4
            for a_ in range(2):
                k(f"ds_read_b64_tr_b16 v[{d+2*a_}:{d+2*a_+1}], v{12+sp} offset:{a_*2560 + f*32}")
        for sp in range(5):
            d = 24 + (f % 2) * 20 + sp * 4
            k(f"buffer_store_dwordx4 v[{d}:{d+3}], v7, s[12:15], s33 offen sc1")
            if sp < 4: k(f"s_add_u32 s33, s33, 5120")
    k.label("L_p1_done")
    reset(k); k._nop(12)
    signal(k, 22, "p1")

def p2(k):
    KL = 0; VL = 30720
    S = [24, 96]
    QF = 168; KF = 176; T = 192; VF = 60; O = [84, 132]
    k(f"""s_and_b32 s20, s2, 7
    s_lshl_b32 s21, s20, 1
    s_bfe_u32 s20, s2, 0x10003
    s_add_u32 s21, s21, s20           ; m
    s_lshr_b32 s22, s2, 4             ; qb
    s_mov_b32 s24, s3
    v_and_b32 v3, 15, v2
    v_lshrrev_b32 v4, 4, v2
    v_lshlrev_b32 v7, 4, v2""")
    k(f"""s_cmp_ge_u32 s24, 4
    s_cbranch_scc1 L_p2_rpB
    s_cmp_ge_u32 s2, 240
    s_cbranch_scc1 L_p2_norp1""")
    srd(k, 28, 92, NB['wg']); srd(k, 4, 94, NB['wu'])
    repackgu_issue(k, 2, 24, RP, 28, 4, 100, 40, 2, 12, RP + 6*4096)
    k("s_branch L_p2_norp1")
    k.label("L_p2_rpB")
    k(f"""s_sub_u32 s16, s24, 4
    s_lshl_b32 s16, s16, 8
    s_add_u32 s16, s16, s2
    s_add_u32 s16, s16, 200
    s_lshl_b32 s17, s24, 12
    s_add_u32 s17, s17, {RP}
    s_cmp_ge_u32 s16, 680
    s_cbranch_scc1 L_p2_norp1""")
    srd(k, 28, 96, NB['wd'])
    rid = repack16_issue(k, 16, 17, 28, 28, 100, 40, 2)
    k.label("L_p2_norp1")
    reset(k); k._nop(4)
    k(f"""s_lshl_b32 s25, s22, 3
    s_add_u32 s25, s25, s24
    s_mul_i32 s26, s21, 1280
    s_lshl_b32 s27, s22, 3
    s_mul_i32 s28, s24, 3
    s_add_u32 s27, s27, s28
    s_sub_u32 s27, s27, 16
    s_mul_i32 s28, s24, 3840""")
    for t in range(4):
        k(f"""v_add_u32 v12, {64*t}, v2
        v_mul_u32_u24 v13, 820, v12
        v_lshrrev_b32 v13, 16, v13
        v_mul_u32_u24 v14, 80, v13
        v_sub_u32 v14, v12, v14
        v_add_u32 v13, s27, v13
        v_cmp_gt_i32 vcc, 0, v13
        v_mul_i32_i24 v13, 20480, v13
        v_lshl_add_u32 v13, v14, 4, v13
        v_mov_b32 v14, 0x7ffffff0
        v_cndmask_b32 v{8+t}, v13, v14, vcc""")
    k(f"""v_sub_u32 v19, s22, v2
    v_max_i32 v19, 0, v19
    v_mov_b32 v21, 15
    v_cmp_eq_u32 vcc, 3, v2
    v_mov_b32 v22, {CWO}
    v_cndmask_b32 v19, v19, v22, vcc
    v_mov_b32 v22, 16
    v_cndmask_b32 v21, v21, v22, vcc""")
    wait(k, "p2", 7, 19, 21, 4)
    mstamp(k, 2)
    k(f"s_add_u32 s29, s26, {KB}")
    for t in range(4):
        k(f"s_add_u32 m0, s28, {1024*t}")
        if t == 3: k("s_mov_b32 exec_hi, 0x0000ffff")
        k(f"buffer_load_dwordx4 v{8+t}, s[12:15], s29 offen {LDX} lds")
    k("s_mov_b64 exec, -1")
    k(f"""v_min_u32 v12, 2, v4
    v_lshlrev_b32 v12, 8, v12
    v_lshl_add_u32 v12, v3, 4, v12
    s_mul_i32 s30, s25, 20480
    s_add_u32 s30, s30, s26
    s_add_u32 s30, s30, {QB}
    buffer_load_dwordx4 v[{QF}:{QF+3}], v12, s[12:15], s30 offen {LDX}
    buffer_load_dwordx4 v[{QF+4}:{QF+7}], v12, s[12:15], s30 offen offset:512 {LDX}""")
    k(f"""s_lshr_b32 s31, s24, 2
    s_and_b32 s32, s24, 3
    s_lshl_b32 s33, s21, 1
    s_add_u32 s33, s33, s31
    s_mul_i32 s33, s33, 81920
    s_add_u32 s33, s33, {VB}
    s_mul_i32 s34, s22, 5120
    s_sub_u32 s34, s34, 10240
    s_lshl_b32 s35, s32, 12
    s_add_u32 s34, s34, s35
    s_mul_i32 s36, s31, 15360
    s_add_u32 s36, s36, s35
    s_add_u32 s36, s36, {VL}
    v_mov_b32 v14, 0x7ffffff0""")
    for t in range(4):
        k(f"""v_add_u32 v13, s34, v7
        v_cmp_gt_i32 vcc, 0, v13
        v_cndmask_b32 v13, v13, v14, vcc
        s_add_u32 m0, s36, {1024*t}""")
        if t == 3:
            k("""s_cmp_eq_u32 s32, 3
            s_cbranch_scc1 L_p2_v3""")
        k(f"buffer_load_dwordx4 v13, s[12:15], s33 offen {LDX} lds")
        if t < 3: k("s_add_u32 s34, s34, 1024")
    k.label("L_p2_v3")
    k(f"""s_and_b32 s31, s24, 6
    s_mul_i32 s32, s31, 1280
    v_add_u32 v8, s32, v12
    s_mul_i32 s32, s31, 640
    s_add_u32 s32, s32, {VL}
    v_add_u32 v9, s32, v7
    v_and_b32 v11, 3, v3
    v_lshl_add_u32 v11, v4, 2, v11
    v_lshlrev_b32 v11, 4, v11
    v_add_u32 v11, s32, v11
    v_cmp_gt_u32 s[48:49], 4, v3
    v_mov_b32 v18, 0x3f803f80
    v_lshlrev_b32 v13, 2, v4
    s_and_b32 s33, s24, 1""")
    MK = {0: 50, 1: 58, 16: 66, 17: 74}
    for r in range(4):
        k(f"""v_add_u32 v14, {r}, v13
        v_cmp_le_u32 s[4:5], v14, v3
        s_not_b64 s[6:7], s[4:5]
        s_cmp_eq_u32 s33, 0
        s_cselect_b64 s[{MK[0]+2*r}:{MK[0]+2*r+1}], s[6:7], 0
        s_cselect_b64 s[{MK[1]+2*r}:{MK[1]+2*r+1}], -1, s[6:7]
        s_cselect_b64 s[{MK[16]+2*r}:{MK[16]+2*r+1}], s[4:5], -1
        s_cselect_b64 s[{MK[17]+2*r}:{MK[17]+2*r+1}], 0, s[4:5]""")
    k(f"""s_mul_i32 s35, s25, 20480
    s_add_u32 s35, s35, s26
    s_add_u32 s35, s35, {OB}
    v_lshlrev_b32 v15, 8, v4
    v_lshl_add_u32 v15, v3, 4, v15
    v_lshlrev_b32 v16, 4, v3
    v_mov_b32 v10, 0x7ffffff0
    v_cmp_gt_u32 vcc, 16, v2
    v_cndmask_b32 v16, v10, v16, vcc
    s_mov_b32 s36, 0x3ea52b5c
    v_mov_b32 v17, 0xf149f2ca
    v_cmp_gt_u32 s[4:5], 2, v4
    v_cmp_gt_u32 s[6:7], 3, v4
    v_cmp_ne_u32 s[8:9], 0, v4
    s_and_b64 s[8:9], s[8:9], s[6:7]""")
    k.wait_vm(3)
    for e, mk in ((0, 6), (1, 6), (2, 4), (3, 4), (4, 8), (5, 8), (6, 6), (7, 6)):
        k(f"v_cndmask_b32 v{QF+e}, 0, v{QF+e}, s[{mk}:{mk+1}]")
    k("s_barrier")
    def kread(t, i): return f"ds_read_b128 v[{KF+4*(i%4)}:{KF+4*(i%4)+3}], v8 offset:{i*1280 + t*512}"
    def qk(t):
        out = [kread(t, 0), kread(t, 1), kread(t, 2)]
        for i in range(18):
            if i + 3 < 18: out.append(kread(t, i + 3))
            out.append(f"v_mfma_f32_16x16x32_bf16 v[{S[t]+4*i}:{S[t]+4*i+3}], v[{KF+4*(i%4)}:{KF+4*(i%4)+3}], v[{QF+4*t}:{QF+4*t+3}], 0")
        return out
    def vread(t, c):
        d = VF + (c % 3) * 8
        return [f"ds_read_b128 v[{d}:{d+3}], v9 offset:{t*15360 + c*1280}", f"ds_read_b128 v[{d+4}:{d+7}], v11 offset:{t*15360 + c*1280+1024}"]
    def pv(t):
        out = vread(t, 0) + vread(t, 1)
        for c in range(9):
            d = VF + (c % 3) * 8
            if c + 2 < 9: out += vread(t, c + 2)
            for e in range(4): out.append(f"v_cndmask_b32 v{d+4+e}, v18, v{d+4+e}, s[48:49]")
            for dd in range(2):
                acc = f"v[{O[t]+4*dd}:{O[t]+4*dd+3}]"
                out.append(f"v_mfma_f32_16x16x32_bf16 {acc}, v[{d+4*dd}:{d+4*dd+3}], v[{S[t]+4*c}:{S[t]+4*c+3}], {acc if c else 0}")
        return out
    def fixup(t):
        lab = f"L_p2_fix{t}"
        k._nop(10)
        k(f"""s_cmp_ge_u32 s22, 2
        s_cbranch_scc1 {lab}
        s_and_b32 s37, s25, 0xfffe
        s_sub_u32 s37, 16, s37""")
        for tau in range(16):
            k.raw(f"    s_cmp_le_i32 s37, {tau}\n    s_cbranch_scc1 {lab}")
            for r in range(4): k.raw(f"    v_mov_b32 v{S[t]+4*tau+r}, v17")
        k.label(lab)
        k._nop(2)
    def softmax(t):
        s0 = S[t]; TT = T + 4 * t
        out = [lambda: fixup(t)]
        for ti in (0, 1, 16, 17):
            for r in range(4):
                out.append(f"v_cndmask_b32 v{s0+4*ti+r}, v17, v{s0+4*ti+r}, s[{MK[ti]+2*r}:{MK[ti]+2*r+1}]")
        regs = list(range(s0, s0 + 72))
        for j in range(4):
            out.append(f"v_max_f32 v{TT+j}, v{regs[j*18]}, v{regs[j*18+1]}")
        for i in range(8):
            for j in range(4):
                out.append(f"v_max3_f32 v{TT+j}, v{TT+j}, v{regs[j*18+2+2*i]}, v{regs[j*18+3+2*i]}")
        out += [f"v_max3_f32 v{TT}, v{TT}, v{TT+1}, v{TT+2}", f"v_max_f32 v{TT}, v{TT}, v{TT+3}",
                f"v_mov_b32 v{TT+1}, v{TT}", f"v_permlane16_swap_b32 v{TT}, v{TT+1}", f"v_max_f32 v{TT}, v{TT}, v{TT+1}",
                f"v_mov_b32 v{TT+1}, v{TT}", f"v_permlane32_swap_b32 v{TT}, v{TT+1}", f"v_max_f32 v{TT}, v{TT}, v{TT+1}",
                f"v_mul_f32 v{TT}, s36, v{TT}", f"v_sub_f32 v{TT}, 0, v{TT}"]
        Gs = 8
        for g0 in range(0, 72, Gs):
            for i in range(Gs): out.append(f"v_fma_f32 v{s0+g0+i}, v{s0+g0+i}, s36, v{TT}")
            for i in range(Gs): out.append(f"v_exp_f32 v{s0+g0+i}, v{s0+g0+i}")
            if g0 >= Gs:
                for i in range(0, Gs, 2): out.append(f"v_cvt_pk_bf16_f32 v{s0+(g0-Gs+i)//2}, v{s0+g0-Gs+i}, v{s0+g0-Gs+i+1}")
        for i in range(64, 72, 2): out.append(f"v_cvt_pk_bf16_f32 v{s0+i//2}, v{s0+i}, v{s0+i+1}")
        return out
    FO = 160
    def final(t):
        F = 140 + 10 * t
        out = [f"v_mov_b32 v{F}, v{O[t]+4}", f"v_mov_b32 v{F+1}, v{O[t]+4}",
               f"v_permlane16_swap_b32 v{F}, v{F+1}", f"v_rcp_f32 v{F+1}, v{F+1}"]
        for i in range(8): out.append(f"v_mul_f32 v{F+2+i}, v{O[t]+i}, v{F+1}")
        o = F + 2
        out += [f"v_cvt_pk_bf16_f32 v{FO+2*t}, v{o}, v{o+1}", f"v_cvt_pk_bf16_f32 v{FO+2*t+1}, v{o+2}, v{o+3}",
                f"v_cvt_pk_bf16_f32 v{FO+4+2*t}, v{o+4}, v{o+5}", f"v_cvt_pk_bf16_f32 v{FO+4+2*t+1}, v{o+6}, v{o+7}"]
        return out
    def mix(valu, mf):
        n = len(valu); m = len(mf); j = 0
        for i, v in enumerate(valu):
            if callable(v): v()
            else: k(v)
            while j < m and (j + 1) * n <= (i + 1) * m: k(mf[j]); j += 1
        while j < m: k(mf[j]); j += 1
    for m in qk(0): k(m)
    k.wait_vm(0)
    k("s_barrier")
    prefetch_lin(k, 12, WOP, 8*20*5120, 512, 0, 104, 38, dst='v200', full=True)
    mix(softmax(0), qk(1))
    mix(softmax(1), pv(0))
    mix(final(0), pv(1))
    for v in final(1): k(v)
    k(f"buffer_store_dwordx4 v[{FO}:{FO+3}], v15, s[12:15], s35 offen sc1")
    k(f"buffer_store_dwordx4 v[{FO+4}:{FO+7}], v16, s[12:15], s35 offen offset:1024 sc1")
    k(f"s_add_u32 s22, s22, {C2}")
    signal(k, 22, "p2")
    k.rid = rid

def p35(k, wo):
    nm = 'p3' if wo else 'p5'
    NS32 = 20 if wo else 48
    NC = NS32 // 4
    NS = 5 if wo else 7
    R = 3; XD = 5
    XB = OB if wo else ACT
    WP = WOP if wo else WDP
    SS = 20480
    ACC = 32; WF = 52; EX = 132; XA = 164; TMP = 52
    EXX = EX
    k(f"""s_and_b32 s20, s2, 7
    s_lshr_b32 s21, s2, 3
{MAP35}
    v_lshlrev_b32 v5, 4, v2
    v_add_u32 v6, 4096, v5
    s_cmp_lt_u32 s3, 4
    s_cbranch_scc1 L_{nm}_comp""")
    st0 = snap(k)
    k(f"""s_sub_u32 s24, s3, 4
    s_mul_i32 s25, s23, {NS32*5120}
    s_mul_i32 s26, s24, 5120
    s_add_u32 s25, s25, s26
    s_add_u32 s25, s25, {WP}""")
    dma = {}
    def fw(c):
        slot = c % NS
        k(f"s_add_u32 s29, s25, {c*SS}")
        k(f"s_add_u32 m0, s26, {slot*SS}")
        for t in range(4):
            k(f"buffer_load_dwordx4 v5, s[12:15], s29 offen offset:{1024*t} {LDX} lds")
        k(f"s_add_u32 m0, s26, {slot*SS + 4096}")
        dma[c] = k(f"buffer_load_dwordx4 v6, s[12:15], s29 offen {LDX} lds")
    if wo:
        k(f"""s_cmp_ge_u32 s16, 680
        s_cbranch_scc1 L_p3_norp""")
        stn = snap(k)
        repack16_finish(k, 16, 17, 12, 24, 40, 2, None, wd=True)
        k.label("L_p3_norp")
        restore(k, stn); k._nop(4)
    for c in range(NS): fw(c)
    if wo: k.raw("    s_waitcnt vmcnt(25)")
    k("s_barrier")
    if wo:
        k(f"""s_cmp_lg_u32 s3, 4
        s_cbranch_scc1 L_p3_nosig
        s_and_b32 s36, s2, 15
        s_add_u32 s36, s36, {CRP}
        s_lshl_b32 s36, s36, 7
        s_add_u32 s36, s36, {CNT}
        v_mov_b32 v250, s36
        v_mov_b32 v251, 1
        s_mov_b64 exec, 1""")
        k.raw("    global_atomic_add v250, v251, s[84:85] sc1")
        k("s_mov_b64 exec, -1")
        k.label("L_p3_nosig")
        k._nop(2)
    for cb in range(NC):
        k.wait_vm_id(dma[cb])
        k("s_barrier")
        if cb >= 2 and cb - 2 + NS < NC: fw(cb - 2 + NS)
    k(f"s_branch L_sigb_p3" if wo else "s_endpgm")
    k.label(f"L_{nm}_comp")
    restore(k, st0)
    goff = MOD + (2 if wo else 5) * 2560
    if wo:
        k(f"""s_cmp_ge_u32 s2, 240
        s_cbranch_scc1 L_p3_norpg
        v_lshrrev_b32 v20, 5, v2
        s_mov_b32 s30, 0xffff0000""")
        repackgu_gs_lds(k, RP + 6*4096, 24, 20)
        repackgu_finish(k, 3, RP, 12, 24, 96, 40, 2, 20, 30)
        k.label("L_p3_norpg")
        reset(k); k._nop(12)
    srd(k, 16, 86 if wo else 98, NB['x'])
    k(f"""s_mov_b32 s24, s3
    v_and_b32 v3, 15, v2
    v_lshrrev_b32 v4, 4, v2
    s_lshl_b32 s31, s22, 2
    s_add_u32 s31, s31, s24           ; T16
    s_mul_i32 s27, s31, {NS32*1024}
    s_add_u32 s27, s27, {XB}
    s_mul_i32 s32, s23, 320
    s_add_u32 s32, s32, {goff}
    v_lshlrev_b32 v13, 4, v4
    s_lshr_b32 s33, s31, 1
    s_mul_i32 s33, s33, 40960
    s_mul_i32 s34, s23, 5120
    s_add_u32 s33, s33, s34
    s_add_u32 s33, s33, {X1}
    s_and_b32 s34, s31, 1
    s_lshl_b32 s34, s34, 8
    v_lshl_add_u32 v14, v3, 4, s34
    v_lshrrev_b32 v15, 1, v4
    v_lshl_add_u32 v14, v15, 9, v14
    v_and_b32 v15, 1, v4
    v_lshl_add_u32 v14, v15, 3, v14
    s_mul_i32 s34, s31, {16*1280}
    s_mul_i32 s35, s23, 160
    s_add_u32 s34, s34, s35
    v_mul_u32_u24 v15, 1280, v3
    v_lshl_add_u32 v15, v4, 3, v15
    v_add_u32 v21, 4096, v14
    v_add_u32 v7, {3*SS}, v5
    v_add_u32 v8, {6*SS}, v5""")
    if wo:
        k(f"s_lshr_b32 s36, s22, 1"); k(f"s_add_u32 s36, s36, {C2}"); k("v_mov_b32 v19, s36"); k("v_mov_b32 v20, 16")
        nl = 1
    else:
        k(f"s_lshr_b32 s36, s22, 1"); k(f"s_add_u32 s36, s36, {C4}"); k("v_mov_b32 v19, s36"); k("v_mov_b32 v20, 16")
        nl = 1
    if wo: k.waitall()
    for j in range(5):
        k(f"buffer_load_dwordx4 v[{EX+4*j}:{EX+4*j+3}], v13, s[12:15], s32 offen offset:{64*j}")
        if wo: k(f"buffer_load_dwordx2 v[{EX+20+2*j}:{EX+21+2*j}], v15, s[16:19], s34 offen offset:{32*j}")
        else:
            k(f"v_mov_b32 v{EX+20+2*j}, v{240+2*j}"); k(f"v_mov_b32 v{EX+21+2*j}, v{241+2*j}")
    wait(k, nm, 0, 19, 20, nl)
    mstamp(k, 4 if wo else 8)
    def fx(c):
        k(f"s_add_u32 s30, s27, {c*4096}")
        for i in range(4):
            r = XA + (c % XD) * 16 + i * 4
            k(f"buffer_load_dwordx4 v[{r}:{r+3}], v5, s[12:15], s30 offen offset:{1024*i} {LDX}")
    for c in range(min(XD - 1, NC)): fx(c)
    nxt = min(XD - 1, NC)
    epi = []
    def reads(s):
        c = s // 4; ks = s % 4; slot = c % NS
        base = (5, 7, 8)[slot // 3]; so = (slot % 3) * SS
        return [f"ds_read_b128 v[{WF+(s%4)*20+j*4}:{WF+(s%4)*20+j*4+3}], v{base} offset:{so + ks*5120 + j*1024}" for j in range(5)]
    k("s_barrier")
    for q in range(R):
        for t in reads(q): k(t)
    pend = []
    for s in range(NS32):
        if (s + R) % 4 == 0 and (s + R) // 4 < NC:
            k("s_barrier")
        c = s // 4
        if s % 4 == 0:
            if nxt < NC and nxt <= c + XD - 1: pend = pend + [lambda c_=nxt: fx(c_)]; nxt += 1
            elif epi: pend = pend + epi; epi = []
        fill = reads(s + R) if s + R < NS32 else []
        n = min(len(pend), 4)
        fill = fill + pend[:n]; pend = pend[n:]
        mf = []
        for j in range(5):
            w = f"v[{WF+(s%4)*20+j*4}:{WF+(s%4)*20+j*4+3}]"
            xr = XA + (c % XD) * 16 + (s % 4) * 4
            d0 = ACC + j * 4
            mf.append(f"v_mfma_f32_16x16x32_bf16 v[{d0}:{d0+3}], {w}, v[{xr}:{xr+3}], {'v[%d:%d]' % (d0, d0+3) if s else 0}")
        interleave(k, mf, fill)
    for t in pend + epi:
        if callable(t): t()
        else: k(t)
    k("s_mov_b32 s30, 0xffff0000")
    PK = TMP + 16
    if wo:
        k("v_mov_b32 v26, 0"); k("v_mov_b32 v27, 0")
        k(f"""v_and_b32 v22, 1, v4
        v_lshlrev_b32 v23, 3, v22
        v_sub_u32 v23, v14, v23
        v_lshl_add_u32 v22, v22, 10, v23
        v_add_u32 v23, 4096, v23""")
    else:
        k(f"""v_and_b32 v22, 1, v4
        v_lshlrev_b32 v23, 3, v22
        v_sub_u32 v23, v15, v23
        v_lshl_add_u32 v22, v22, 5, v23""")
    for j in range(5):
        a0 = ACC + 4 * j; gq = EX + 4 * j; xr = EX + 20 + 2 * j; T = TMP + 8 * (j % 2); P_ = PK + 2 * j
        k(f"""v_cvt_pk_bf16_f32 v{T}, v{a0}, v{a0+1}
        v_cvt_pk_bf16_f32 v{T+1}, v{a0+2}, v{a0+3}
        v_lshlrev_b32 v{a0}, 16, v{T}
        v_and_b32 v{a0+1}, s30, v{T}
        v_lshlrev_b32 v{a0+2}, 16, v{T+1}
        v_and_b32 v{a0+3}, s30, v{T+1}
        v_mul_f32 v{a0}, v{a0}, v{gq}
        v_mul_f32 v{a0+1}, v{a0+1}, v{gq+1}
        v_mul_f32 v{a0+2}, v{a0+2}, v{gq+2}
        v_mul_f32 v{a0+3}, v{a0+3}, v{gq+3}
        v_cvt_pk_bf16_f32 v{T}, v{a0}, v{a0+1}
        v_cvt_pk_bf16_f32 v{T+1}, v{a0+2}, v{a0+3}
        v_lshlrev_b32 v{a0}, 16, v{T}
        v_and_b32 v{a0+1}, s30, v{T}
        v_lshlrev_b32 v{a0+2}, 16, v{T+1}
        v_and_b32 v{a0+3}, s30, v{T+1}
        v_lshlrev_b32 v{T+2}, 16, v{xr}
        v_and_b32 v{T+3}, s30, v{xr}
        v_lshlrev_b32 v{T+4}, 16, v{xr+1}
        v_and_b32 v{T+5}, s30, v{xr+1}
        v_add_f32 v{a0}, v{a0}, v{T+2}
        v_add_f32 v{a0+1}, v{a0+1}, v{T+3}
        v_add_f32 v{a0+2}, v{a0+2}, v{T+4}
        v_add_f32 v{a0+3}, v{a0+3}, v{T+5}
        v_cvt_pk_bf16_f32 v{P_}, v{a0}, v{a0+1}
        v_cvt_pk_bf16_f32 v{P_+1}, v{a0+2}, v{a0+3}""")
        if wo:
            k(f"""v_lshlrev_b32 v{a0}, 16, v{P_}
            v_and_b32 v{a0+1}, s30, v{P_}
            v_lshlrev_b32 v{a0+2}, 16, v{P_+1}
            v_and_b32 v{a0+3}, s30, v{P_+1}""")
            for e in range(4):
                k(f"v_add_f32 v26, v26, v{a0+e}")
                k(f"v_fmac_f32 v27, v{a0+e}, v{a0+e}")
            k(f"v_mov_b32 v{240+2*j}, v{P_}"); k(f"v_mov_b32 v{241+2*j}, v{P_+1}")
        if j == 4:
            k(f"v_mov_b32 v{P_+2}, v{P_}"); k(f"v_mov_b32 v{P_+3}, v{P_+1}")
        if j % 2 == 1 or j == 4:
            q = PK + 2 * (j - 1 if j % 2 else j)
            k(f"v_permlane16_swap_b32 v{q}, v{q+2}")
            k(f"v_permlane16_swap_b32 v{q+1}, v{q+3}")
            jj = j - 1 if j % 2 else j
            if wo:
                if j < 4: k(f"buffer_store_dwordx4 v[{q}:{q+3}], v22, s[12:15], s33 offen offset:{1024*jj} sc1")
                else: k(f"buffer_store_dwordx4 v[{q}:{q+3}], v23, s[12:15], s33 offen sc1")
            else:
                k(f"buffer_store_dwordx4 v[{q}:{q+3}], v{22 if j < 4 else 23}, s[16:19], s34 offen offset:{32*jj}")
    if wo:
        for r in (26, 27):
            k(f"""v_mov_b32 v28, v{r}
            v_permlane16_swap_b32 v{r}, v28
            v_add_f32 v{r}, v{r}, v28
            v_mov_b32 v28, v{r}
            v_permlane32_swap_b32 v{r}, v28
            v_add_f32 v{r}, v{r}, v28""")
        k(f"""s_lshl_b32 s38, s31, 10
        s_lshl_b32 s39, s23, 3
        s_add_u32 s38, s38, s39
        s_add_u32 s38, s38, {ST}
        v_lshlrev_b32 v28, 6, v3
        v_mov_b32 v29, 0x7ffffff0
        v_cmp_gt_u32 vcc, 16, v2
        v_cndmask_b32 v28, v29, v28, vcc
        buffer_store_dwordx2 v[26:27], v28, s[12:15], s38 offen sc1""")
    k.label(f"L_{nm}_done")
    reset(k); k._nop(12)
    if wo:
        mstamp(k, 12, 0)
        k(f"v_add_u32 v19, {CRP}, v2"); k("v_mov_b32 v20, 16")
        wait(k, "crp", 1, 19, 20, 16, barrier=False, slp=8)
        mstamp(k, 13, 1)
        k(f"s_lshr_b32 s22, s22, 1"); k(f"s_add_u32 s22, s22, {C3}")
        signal(k, 22, nm)

def p4(k):
    NS = 4; SS = 40960
    ACC = 32; XF = 80; WF = 92; GWR = 128; SWR = 176; TMP = 224; STT = 24; R = 2
    k(f"""s_and_b32 s20, s2, 7
    s_lshr_b32 s21, s2, 3
{MAP14}
    s_mov_b32 s24, s3
    v_lshrrev_b32 v20, 5, v2
    v_lshlrev_b32 v5, 4, v2
    s_and_b32 s25, s24, 3
    s_lshr_b32 s26, s24, 2
    s_lshr_b32 s27, s24, 1
    s_lshl_b32 s28, s22, 2
    s_add_u32 s27, s27, s28
    s_mul_i32 s27, s27, 40960
    s_and_b32 s28, s24, 1
    s_lshl_b32 s28, s28, 11
    s_add_u32 s27, s27, s28
    s_add_u32 s27, s27, {X1}
    s_lshl_b32 s28, s24, 11
    s_mul_i32 s29, s24, 3
    s_mul_i32 s30, s23, {6*40960}
    s_add_u32 s30, s30, {WGUP}""")
    for i in range(3):
        k(f"""s_add_u32 s31, s29, {i}
        s_lshr_b32 s32, s31, 2
        s_mul_i32 s32, s32, 40960
        s_and_b32 s31, s31, 3
        s_lshl_b32 s31, s31, 10
        s_add_u32 s32, s32, s31
        s_add_u32 s{40+i}, s32, s30""")
    k(f"""s_lshl_b32 s29, s29, 10
    s_add_u32 s29, s29, 16384""")
    dma = {}
    def fx(c):
        slot = c % NS
        k(f"s_add_u32 m0, s28, {slot*SS}")
        k(f"s_add_u32 s33, s27, {c*4096}")
        k(f"buffer_load_dwordx4 v5, s[12:15], s33 offen {LDX} lds")
        dma[c] = k(f"buffer_load_dwordx4 v5, s[12:15], s33 offen offset:1024 {LDX} lds")
    def fw(c, i):
        slot = c % NS
        k(f"s_add_u32 m0, s29, {slot*SS + i*1024}")
        k(f"s_add_u32 s33, s{40+i}, {c*4096}")
        dma[c] = k(f"buffer_load_dwordx4 v5, s[12:15], s33 offen {LDX} lds")
    def issue(c):
        out = [lambda: fx(c)] + [(lambda i=i: fw(c, i)) for i in range(3)]
        for f in out: f.c = c
        return out
    for c in range(NS):
        for i in range(3): fw(c, i)
    k(f"""v_and_b32 v7, 31, v2
    v_lshlrev_b32 v7, 6, v7
    v_lshl_add_u32 v7, v20, 5, v7
    s_lshl_b32 s34, s22, 2
    s_add_u32 s34, s34, s25
    s_lshl_b32 s35, s25, 12
    v_add_u32 v8, s35, v5
    s_mul_i32 s35, s26, 12288
    s_add_u32 s35, s35, 16384
    v_add_u32 v12, s35, v5
    s_add_u32 s36, s22, {C3}
    v_mov_b32 v18, s36
    v_mov_b32 v19, 16""")
    for g in range(1, 4):
        k(f"v_add_u32 v{8+g}, {g*SS}, v8")
        k(f"v_add_u32 v{12+g}, {g*SS}, v12")
    for i in range(48): k(f"v_mov_b32 v{ACC+i}, 0")
    wait(k, "p4", 0, 18, 19, 1)
    mstamp(k, 6)
    fx(0); fx(1)
    k(f"""s_lshl_b32 s35, s34, 11
    s_add_u32 s35, s35, {ST}
    buffer_load_dwordx4 v[{TMP}:{TMP+3}], v7, s[12:15], s35 offen {LDX}
    buffer_load_dwordx4 v[{TMP+4}:{TMP+7}], v7, s[12:15], s35 offen offset:16 {LDX}""")
    fx(2); fx(3)
    def reads(s):
        c = s // 4; ks = s % 4; slot = c % NS
        out = [f"ds_read_b128 v[{XF+(s%3)*4}:{XF+(s%3)*4+3}], v{8+slot} offset:{ks*1024}"]
        for j in range(3):
            d = WF + (s % 3) * 12 + j * 4
            out.append(f"ds_read_b128 v[{d}:{d+3}], v{12+slot} offset:{j*4096 + ks*1024}")
        return out
    def stats():
        b = TMP
        k(f"""v_add_f32 v{b}, v{b}, v{b+2}
        v_add_f32 v{b+1}, v{b+1}, v{b+3}
        v_add_f32 v{b+4}, v{b+4}, v{b+6}
        v_add_f32 v{b+5}, v{b+5}, v{b+7}
        v_add_f32 v{b}, v{b}, v{b+4}
        v_add_f32 v{b+1}, v{b+1}, v{b+5}
        v_mov_b32 v{b+2}, v{b}
        v_mov_b32 v{b+3}, v{b+1}
        v_permlane32_swap_b32 v{b}, v{b+2}
        v_permlane32_swap_b32 v{b+1}, v{b+3}
        v_add_f32 v{b}, v{b}, v{b+2}
        v_add_f32 v{b+1}, v{b+1}, v{b+3}
        v_mul_f32 v{b}, 0x3acccccd, v{b}
        v_mul_f32 v{b+1}, 0x3acccccd, v{b+1}
        v_fma_f32 v{b+1}, -v{b}, v{b}, v{b+1}
        v_max_f32 v{b+1}, 0, v{b+1}""")
        bf16r(k, b, b); bf16r(k, b + 1, b + 1)
        k(f"v_add_f32 v{b+1}, 0x3727c5ac, v{b+1}")
        bf16r(k, b + 1, b + 1)
        k(f"v_sqrt_f32 v{b+1}, v{b+1}")
        bf16r(k, b + 1, b + 1)
        k(f"v_rcp_f32 v{STT}, v{b+1}")
        k(f"v_sub_f32 v{STT+1}, 0, v{b}")
    k.wait_vm_id(dma[0])
    k("s_barrier")
    for q in range(R):
        for t in reads(q): k(t)
    pend = []
    gs_id = None
    for s in range(40):
        if (s + R) % 4 == 0 and (s + R) // 4 <= 10:
            cb = (s + R) // 4
            while cb < 10 and any(getattr(f, 'c', None) == cb for f in pend):
                f = pend.pop(0); f()
            if cb < 10: k.wait_vm_id(dma[cb])
            if cb == 10: k.wait_vm_id(gs_id)
            k("s_barrier")
            if cb >= 2 and cb - 2 + NS <= 9: pend = pend + issue(cb - 2 + NS)
            if cb == 9: pend = pend + [stats]
            if cb == 8:
                def fg():
                    nonlocal gs_id
                    k(f"""s_and_b32 s33, s24, 1
                    s_mul_i32 s35, s33, 12288
                    s_lshl_b32 s33, s33, 10
                    s_add_u32 m0, s33, {2*SS}
                    s_mul_i32 s33, s23, 768
                    s_add_u32 s33, s33, s35
                    s_add_u32 s33, s33, {GSUM}""")
                    gs_id = k(f"buffer_load_dwordx4 v5, s[12:15], s33 offen sc0 sc1 lds")
                pend = pend + [fg, lambda: prefetch_lin(k, 12, WDP, 8*48*5120, 512, 0, 26, 36, dst='v30', full=True)]
        fill = reads(s + R) if s + R < 40 else []
        if s >= 38:
            if s == 38:
                k(f"""s_mul_i32 s33, s26, 384
                s_add_u32 s33, s33, {2*SS}
                v_lshlrev_b32 v16, 4, v20
                v_add_u32 v16, s33, v16""")
            for a in (2 * (s - 38), 2 * (s - 38) + 1):
                for j in range(3):
                    fill.append(f"ds_read_b128 v[{GWR+16*j+4*a}:{GWR+16*j+4*a+3}], v16 offset:{j*128 + a*32}")
                    fill.append(f"ds_read_b128 v[{SWR+16*j+4*a}:{SWR+16*j+4*a+3}], v16 offset:{1024 + j*128 + a*32}")
        n = min(len(pend), 2)
        fill = fill + pend[:n]; pend = pend[n:]
        mf = []
        for j in range(3):
            w = f"v[{WF+(s%3)*12+j*4}:{WF+(s%3)*12+j*4+3}]"; x = f"v[{XF+(s%3)*4}:{XF+(s%3)*4+3}]"
            d = f"v[{ACC+16*j}:{ACC+16*j+15}]"
            mf.append(f"v_mfma_f32_32x32x16_bf16 {d}, {w}, {x}, {d}")
        interleave(k, mf, fill)
    k(f"""s_mul_i32 s31, s23, 6
    s_mul_i32 s32, s26, 3
    s_add_u32 s31, s31, s32
    s_mul_i32 s32, s34, {2*48*1024}
    s_add_u32 s29, s32, {ACT}
    v_bfe_u32 v3, v2, 4, 1
    v_mul_u32_u24 v4, {48*1024}, v3
    v_and_b32 v3, 15, v2
    v_lshl_add_u32 v4, v3, 4, v4
    v_lshl_add_u32 v4, v20, 8, v4
    s_mov_b32 s35, 0xbfb8aa3b""")
    for j in range(3):
        k(f"""s_add_u32 s32, s31, {j}
        s_lshl_b32 s33, s32, 9
        s_add_u32 s33, s33, s29""")
        r = ACC + 16 * j; gw = GWR + 16 * j; sw = SWR + 16 * j
        T = XF + 8 * (j % 2); O = XF + 16 + 4 * j
        for e in range(16): k(f"v_fmac_f32 v{r+e}, v{gw+e}, v{STT+1}")
        for e in range(16): k(f"v_fmac_f32 v{sw+e}, v{r+e}, v{STT}")
        for e in range(8): k(f"v_mul_f32 v{T+e}, s35, v{sw+e}")
        for e in range(8): k(f"v_exp_f32 v{T+e}, v{T+e}")
        for e in range(8): k(f"v_add_f32 v{T+e}, 1.0, v{T+e}")
        for e in range(8): k(f"v_rcp_f32 v{T+e}, v{T+e}")
        for e in range(8): k(f"v_mul_f32 v{sw+e}, v{sw+e}, v{sw+8+e}")
        for e in range(8): k(f"v_mul_f32 v{sw+e}, v{sw+e}, v{T+e}")
        for e in range(4): k(f"v_cvt_pk_bf16_f32 v{O+e}, v{sw+2*e}, v{sw+2*e+1}")
        k(f"buffer_store_dwordx4 v[{O}:{O+3}], v4, s[12:15], s33 offen sc1")
    k(f"s_add_u32 s22, s22, {C4}")
    signal(k, 22, "p4")

def gen_mega():
    k = Kern("k1_mega_kernel")
    k(f"""s_cmp_ge_u32 s2, 256
    s_cbranch_scc1 L_mega_end
    s_load_dwordx2 s[84:85], s[0:1], {ARG['ws']}
    s_load_dwordx2 s[86:87], s[0:1], {ARG['x']}
    s_load_dwordx4 s[88:91], s[0:1], {ARG['wqkv']}
    s_load_dwordx4 s[92:95], s[0:1], {ARG['wg']}
    s_load_dwordx2 s[96:97], s[0:1], {ARG['wd']}
    s_load_dwordx2 s[98:99], s[0:1], {ARG['out']}
    v_lshrrev_b32 v1, 6, v0
    v_and_b32 v2, 63, v0
    v_readfirstlane_b32 s3, v1""")
    k.waitall()
    srd(k, 12, 84, NB['ws'])
    mstamp(k, 0)
    p1(k); mstamp(k, 1)
    p2(k); mstamp(k, 3)
    p35(k, True); mstamp(k, 5)
    p4(k); mstamp(k, 7)
    p35(k, False)
    if MPROF: k.waitall()
    mstamp(k, 9)
    k.label("L_mega_end")
    k("s_endpgm")
    return k

def all_kernels():
    return [(gen_k0(), 256, 256, 4096), (gen_mega(), 256, 512, 163840)]

if __name__ == "__main__":
    if len(sys.argv) > 1 and sys.argv[1] == "prof": MPROF = True
    for e in sys.argv[2:]:
        if e.startswith("slp"): SLP = int(e[3:])
        G.EXP.add(e)
    open("mega" + "_".join([""] + sys.argv[2:]) + ".s", "w").write(build_file(all_kernels()))
```

```python
import sys
sys.path.insert(0, "work")
from asmlib import *

MOD = 0
XN = 0x10000
QB = 0x290000
KB0 = 0x520000; KB = KB0 + 16384
VB0 = KB + 0x280000; VB = VB0 + 16384
OB = 0xA40000
X1 = 0xCC0000
ST = 0xF40000
ACT = 0xF60000
WOP = 0x1560000
WDP = 0x1630000
WGUP = 0x1810000
GSUM = 0x1BD0000
WS_END = 0x1C80000

ARG = dict(x=0, wqkv=8, wo=16, bx=24, wg=32, wu=40, wd=48, c=56, wmod=64, out=72, dbg=80, ws=88)
NB = dict(x=2048*640*2, wqkv=640*1920*2, wo=640*640*2, wg=640*1536*2, wu=640*1536*2, wd=1536*640*2, c=1280, wmod=640*3840*2, out=2048*640*2, ws=WS_END)

def srd(k, sd, sb, nbytes):
    k(f"""s_mov_b32 s{sd}, s{sb}
    s_and_b32 s{sd+1}, s{sb+1}, 0xffff
    s_mov_b32 s{sd+2}, {nbytes}
    s_mov_b32 s{sd+3}, 0x00020000""")

def bf16r(k, dst, src):
    k(f"v_cvt_pk_bf16_f32 v{dst}, v{src}, v{src}")
    k(f"v_and_b32 v{dst}, 0xffff0000, v{dst}")

def row16_sum(k, v):
    for r in (8, 4, 2, 1):
        k(f"v_add_f32_dpp v{v}, v{v}, v{v} row_ror:{r} row_mask:0xf bank_mask:0xf")

PROF = False
M8 = False
MAPS = {True: ("""    s_lshl_b32 s22, s20, 1
    s_and_b32 s23, s21, 1
    s_add_u32 s22, s22, s23           ; mb
    s_lshr_b32 s23, s21, 1            ; nb""", """    s_lshl_b32 s22, s20, 2
    s_and_b32 s23, s21, 3
    s_add_u32 s22, s22, s23           ; mb
    s_lshr_b32 s23, s21, 2            ; nb""", """    s_mov_b32 s22, s20                ; qb"""), False: ("""    s_and_b32 s22, s20, 3
    s_lshl_b32 s22, s22, 2
    s_and_b32 s23, s21, 3
    s_add_u32 s22, s22, s23           ; mb
    s_lshr_b32 s23, s20, 2
    s_lshl_b32 s23, s23, 3
    s_lshr_b32 s21, s21, 2
    s_add_u32 s23, s23, s21           ; nb""", """    s_and_b32 s22, s20, 3
    s_lshl_b32 s22, s22, 3
    s_and_b32 s23, s21, 7
    s_add_u32 s22, s22, s23           ; mb
    s_lshr_b32 s23, s20, 2
    s_lshl_b32 s23, s23, 2
    s_lshr_b32 s21, s21, 3
    s_add_u32 s23, s23, s21           ; nb""", """    s_and_b32 s22, s20, 3
    s_lshl_b32 s22, s22, 1
    s_lshr_b32 s20, s20, 2
    s_add_u32 s22, s22, s20           ; qb""")}
MAP14, MAP35, MAP2 = MAPS[M8]
MAP35 = MAPS[True][1]
EXP = set()
PROFOFF = 0x1D00000
KIDX = {}
def stamp(k, i):
    if PROF:
        if i == 0: k.raw(f"    s_memrealtime s[92:93]")
        k.raw(f"    s_memtime s[{60+2*i}:{61+2*i}]")
        k.maxs = max(k.maxs, 100)
def stamp_flush(k, n, wg=8, tid=0, base=0):
    if PROF:
        lab = f"L_prof_{k.name}_{len(k.lines)}"
        k.raw(f"    s_waitcnt vmcnt(0) lgkmcnt(0)")
        stamp(k, n)
        kidx = KIDX.setdefault(k.name, len(KIDX))
        k.raw(f"""    s_memrealtime s[90:91]
    s_load_dwordx2 s[96:97], s[0:1], {ARG['ws']}
    s_waitcnt lgkmcnt(0)
    v_cmp_eq_u32 vcc, {tid}, v0
    s_and_saveexec_b64 s[98:99], vcc
    s_cbranch_execz {lab}
    s_lshl_b32 s95, s2, 4
    s_add_u32 s95, s95, {PROFOFF + kidx * 8192 + (8 if base else 0)}
    v_mov_b32 v1, s95
    v_mov_b32 v2, s92
    v_mov_b32 v3, s90
    global_store_dwordx2 v1, v[2:3], s[96:97]
    s_cmp_lg_u32 s2, {wg}
    s_cbranch_scc1 {lab}
    s_load_dwordx2 s[96:97], s[0:1], {ARG['dbg']}
    s_waitcnt lgkmcnt(0)
    v_mov_b32 v1, 0""")
        for i in range(n + 1):
            k.raw(f"    s_sub_u32 s95, s{60+2*i}, s60\n    v_mov_b32 v2, s95\n    global_store_dword v1, v2, s[96:97] offset:{4*i+base}")
        k.raw(f"{lab}:")

def prefetch(k, sr, nthreads, tidreg, pitch, rows, lines_per_row, half_bytes, vt, st, mall=False, tid_off=0, dst=None):
    if 'nopf' in EXP: return
    ngroups = 128 if mall else 32
    rows_per = rows // ngroups
    nl = rows_per * lines_per_row
    k(f"s_lshr_b32 s{st}, s2, 3")
    if mall:
        k(f"""s_lshl_b32 s{st}, s{st}, 2
        s_and_b32 s{st+1}, s2, 3
        s_add_u32 s{st}, s{st}, s{st+1}""")
    k(f"""s_mul_i32 s{st}, s{st}, {rows_per*pitch}
    s_bfe_u32 s{st+1}, s2, 0x10002
    s_mul_i32 s{st+1}, s{st+1}, {half_bytes}
    s_add_u32 s{st}, s{st}, s{st+1}""")
    magic = (65536 + lines_per_row - 1) // lines_per_row
    for base in range(0, nl, nthreads):
        assert all(((p * magic) >> 16) == p // lines_per_row for p in range(base + nthreads))
        k(f"""v_add_u32 v{vt}, {base - tid_off}, v{tidreg}
        v_mul_u32_u24 v{vt+1}, {magic}, v{vt}
        v_lshrrev_b32 v{vt+1}, 16, v{vt+1}
        v_mul_u32_u24 v{vt+2}, {lines_per_row}, v{vt+1}
        v_sub_u32 v{vt+2}, v{vt}, v{vt+2}
        v_mul_u32_u24 v{vt+1}, {pitch}, v{vt+1}
        v_lshl_add_u32 v{vt+1}, v{vt+2}, 7, v{vt+1}
        v_cmp_gt_u32 vcc, {nl}, v{vt}
        v_mov_b32 v{vt+2}, 0x7ffffff0
        v_cndmask_b32 v{vt+1}, v{vt+2}, v{vt+1}, vcc
        buffer_load_dword {dst or 'v%d' % (vt+3)}, v{vt+1}, s[{sr}:{sr+3}], s{st} offen""")
        for r_ in regs_of(dst or 'v%d' % (vt+3)): k.pend_vm.pop(r_, None)

def prefetch_lin(k, sr_ws, base, half_bytes, nthreads, tidreg, vt, st, tid_off=0, dst=None, full=False):
    if 'nopf' in EXP: return
    per = half_bytes // 32
    nl = per // 128
    k(f"""s_lshr_b32 s{st}, s2, 3
    s_mul_i32 s{st}, s{st}, {per}
    s_bfe_u32 s{st+1}, s2, 0x10002
    s_mul_i32 s{st+1}, s{st+1}, {0 if full else half_bytes}
    s_add_u32 s{st}, s{st}, s{st+1}
    s_add_u32 s{st}, s{st}, {base}""")
    for b0 in range(0, nl, nthreads):
        k(f"""v_add_u32 v{vt}, {b0 - tid_off}, v{tidreg}
        v_lshlrev_b32 v{vt+1}, 7, v{vt}
        v_cmp_gt_u32 vcc, {nl}, v{vt}
        v_mov_b32 v{vt+2}, 0x7ffffff0
        v_cndmask_b32 v{vt+1}, v{vt+2}, v{vt+1}, vcc
        buffer_load_dword {dst or 'v%d' % (vt+3)}, v{vt+1}, s[{sr_ws}:{sr_ws+3}], s{st} offen""")
        for r_ in regs_of(dst or 'v%d' % (vt+3)): k.pend_vm.pop(r_, None)

def k0_prefetch(k):
    if M8: prefetch(k, 44, 256, 0, 3840, 640, 30, 0, 100, 48)
    else: prefetch(k, 44, 256, 0, 3840, 640, 16, 2048, 100, 48)

def gen_k0():
    k = Kern("k0_prep_kernel")
    stamp(k, 0)
    k(f"""s_cmp_ge_u32 s2, 256
    s_cbranch_scc1 L_k0_end
    s_load_dwordx2 s[4:5], s[0:1], {ARG['x']}
    s_load_dwordx4 s[8:11], s[0:1], {ARG['c']}
    s_load_dwordx2 s[12:13], s[0:1], {ARG['ws']}
    s_load_dwordx2 s[40:41], s[0:1], {ARG['wqkv']}""")
    k.waitall()
    srd(k, 16, 12, NB['ws'])
    srd(k, 44, 40, NB['wqkv'])
    k("""s_cmp_ge_u32 s2, 248
    s_cbranch_scc1 L_k0_zero
    s_cmp_ge_u32 s2, 128
    s_cbranch_scc1 L_k0_gemv""")
    srd(k, 20, 4, NB['x'])
    k("""s_and_b32 s3, s2, 3
    s_lshl_b32 s3, s3, 5
    s_bfe_u32 s14, s2, 0x10002
    s_lshl_b32 s14, s14, 4
    s_add_u32 s3, s3, s14
    s_lshr_b32 s14, s2, 3
    s_add_u32 s3, s3, s14
    s_lshl_b32 s3, s3, 4
    v_lshrrev_b32 v1, 4, v0
    v_add_u32 v1, s3, v1            ; row
    v_and_b32 v2, 15, v0            ; c
    v_mul_u32_u24 v3, 1280, v1
    v_lshl_add_u32 v3, v2, 4, v3""")
    for i in range(5):
        k(f"buffer_load_dwordx4 v[{8+4*i}:{11+4*i}], v3, s[20:23], 0 offen offset:{256*i}")
    k0_prefetch(k)
    for i in range(20):
        k(f"v_lshlrev_b32 v{32+2*i}, 16, v{8+i}")
        k(f"v_and_b32 v{33+2*i}, 0xffff0000, v{8+i}")
    k("v_add_f32 v4, v32, v33")
    for i in range(2, 40):
        k(f"v_add_f32 v4, v4, v{32+i}")
    row16_sum(k, 4)
    k("v_mul_f32 v4, 0x3acccccd, v4")
    k("v_mov_b32 v5, 0")
    for i in range(40):
        k(f"v_sub_f32 v6, v{32+i}, v4")
        k(f"v_fmac_f32 v5, v6, v6")
    row16_sum(k, 5)
    k("v_mul_f32 v5, 0x3acccccd, v5")
    bf16r(k, 4, 4)
    bf16r(k, 5, 5)
    k("v_add_f32 v5, 0x3727c5ac, v5")
    bf16r(k, 5, 5)
    k("v_sqrt_f32 v5, v5")
    bf16r(k, 5, 5)
    k("v_rcp_f32 v5, v5")
    for i in range(20):
        k(f"v_sub_f32 v{32+2*i}, v{32+2*i}, v4")
        k(f"v_sub_f32 v{33+2*i}, v{33+2*i}, v4")
        k(f"v_cvt_pk_bf16_f32 v6, v{32+2*i}, v{33+2*i}")
        k(f"v_lshlrev_b32 v{32+2*i}, 16, v6")
        k(f"v_and_b32 v{33+2*i}, 0xffff0000, v6")
        k(f"v_mul_f32 v{32+2*i}, v{32+2*i}, v5")
        k(f"v_mul_f32 v{33+2*i}, v{33+2*i}, v5")
        k(f"v_cvt_pk_bf16_f32 v6, v{32+2*i}, v{33+2*i}")
        k(f"v_lshlrev_b32 v{32+2*i}, 16, v6")
        k(f"v_and_b32 v{33+2*i}, 0xffff0000, v6")
        k(f"v_cvt_pkrtz_f16_f32 v{8+i}, v{32+2*i}, v{33+2*i}")
    k(f"""v_lshrrev_b32 v6, 5, v1          ; T32
    v_mul_u32_u24 v6, 40960, v6
    v_lshrrev_b32 v7, 1, v2          ; c>>1
    v_lshl_add_u32 v6, v7, 10, v6
    v_and_b32 v7, 1, v2
    v_lshl_add_u32 v6, v7, 9, v6
    v_and_b32 v7, 31, v1
    v_lshl_add_u32 v6, v7, 4, v6""")
    for i in range(5):
        k(f"s_mov_b32 s3, {XN + i*8192}")
        k(f"buffer_store_dwordx4 v[{8+4*i}:{11+4*i}], v6, s[16:19], s3 offen sc1")
    stamp_flush(k, 1)
    k("s_endpgm")
    k.label("L_k0_zero")
    k0_prefetch(k)
    if 'notlb' not in EXP:
        k(f"""v_lshlrev_b32 v90, 17, v0
        buffer_load_dword v91, v90, s[16:19], 0 offen
        s_load_dwordx2 s[52:53], s[0:1], {ARG['wo']}
        s_load_dwordx4 s[56:59], s[0:1], {ARG['wg']}
        s_load_dwordx2 s[60:61], s[0:1], {ARG['wd']}
        s_load_dwordx2 s[62:63], s[0:1], {ARG['out']}""")
        k.wait_lg(0)
        for i, (sp, nb_) in enumerate(((52, 'wo'), (56, 'wg'), (58, 'wu'), (60, 'wd'), (62, 'out'))):
            srd(k, 64, sp, NB[nb_])
            k(f"buffer_load_dword v{92+i}, v90, s[64:67], 0 offen")
    k(f"""s_cmp_ge_u32 s2, 253
    s_cbranch_scc1 L_k0_end
    s_sub_u32 s3, s2, 248
    s_mul_i32 s3, s3, {VB0 - KB0}
    s_add_u32 s3, s3, {KB0}
    s_sub_u32 s14, s2, 250
    s_lshl_b32 s14, s14, 14
    s_add_u32 s14, s14, {GSUM}
    s_cmp_ge_u32 s2, 250
    s_cselect_b32 s3, s14, s3
    v_lshlrev_b32 v1, 4, v0
    v_mov_b32 v4, 0
    v_mov_b32 v5, 0
    v_mov_b32 v6, 0
    v_mov_b32 v7, 0""")
    for i in range(4):
        k(f"buffer_store_dwordx4 v[4:7], v1, s[16:19], s3 offen sc1")
        k(f"s_add_u32 s3, s3, 4096")
    k("s_endpgm")
    k.label("L_k0_gemv")
    srd(k, 20, 10, NB['wmod'])
    srd(k, 24, 8, NB['c'])
    k("""s_sub_u32 s3, s2, 128           ; j
    s_lshl_b32 s14, s3, 6
    v_lshrrev_b32 v1, 2, v0           ; r
    v_and_b32 v2, 3, v0               ; cc
    v_mul_u32_u24 v3, 7680, v1
    v_lshl_add_u32 v3, v2, 4, v3
    v_lshlrev_b32 v4, 1, v1""")
    for i in range(10):
        k(f"buffer_load_ushort v{50+i}, v4, s[24:27], 0 offen offset:{128*i}")
    for i in range(10):
        k(f"buffer_load_dwordx4 v[{8+4*i}:{11+4*i}], v3, s[20:23], s14 offen")
        if i < 9: k(f"s_add_u32 s14, s14, {64*7680}")
    k0_prefetch(k)
    for i in range(10):
        c = 50 + i
        k(f"""v_lshlrev_b32 v{c}, 16, v{c}
        v_mul_f32 v5, 0xbfb8aa3b, v{c}
        v_exp_f32 v5, v5
        v_add_f32 v5, 1.0, v5
        v_rcp_f32 v5, v5
        v_mul_f32 v{c}, v{c}, v5""")
        bf16r(k, c, c)
    for j in range(8):
        k(f"v_mov_b32 v{60+j}, 0")
    for i in range(10):
        for d in range(4):
            k(f"v_lshlrev_b32 v5, 16, v{8+4*i+d}")
            k(f"v_and_b32 v6, 0xffff0000, v{8+4*i+d}")
            k(f"v_fmac_f32 v{60+2*d}, v5, v{50+i}")
            k(f"v_fmac_f32 v{61+2*d}, v6, v{50+i}")
    for j in range(8):
        for r in (8, 4):
            k(f"v_add_f32_dpp v{60+j}, v{60+j}, v{60+j} row_ror:{r} row_mask:0xf bank_mask:0xf")
    k("""v_lshrrev_b32 v5, 4, v0
    v_lshlrev_b32 v5, 7, v5
    v_lshl_add_u32 v5, v2, 5, v5
    v_and_b32 v6, 15, v0
    v_cmp_gt_u32 vcc, 4, v6
    s_and_saveexec_b64 s[28:29], vcc
    ds_write_b128 v5, v[60:63]
    ds_write_b128 v5, v[64:67] offset:16
    s_mov_b64 exec, s[28:29]""")
    k.waitall()
    k("s_barrier")
    k("""v_cmp_gt_u32 vcc, 32, v0
    s_and_saveexec_b64 s[28:29], vcc
    s_cbranch_execz L_k0_end
    v_lshlrev_b32 v5, 2, v0""")
    for i in range(16):
        k(f"ds_read_b32 v{8+i}, v5 offset:{128*i}")
    for i in range(1, 16):
        k(f"v_add_f32 v8, v8, v{8+i}")
    bf16r(k, 8, 8)
    k("""s_mul_i32 s14, s3, 205
    s_lshr_b32 s14, s14, 12           ; j/20
    s_cmp_eq_u32 s14, 1
    s_cselect_b32 s15, 1, 0
    s_cmp_eq_u32 s14, 4
    s_cselect_b32 s15, 1, s15
    s_cmp_eq_u32 s15, 0
    s_cbranch_scc1 L_k0_st""")
    k("v_add_f32 v8, 1.0, v8")
    bf16r(k, 8, 8)
    k.label("L_k0_st")
    k(f"""s_lshl_b32 s14, s3, 7
    s_add_u32 s14, s14, {MOD}
    buffer_store_dword v8, v5, s[16:19], s14 offen""")
    stamp_flush(k, 1, wg=130)
    k.label("L_k0_end")
    k("s_endpgm")
    return k

def interleave(k, mf, fill):
    n = len(mf)
    per = [len(fill) * (i + 1) // n - len(fill) * i // n for i in range(n)]
    j = 0
    for i, m in enumerate(mf):
        k(m)
        for _ in range(per[i]):
            f = fill[j]; j += 1
            if callable(f): f()
            else: k(f)


def repack16_issue(k, su, slds, sr_wo, sr_wd, v0, s0, lane):
    k(f"""s_cmp_lt_u32 s{su}, 200
    s_cselect_b32 s{s0+4}, s{sr_wo}, s{sr_wd}
    s_cselect_b32 s{s0+5}, s{sr_wo+1}, s{sr_wd+1}
    s_cselect_b32 s{s0+6}, s{sr_wo+2}, s{sr_wd+2}
    s_mov_b32 s{s0+7}, 0x00020000
    s_cselect_b32 s{s0}, 0, 200
    s_sub_u32 s{s0}, s{su}, s{s0}        ; u'
    s_mul_i32 s{s0+1}, s{s0}, 6554
    s_lshr_b32 s{s0+1}, s{s0+1}, 16      ; s32 = u'/10
    s_mul_i32 s{s0+2}, s{s0+1}, 10
    s_sub_u32 s{s0+2}, s{s0}, s{s0+2}    ; cg
    s_mul_i32 s{s0}, s{s0+1}, {32*1280}
    s_lshl_b32 s{s0+3}, s{s0+2}, 7
    s_add_u32 s{s0}, s{s0}, s{s0+3}
    v_lshrrev_b32 v{v0}, 3, v{lane}
    v_mul_u32_u24 v{v0}, 1280, v{v0}
    v_and_b32 v{v0+1}, 7, v{lane}
    v_lshl_add_u32 v{v0}, v{v0+1}, 4, v{v0}""")
    for i in range(4):
        k(f"s_add_u32 m0, s{slds}, {1024*i}")
        last = k(f"buffer_load_dwordx4 v{v0}, s[{s0+4}:{s0+7}], s{s0} offen lds")
        if i < 3: k(f"s_add_u32 s{s0}, s{s0}, {8*1280}")
    return last

def repack16_finish(k, su, slds, sr_ws, v0, s0, lane, dma_id, wd=False):
    if wd:
        k(f"""v_lshrrev_b32 v{v0}, 5, v{lane}
        v_lshlrev_b32 v{v0}, 2, v{v0}
        v_bfe_u32 v{v0+1}, v{lane}, 4, 1
        v_add_u32 v{v0}, v{v0}, v{v0+1}          ; 4(g>>1) + (g&1)""")
    else:
        k(f"v_lshrrev_b32 v{v0}, 4, v{lane}        ; g")
    k(f"""v_bfe_u32 v{v0+1}, v{lane}, 2, 2          ; r
    v_lshl_add_u32 v{v0}, v{v0}, 2, v{v0+1}
    v_lshlrev_b32 v{v0}, 7, v{v0}
    v_and_b32 v{v0+1}, 3, v{lane}
    v_lshl_add_u32 v{v0}, v{v0+1}, 3, v{v0}
    v_add_u32 v{v0}, s{slds}, v{v0}
    v_lshlrev_b32 v{v0+1}, 4, v{lane}""")
    k.wait_vm_id(dma_id)
    for f in range(4):
        for a in range(2):
            d = v0 + 4 + 4 * f + 2 * a
            k(f"ds_read_b64_tr_b16 v[{d}:{d+1}], v{v0} offset:{a*(1024 if wd else 2048) + f*32}")
    k(f"""s_cmp_lt_u32 s{su}, 200
    s_cselect_b32 s{s0}, {20*5120}, 0
    s_cselect_b32 s{s0+3}, 0, {48*5120}
    s_add_u32 s{s0}, s{s0}, s{s0+3}
    s_cselect_b32 s{s0+3}, 0, {WDP-WOP}
    s_cmp_lt_u32 s{su}, 200
    s_cselect_b32 s{s0+3}, 0, {WDP-WOP}
    s_add_u32 s{s0+3}, s{s0+3}, {WOP}
    s_mul_i32 s{s0+1}, s{s0+1}, 5120
    s_add_u32 s{s0+3}, s{s0+3}, s{s0+1}      ; base + s32*5120
    s_lshl_b32 s{s0+2}, s{s0+2}, 2           ; ft0""")
    for f in range(4):
        k(f"""s_add_u32 s{s0+4}, s{s0+2}, {f}
        s_mul_i32 s{s0+5}, s{s0+4}, 52
        s_lshr_b32 s{s0+5}, s{s0+5}, 8
        s_mul_i32 s{s0+6}, s{s0+5}, 5
        s_sub_u32 s{s0+6}, s{s0+4}, s{s0+6}      ; j
        s_mul_i32 s{s0+5}, s{s0+5}, s{s0}
        s_lshl_b32 s{s0+6}, s{s0+6}, 10
        s_add_u32 s{s0+5}, s{s0+5}, s{s0+6}
        s_add_u32 s{s0+5}, s{s0+5}, s{s0+3}
        buffer_store_dwordx4 v[{v0+4+4*f}:{v0+7+4*f}], v{v0+1}, s[{sr_ws}:{sr_ws+3}], s{s0+5} offen sc1""")

def repackgu_issue(k, su, spw, scr, sr_g, sr_u, v0, s0, lane, sr_ws, gsl):
    k(f"""s_mul_i32 s{s0+1}, s{su}, 2731
    s_lshr_b32 s{s0+1}, s{s0+1}, 16      ; c64 = u/24
    s_mul_i32 s{s0+2}, s{s0+1}, 24
    s_sub_u32 s{s0+2}, s{su}, s{s0+2}    ; cg
    s_lshl_b32 s{s0}, s{s0+1}, 2
    s_add_u32 s{s0}, s{s0}, s{spw}
    s_mul_i32 s{s0}, s{s0}, {16*3072}
    s_lshl_b32 s{s0+3}, s{s0+2}, 7
    s_add_u32 s{s0}, s{s0}, s{s0+3}
    s_add_u32 s{s0+3}, s{s0}, {8*3072}
    s_lshl_b32 s{s0+4}, s{spw}, 12
    v_lshrrev_b32 v{v0}, 3, v{lane}
    v_mul_u32_u24 v{v0}, 3072, v{v0}
    v_and_b32 v{v0+1}, 7, v{lane}
    v_lshl_add_u32 v{v0}, v{v0+1}, 4, v{v0}""")
    for i, (sr, so) in enumerate(((sr_g, s0), (sr_g, s0 + 3), (sr_u, s0), (sr_u, s0 + 3))):
        k(f"s_add_u32 m0, s{s0+4}, {scr + 1024*i}")
        last = k(f"buffer_load_dwordx4 v{v0}, s[{sr}:{sr+3}], s{so} offen lds")
    if gsl is None: return last
    return repackgu_gsdma(k, v0, s0, lane, sr_ws, gsl)

def repackgu_gsdma(k, v0, s0, lane, sr_ws, gsl, fl=""):
    k(f"""v_and_b32 v{v0}, 15, v{lane}
    v_lshlrev_b32 v{v0}, 4, v{v0}
    v_bfe_u32 v{v0+1}, v{lane}, 4, 1
    v_mul_u32_u24 v{v0+1}, 2560, v{v0+1}
    v_add_u32 v{v0}, v{v0}, v{v0+1}
    s_lshl_b32 s{s0+4}, s{s0+1}, 8
    s_add_u32 s{s0+4}, s{s0+4}, {MOD + 3*2560}
    s_mov_b32 m0, {gsl}""")
    last = k(f"buffer_load_dwordx4 v{v0}, s[{sr_ws}:{sr_ws+3}], s{s0+4} offen {fl} lds")
    return last

def repackgu_gs_lds(k, gsl, v0, hreg):
    k(f"""v_lshlrev_b32 v{v0+1}, 5, v{hreg}
    v_add_u32 v{v0+1}, {gsl}, v{v0+1}""")
    for q in range(4):
        b = v0 + 8 + 16 * q
        k(f"""ds_read_b128 v[{b}:{b+3}], v{v0+1} offset:{256 + 64*q}
        ds_read_b128 v[{b+4}:{b+7}], v{v0+1} offset:{256 + 64*q+16}
        ds_read_b128 v[{b+8}:{b+11}], v{v0+1} offset:{64*q}
        ds_read_b128 v[{b+12}:{b+15}], v{v0+1} offset:{64*q+16}""")

def repackgu_gs(k, sr_ws, v0, s0, hreg):
    k(f"""v_lshlrev_b32 v{v0+1}, 5, v{hreg}
    s_lshl_b32 s{s0+4}, s{s0+1}, 8
    s_add_u32 s{s0+5}, s{s0+4}, {MOD + 4*2560}
    s_add_u32 s{s0+4}, s{s0+4}, {MOD + 3*2560}""")
    for q in range(4):
        b = v0 + 8 + 16 * q
        k(f"""buffer_load_dwordx4 v[{b}:{b+3}], v{v0+1}, s[{sr_ws}:{sr_ws+3}], s{s0+5} offen offset:{64*q}
        buffer_load_dwordx4 v[{b+4}:{b+7}], v{v0+1}, s[{sr_ws}:{sr_ws+3}], s{s0+5} offen offset:{64*q+16}
        buffer_load_dwordx4 v[{b+8}:{b+11}], v{v0+1}, s[{sr_ws}:{sr_ws+3}], s{s0+4} offen offset:{64*q}
        buffer_load_dwordx4 v[{b+12}:{b+15}], v{v0+1}, s[{sr_ws}:{sr_ws+3}], s{s0+4} offen offset:{64*q+16}""")

def repackgu_finish(k, spw, scr, sr_ws, v0, w0, s0, lane, hreg, smask, gsp=None):
    ON = w0 + 4; WR = w0 + 8; T = w0 + 24; D1 = w0 + 32; D2 = w0 + 48; WO_ = w0 + 64; SP = v0
    k(f"""v_bfe_u32 v{w0+1}, v{lane}, 2, 2          ; r
    v_lshl_add_u32 v{w0}, v{hreg}, 3, v{w0+1}
    v_lshlrev_b32 v{w0}, 7, v{w0}
    v_bfe_u32 v{w0+1}, v{lane}, 4, 1          ; fh
    v_lshl_add_u32 v{w0}, v{w0+1}, 11, v{w0}
    v_and_b32 v{w0+1}, 3, v{lane}
    v_lshl_add_u32 v{w0}, v{w0+1}, 3, v{w0}
    s_lshl_b32 s{s0}, s{spw}, 5
    s_add_u32 s{s0}, s{s0}, {scr}
    v_add_u32 v{w0}, s{s0}, v{w0}
    v_lshlrev_b32 v{w0+1}, 4, v{lane}
    v_lshlrev_b32 v{w0+2}, 2, v{lane}""")
    for d in range(4): k(f"v_mov_b32 v{ON+d}, 0x3f803f80")
    for q in range(4):
        for a in range(2):
            d = WR + 4 * q + 2 * a
            k(f"ds_read_b64_tr_b16 v[{d}:{d+1}], v{w0} offset:{q*4096 + a*512}")
    k(f"""s_lshl_b32 s{s0+2}, s{s0+2}, 2
    s_add_u32 s{s0+2}, s{s0+2}, s{spw}
    s_mul_i32 s{s0}, s{s0+2}, 40960
    s_mul_i32 s{s0+4}, s{s0+1}, {24576 if gsp else 0}
    s_lshl_b32 s{s0+1}, s{s0+1}, 12
    s_add_u32 s{s0}, s{s0}, s{s0+1}
    s_add_u32 s{s0}, s{s0}, {WGUP}
    s_lshl_b32 s{s0+3}, s{s0+2}, 7
    s_add_u32 s{s0+3}, s{s0+3}, s{s0+4}
    s_add_u32 s{s0+3}, s{s0+3}, {gsp or GSUM}
    s_add_u32 s{s0+4}, s{s0+3}, 12288""")
    for q in range(4):
        w = WR + 4 * q; o = WO_ + 4 * q; G = v0 + 8 + 16 * q; Sv = G + 8; sp = SP + 4 * (q % 2)
        for d in range(4): k(f"v_cvt_pk_bf16_f32 v{sp+d}, v{Sv+2*d}, v{Sv+2*d+1}")
        k(f"v_mfma_f32_32x32x16_bf16 v[{D1}:{D1+15}], v[{sp}:{sp+3}], v[{w}:{w+3}], {'v[%d:%d]' % (D1, D1+15) if q else 0}")
        for d in range(4):
            k(f"v_lshlrev_b32 v{T+2*d}, 16, v{w+d}")
            k(f"v_and_b32 v{T+2*d+1}, s{smask}, v{w+d}")
        for d in range(8): k(f"v_mul_f32 v{T+d}, v{T+d}, v{G+d}")
        for d in range(4): k(f"v_cvt_pk_bf16_f32 v{o+d}, v{T+2*d}, v{T+2*d+1}")
        k(f"v_mfma_f32_32x32x16_bf16 v[{D2}:{D2+15}], v[{ON}:{ON+3}], v[{o}:{o+3}], {'v[%d:%d]' % (D2, D2+15) if q else 0}")
        k(f"buffer_store_dwordx4 v[{o}:{o+3}], v{w0+1}, s[{sr_ws}:{sr_ws+3}], s{s0} offen offset:{1024*q} sc1")
    k(f"v_mov_b32 v{T}, v{D1}"); k(f"v_mov_b32 v{T+1}, v{D2}")
    k("s_mov_b32 exec_hi, 0")
    if gsp:
        k(f"buffer_store_dword v{T}, v{w0+2}, s[{sr_ws}:{sr_ws+3}], s{s0+4} offen sc1")
        k(f"buffer_store_dword v{T+1}, v{w0+2}, s[{sr_ws}:{sr_ws+3}], s{s0+3} offen sc1")
    else:
        k(f"buffer_atomic_add_f32 v{T}, v{w0+2}, s[{sr_ws}:{sr_ws+3}], s{s0+4} offen")
        k(f"buffer_atomic_add_f32 v{T+1}, v{w0+2}, s[{sr_ws}:{sr_ws+3}], s{s0+3} offen")
    k("s_mov_b64 exec, -1")

import copy
def snap(k): return copy.deepcopy((k.pos, k.wr, k.mfma_c_rd, k.store_rd, k.vmq, k.lgq, k.pend_vm, k.pend_lg))
def restore(k, st): (k.pos, k.wr, k.mfma_c_rd, k.store_rd, k.vmq, k.lgq, k.pend_vm, k.pend_lg) = copy.deepcopy(st)

def gen_gemm32(mode):
    qkv = (mode == 'qkv')
    nm = 'k1' if qkv else 'k4'
    k = Kern("k1_qkv_kernel" if qkv else "k4_ffn_kernel")
    if qkv:
        NSLOT = 5; SS = 16384; NT = 2; GRP = 4
    else:
        NSLOT = 4; UOFF = 12320; SS = 24640; NT = 3; GRP = 2
    SCR = NSLOT * SS
    XHB = SCR + 16384
    GSB_L = XHB + 49152
    LDS = GSB_L + 5120
    stamp(k, 0)
    k(f"""s_cmp_ge_u32 s2, 256
    s_cbranch_scc1 L_{nm}_end""")
    k(f"s_load_dwordx2 s[4:5], s[0:1], {ARG['wqkv']}")
    k(f"s_load_dwordx4 s[36:39], s[0:1], {ARG['wg']}")
    k(f"s_load_dwordx2 s[44:45], s[0:1], {ARG['wd']}")
    k(f"""s_load_dwordx2 s[6:7], s[0:1], {ARG['ws']}
    s_and_b32 s20, s2, 7              ; xcd
    s_lshr_b32 s21, s2, 3             ; idx
{MAP14}""")
    if qkv:
        k(f"""s_cmp_ge_u32 s23, 15
        s_cbranch_scc1 L_{nm}_idle""")
    k(f"""v_lshrrev_b32 v1, 6, v0
    v_and_b32 v2, 63, v0              ; lane
    v_readfirstlane_b32 s24, v1       ; wave
    s_mov_b32 s30, 0xffff0000
    v_lshrrev_b32 v20, 5, v2          ; h
    v_lshlrev_b32 v5, 4, v2           ; lane*16""")
    k.waitall()
    srd(k, 12, 6, NB['ws'])
    k(f"""s_cmp_ge_u32 s24, 4
    s_cbranch_scc1 L_{nm}_prod""")
    st0 = snap(k)

    ACC = 32; XF = 128; WF = 144; TMP = 168
    k(f"""s_lshr_b32 s25, s24, 1            ; tm
    s_and_b32 s26, s24, 1             ; tn
    v_bfe_u32 v21, v2, 4, 1           ; fh
    v_bfe_u32 v22, v2, 2, 2           ; r
    v_and_b32 v23, 3, v2              ; c4""")
    ngrp = (NSLOT + GRP - 1) // GRP
    if qkv:
        k("""v_lshlrev_b32 v24, 11, v20        ; h*2048
        v_lshl_add_u32 v24, v22, 8, v24   ; + r*256
        v_lshl_add_u32 v24, v21, 5, v24   ; + fh*32
        v_lshl_add_u32 v24, v23, 3, v24   ; + c4*8
        s_lshl_b32 s27, s26, 1""")
        for j in range(2):
            k(f"s_add_u32 s28, s27, {j}")
            k(f"v_xor_b32 v25, s28, v22")
            k(f"v_lshl_add_u32 v{8+j*2}, v25, 6, v24")
            k(f"v_add_u32 v{9+j*2}, {GRP*SS}, v{8+j*2}")
    else:
        k(f"""v_lshl_add_u32 v24, v20, 3, v22   ; 8h + r
        v_mul_u32_u24 v24, 192, v24
        v_mul_u32_u24 v25, {UOFF}, v21
        v_add_u32 v24, v24, v25
        v_lshl_add_u32 v24, v23, 3, v24
        s_mul_i32 s27, s26, 96
        v_add_u32 v8, s27, v24
        v_add_u32 v9, {GRP*SS}, v8
        v_add_u32 v10, {2*GRP*SS}, v8""")
    k(f"""s_lshl_b32 s27, s25, 11
    s_add_u32 s27, s27, {XHB}
    v_add_u32 v12, s27, v5""")
    if qkv:
        srd(k, 8, 4, NB['wqkv'])
        k(f"""v_lshrrev_b32 v13, 4, v2           ; rr
        v_and_b32 v14, 15, v2              ; pos
        v_lshlrev_b32 v15, 2, v13
        v_xor_b32 v14, v14, v15
        v_mul_u32_u24 v13, 3840, v13
        v_lshl_add_u32 v13, v14, 4, v13
        s_mul_i32 s40, s24, {16*3840}
        s_lshl_b32 s41, s23, 8
        s_add_u32 s40, s40, s41
        s_lshl_b32 s41, s24, 12""")
    else:
        srd(k, 8, 36, NB['wg']); srd(k, 16, 38, NB['wu'])
        for t in range(3):
            k(f"""v_add_u32 v16, {64*t}, v2
            v_mul_u32_u24 v17, 0xaaab, v16
            v_lshrrev_b32 v17, 19, v17        ; row = p/12
            v_mul_u32_u24 v18, 12, v17
            v_sub_u32 v18, v16, v18           ; ch
            v_mul_u32_u24 v17, 3072, v17
            v_lshl_add_u32 v{13+t}, v18, 4, v17""")
        k(f"""s_mul_i32 s40, s24, {16*3072}
        s_mul_i32 s41, s23, 192
        s_add_u32 s40, s40, s41
        s_mul_i32 s41, s24, 3072""")
    dma_ids = {}
    def wdma(c):
        slot = c % NSLOT
        out = []
        if qkv:
            for i in range(4):
                def f(i=i):
                    k(f"s_add_u32 m0, s41, {slot*SS + i*1024}")
                    k(f"s_add_u32 s42, s40, {(64*c + 4*i)*3840}")
                    dma_ids[c] = k(f"buffer_load_dwordx4 v13, s[8:11], s42 offen lds")
                out.append(f)
        else:
            for u in range(2):
                for t in range(3):
                    def f(u=u, t=t):
                        if u == 0 and t == 0: k(f"s_add_u32 s42, s40, {64*c*3072}")
                        k(f"s_add_u32 m0, s41, {slot*SS + u*UOFF + t*1024}")
                        dma_ids[c] = k(f"buffer_load_dwordx4 v{13+t}, s[{8+8*u}:{11+8*u}], s42 offen lds")
                    out.append(f)
        return out
    LAW = int([e for e in EXP if e.startswith('law')][0][3:]) if any(e.startswith('law') for e in EXP) else 3
    for c in range(LAW):
        for f in wdma(c): f()
    for i in range(2 * NT * 16):
        k(f"v_mov_b32 v{ACC+i}, 0")

    def reads(s):
        c = s // 4; ks = s % 4; slot = c % NSLOT
        grp = slot // GRP; so = (slot % GRP) * SS
        out = []
        for i in range(2):
            d = XF + (s % 2) * 8 + i * 4
            out.append(f"ds_read_b128 v[{d}:{d+3}], v12 offset:{(c%3)*16384 + ks*4096 + i*1024}")
        for j in range(NT):
            for a in range(2):
                d = WF + (s % 2) * 12 + j * 4 + a * 2
                if qkv:
                    out.append(f"ds_read_b64_tr_b16 v[{d}:{d+1}], v{8+j*2+grp} offset:{so + ks*4096 + a*1024}")
                else:
                    out.append(f"ds_read_b64_tr_b16 v[{d}:{d+1}], v{8+grp} offset:{so + ks*3072 + a*768 + j*32}")
        return [out[0]] + out[2:4] + [out[1]] + out[4:]
    stamp(k, 1)
    k.wait_vm_id(dma_ids[0])
    k("s_barrier")
    stamp(k, 2)
    for t in reads(0): k(t)
    if qkv:
        k("s_cmp_ge_u32 s23, 10")
        k(f"s_cbranch_scc1 L_{nm}_v")
    st1 = snap(k); dma1 = dict(dma_ids)
    def mainloop(swap):
        pend = wdma(LAW)
        for s in range(40):
            c = s // 4
            if s % 4 == 3 and c < 9:
                k.wait_vm_id(dma_ids[c + 1]); k.wait_lg(0)
                k("s_barrier")
                stamp(k, 3 + c)
                if c + 1 + LAW <= 9: pend = wdma(c + 1 + LAW)
            fill = reads(s + 1) if s + 1 < 40 else []
            nd = (len(pend) + 1) // 2 if s % 4 != 2 else len(pend)
            nd = min(len(pend), 2 if qkv else 3)
            fill = fill + pend[:nd]; pend = pend[nd:]
            mf = []
            for j in range(NT):
                for i in range(2):
                    w = f"v[{WF+(s%2)*12+j*4}:{WF+(s%2)*12+j*4+3}]"; x = f"v[{XF+(s%2)*8+i*4}:{XF+(s%2)*8+i*4+3}]"
                    d0 = ACC + 16 * (i * NT + j)
                    d = f"v[{d0}:{d0+15}]"
                    mf.append(f"v_mfma_f32_32x32x16_bf16 {d}, {x if swap else w}, {w if swap else x}, {d}")
            n = len(mf); per = 2
            fi = 0
            if 'noreads' in EXP: fill = []
            for m in mf:
                if 'nomfma' not in EXP: k(m)
                for _ in range(per):
                    if fi < len(fill):
                        f = fill[fi]; fi += 1
                        if callable(f): f()
                        else: k(f)
    mainloop(False)
    stamp(k, 12)
    if qkv:
        k(f"""s_cmp_ge_u32 s23, 5
        s_cselect_b32 s29, {KB-QB}, 0
        s_cselect_b32 s31, 5, 0
        s_add_u32 s29, s29, {QB}
        s_sub_u32 s31, s23, s31           ; nb'
        s_lshl_b32 s31, s31, 12           ; 16 groups * 256
        s_lshl_b32 s32, s26, 11
        s_add_u32 s29, s29, s31
        s_add_u32 s29, s29, s32
        s_lshl_b32 s32, s22, 3
        s_lshl_b32 s33, s25, 2
        s_add_u32 s32, s32, s33
        s_mul_i32 s32, s32, 20480
        s_add_u32 s29, s29, s32
        s_add_u32 s31, s29, 40960         ; i = 1
        v_bfe_u32 v3, v2, 4, 1
        v_mul_u32_u24 v4, 20480, v3
        v_and_b32 v3, 15, v2
        v_lshl_add_u32 v4, v3, 4, v4
        v_lshl_add_u32 v4, v20, 8, v4     ; + h*256""")
        n = 0
        for j in range(2):
            for i in range(2):
                for ap in range(2):
                    r = ACC + 16 * (i * NT + j) + 8 * ap
                    t = TMP + 4 * (n % 4); n += 1
                    for e in range(4): k(f"v_cvt_pk_bf16_f32 v{t+e}, v{r+2*e}, v{r+2*e+1}")
                    k(f"v_permlane32_swap_b32 v{t}, v{t+2}")
                    k(f"v_permlane32_swap_b32 v{t+1}, v{t+3}")
                    k(f"buffer_store_dwordx4 v[{t}:{t+3}], v4, s[12:15], s{29 if i == 0 else 31} offen offset:{j*1024 + ap*512} sc1")
        stamp_flush(k, 13)
        k("s_endpgm")
        k.label(f"L_{nm}_v")
        restore(k, st1); dma_ids.clear(); dma_ids.update(dma1)
        mainloop(True)
        k(f"""s_sub_u32 s31, s23, 10
        s_lshl_b32 s31, s31, 7            ; 128 nb'
        s_lshl_b32 s32, s26, 6
        s_add_u32 s31, s31, s32           ; + 64 tn
        s_lshl_b32 s32, s22, 2
        s_lshl_b32 s33, s25, 1
        s_add_u32 s32, s32, s33
        s_mul_i32 s32, s32, 1280
        s_add_u32 s29, s32, {VB}
        v_and_b32 v3, 31, v2              ; j
        v_add_u32 v5, s31, v3             ; f0
        s_mov_b32 s33, 81920""")
        n = 0
        for j in range(2):
            k(f"""v_add_u32 v6, {32*j}, v5
            v_mul_u32_u24 v7, 0xcccd, v6
            v_lshrrev_b32 v7, 20, v7          ; head = f/20
            v_mul_u32_u24 v8, 20, v7
            v_sub_u32 v8, v6, v8              ; d
            v_mul_lo_u32 v7, v7, s33
            v_lshl_add_u32 v7, v8, 4, v7      ; + d*16
            v_cmp_gt_u32 vcc, 16, v8
            v_lshlrev_b32 v9, 8, v20          ; h*256
            v_lshlrev_b32 v10, 6, v20
            v_add_u32 v10, 768, v10           ; 1024 - 256 + h*64
            v_cndmask_b32 v9, v10, v9, vcc
            v_add_u32 v7, v7, v9
            v_mov_b32 v9, 128
            v_mov_b32 v10, 512
            v_cndmask_b32 v9, v9, v10, vcc
            v_add_u32 v9, v7, v9""")
            for i in range(2):
                for a1 in range(2):
                    t = TMP + 4 * (n % 4); n += 1
                    r0 = ACC + 16 * (i * NT + j) + 4 * a1; r1 = r0 + 8
                    k(f"v_cvt_pk_bf16_f32 v{t}, v{r0}, v{r0+1}")
                    k(f"v_cvt_pk_bf16_f32 v{t+1}, v{r0+2}, v{r0+3}")
                    k(f"v_cvt_pk_bf16_f32 v{t+2}, v{r1}, v{r1+1}")
                    k(f"v_cvt_pk_bf16_f32 v{t+3}, v{r1+2}, v{r1+3}")
                    k(f"buffer_store_dwordx4 v[{t}:{t+3}], v{7 if a1 == 0 else 9}, s[12:15], s29 offen offset:{1280*i} sc1")
        stamp_flush(k, 13)
        k("s_endpgm")
    else:
        k(f"""s_mul_i32 s31, s23, 6
        s_mul_i32 s32, s26, 3
        s_add_u32 s31, s31, s32           ; b16 base
        s_lshl_b32 s32, s22, 3
        s_lshl_b32 s33, s25, 2
        s_add_u32 s32, s32, s33           ; T16 base
        s_mul_i32 s32, s32, {48*1024}
        s_add_u32 s29, s32, {ACT}
        v_bfe_u32 v3, v2, 4, 1
        v_mul_u32_u24 v4, {48*1024}, v3
        v_and_b32 v3, 15, v2
        v_lshl_add_u32 v4, v3, 4, v4      ; + tok16*16
        v_lshl_add_u32 v4, v20, 8, v4     ; + h*256
        v_add_u32 v6, {2*48*1024}, v4     ; i = 1
        s_mov_b32 s34, 0xbfb8aa3b""")
        n = 0
        for j in range(3):
            k(f"""s_add_u32 s32, s31, {j}
            s_lshr_b32 s33, s32, 1
            s_lshl_b32 s33, s33, 10
            s_and_b32 s32, s32, 1
            s_lshl_b32 s32, s32, 3
            s_add_u32 s33, s33, s32
            s_add_u32 s33, s33, s29""")
            for i in range(2):
                r = ACC + 16 * (i * NT + j)
                T = TMP + 8 * (n % 2); O = TMP + 16 + 4 * (n % 4); n += 1
                for e in range(8): k(f"v_mul_f32 v{T+e}, s34, v{r+e}")
                for e in range(8): k(f"v_exp_f32 v{T+e}, v{T+e}")
                for e in range(8): k(f"v_add_f32 v{T+e}, 1.0, v{T+e}")
                for e in range(8): k(f"v_rcp_f32 v{T+e}, v{T+e}")
                for e in range(8): k(f"v_mul_f32 v{r+e}, v{r+e}, v{r+8+e}")
                for e in range(8): k(f"v_mul_f32 v{r+e}, v{r+e}, v{T+e}")
                for e in range(4): k(f"v_cvt_pk_bf16_f32 v{O+e}, v{r+2*e}, v{r+2*e+1}")
                for a in range(2):
                    k(f"buffer_store_dwordx2 v[{O+2*a}:{O+2*a+1}], v{4 if i == 0 else 6}, s[12:15], s33 offen offset:{512*a}")
        stamp_flush(k, 13)
        k("s_endpgm")

    k.label(f"L_{nm}_prod")
    restore(k, st0)
    GSR = 32; TMP = 64; OUT = 80; STAT = 96; XR = 104
    XSRC = XN if qkv else X1
    k(f"""s_sub_u32 s24, s24, 4             ; pw""")
    goff = (MOD + 2560) if qkv else (MOD + 4 * 2560)
    soff = MOD if qkv else (MOD + 3 * 2560)
    k(f"""v_lshrrev_b32 v3, 2, v2
    v_and_b32 v4, 3, v2
    v_lshlrev_b32 v6, 8, v3
    v_lshl_add_u32 v6, v4, 4, v6
    v_cmp_gt_u32 vcc, 40, v2
    v_mov_b32 v7, 0x7ffffff0
    v_cndmask_b32 v6, v7, v6, vcc
    s_lshl_b32 s25, s24, 6
    s_add_u32 s26, s25, {goff}
    s_add_u32 s25, s25, {soff}
    buffer_load_dwordx4 v[{GSR}:{GSR+3}], v6, s[12:15], s26 offen
    buffer_load_dwordx4 v[{GSR+4}:{GSR+7}], v6, s[12:15], s25 offen""")
    if not qkv:
        k(f"""v_and_b32 v7, 31, v2
        v_lshlrev_b32 v7, 6, v7
        v_lshl_add_u32 v7, v20, 5, v7
        s_lshl_b32 s25, s22, 13
        s_add_u32 s25, s25, {ST}""")
        for t in range(4):
            k(f"buffer_load_dwordx4 v[{GSR+8+8*t if t < 3 else TMP}:{GSR+11+8*t if t < 3 else TMP+3}], v7, s[12:15], s25 offen offset:{2048*(t%2)}")
            k(f"buffer_load_dwordx4 v[{GSR+12+8*t if t < 3 else TMP+4}:{GSR+15+8*t if t < 3 else TMP+7}], v7, s[12:15], s25 offen offset:{2048*(t%2)+16}")
            if t == 1: k("s_add_u32 s25, s25, 4096")
    k(f"""s_mul_i32 s26, s22, {4*40960}
    s_lshl_b32 s27, s24, 10
    s_add_u32 s26, s26, s27
    s_add_u32 s26, s26, {XSRC}""")
    wr_ids = {}
    D = 4
    LAX = int([e for e in EXP if e.startswith('lax')][0][3:]) if any(e.startswith('lax') for e in EXP) else 2
    def issue(c):
        if c > 9: return
        for t in range(4):
            r = XR + (c % D) * 16 + t * 4
            k(f"s_add_u32 s29, s26, {t*40960 + c*4096}")
            k(f"buffer_load_dwordx4 v[{r}:{r+3}], v5, s[12:15], s29 offen")
    for c in range(LAX): issue(c)
    k(f"""s_mul_i32 s25, s24, 1280
    s_add_u32 s25, s25, {GSB_L}
    v_lshlrev_b32 v14, 7, v3
    v_lshrrev_b32 v15, 1, v4
    v_lshl_add_u32 v14, v15, 6, v14
    v_and_b32 v15, 1, v4
    v_lshl_add_u32 v14, v15, 4, v14
    v_add_u32 v14, s25, v14
    v_cmp_gt_u32 vcc, 40, v2
    s_and_saveexec_b64 s[34:35], vcc
    ds_write_b128 v14, v[{GSR}:{GSR+3}]
    ds_write_b128 v14, v[{GSR+4}:{GSR+7}] offset:32
    s_mov_b64 exec, s[34:35]
    v_lshlrev_b32 v15, 6, v20
    v_add_u32 v15, s25, v15
    s_lshl_b32 s25, s24, 12
    s_add_u32 s25, s25, {XHB}
    v_add_u32 v16, s25, v5""")
    if not qkv:
        for t in range(4):
            b = GSR + 8 + 8 * t if t < 3 else TMP
            k(f"""v_add_f32 v{b}, v{b}, v{b+2}
            v_add_f32 v{b+1}, v{b+1}, v{b+3}
            v_add_f32 v{b+4}, v{b+4}, v{b+6}
            v_add_f32 v{b+5}, v{b+5}, v{b+7}
            v_add_f32 v{b}, v{b}, v{b+4}
            v_add_f32 v{b+1}, v{b+1}, v{b+5}
            v_mov_b32 v{b+2}, v{b}
            v_mov_b32 v{b+3}, v{b+1}
            v_permlane32_swap_b32 v{b}, v{b+2}
            v_permlane32_swap_b32 v{b+1}, v{b+3}
            v_add_f32 v{b}, v{b}, v{b+2}
            v_add_f32 v{b+1}, v{b+1}, v{b+3}
            v_mul_f32 v{b}, 0x3acccccd, v{b}          ; mean
            v_mul_f32 v{b+1}, 0x3acccccd, v{b+1}      ; E[x2]
            v_fma_f32 v{b+1}, -v{b}, v{b}, v{b+1}     ; var
            v_max_f32 v{b+1}, 0, v{b+1}""")
            bf16r(k, b, b); bf16r(k, b + 1, b + 1)
            k(f"v_add_f32 v{b+1}, 0x3727c5ac, v{b+1}")
            bf16r(k, b + 1, b + 1)
            k(f"v_sqrt_f32 v{b+1}, v{b+1}")
            bf16r(k, b + 1, b + 1)
            k(f"v_rcp_f32 v{STAT+2*t}, v{b+1}")
            k(f"v_mul_f32 v{STAT+2*t+1}, v{b}, v{STAT+2*t}")
            k(f"v_sub_f32 v{STAT+2*t+1}, 0, v{STAT+2*t+1}")
    k.wait_lg(0)
    def gs_reads(c):
        b = GSR + (c % 2) * 16
        for i in range(4): k(f"ds_read_b128 v[{b+4*i}:{b+4*i+3}], v15 offset:{c*128 + 16*i}")
    def norm(c):
        b = GSR + (c % 2) * 16
        for t in range(4):
            r = XR + (c % D) * 16 + t * 4; o = OUT + t * 4; T = TMP + (t % 2) * 8
            if 'novalu' not in EXP:
              if qkv:
                for d in range(8):
                  k(f"v_fma_mix_f32 v{T+d}, v{r+d//2}, v{b+d}, v{b+8+d} op_sel:[{d%2},0,0] op_sel_hi:[1,0,0]")
              else:
                for d in range(4):
                  k(f"v_lshlrev_b32 v{T+2*d}, 16, v{r+d}")
                  k(f"v_and_b32 v{T+2*d+1}, s30, v{r+d}")
                for d in range(8): k(f"v_fma_f32 v{T+d}, v{T+d}, v{STAT+2*t}, v{STAT+2*t+1}")
                for d in range(8): k(f"v_fma_f32 v{T+d}, v{T+d}, v{b+d}, v{b+8+d}")
              for d in range(4): k(f"v_cvt_pk_bf16_f32 v{o+d}, v{T+2*d}, v{T+2*d+1}")
            if 'nodsw' not in EXP:
              wr_ids[c] = k(f"ds_write_b128 v16, v[{o}:{o+3}] offset:{(c%3)*16384 + t*1024}")
    stamp(k, 1)
    gs_reads(0); gs_reads(1)
    issue(LAX)
    norm(0)
    issue(LAX + 1)
    gs_reads(2)
    norm(1)
    k.wait_lg_id(wr_ids[0])
    stamp(k, 2)
    k("s_barrier")
    for p in range(9):
        issue(p + 2 + LAX)
        if p == 7:
            k(f"""s_mul_i32 s46, s22, 15
            s_add_u32 s46, s46, s23
            s_lshl_b32 s46, s46, 13
            v_lshlrev_b32 v168, 7, v2
            s_cmp_eq_u32 s24, 0
            s_cselect_b32 s48, s36, s38
            s_cselect_b32 s49, s37, s39
            s_cmp_eq_u32 s24, 2
            s_cselect_b32 s48, s44, s48
            s_cselect_b32 s49, s45, s49
            s_and_b32 s49, s49, 0xffff
            s_mov_b32 s50, {NB['wg']}
            s_mov_b32 s51, 0x00020000
            buffer_load_dword v169, v168, s[48:51], s46 offen""")
        if p + 3 <= 9: gs_reads(p + 3)
        if p + 2 <= 9: norm(p + 2)
        k.wait_lg_id(wr_ids[p + 1])
        stamp(k, 3 + p)
        k("s_barrier")
    stamp_flush(k, 12, tid=256, base=64)
    k("s_endpgm")
    k.label(f"L_{nm}_idle")
    k.vmq = []; k.lgq = []; k.pend_vm = {}; k.pend_lg = {}
    k(f"""s_load_dwordx2 s[18:19], s[0:1], {ARG['wo']}
    v_lshrrev_b32 v1, 6, v0
    v_and_b32 v2, 63, v0
    v_readfirstlane_b32 s24, v1
    s_lshl_b32 s16, s24, 4
    s_add_u32 s16, s16, s22           ; unit
    s_cmp_ge_u32 s16, 40
    s_cbranch_scc1 L_{nm}_end
    s_mul_i32 s17, s24, 20480
    s_mul_i32 s20, s16, 26
    s_lshr_b32 s20, s20, 8            ; q
    s_mul_i32 s21, s20, 10
    s_sub_u32 s21, s16, s21           ; cg
    s_mul_i32 s25, s20, {160*1280}
    s_lshl_b32 s26, s21, 7
    s_add_u32 s25, s25, s26
    v_lshrrev_b32 v8, 3, v2
    v_mul_u32_u24 v8, 1280, v8
    v_and_b32 v9, 7, v2
    v_lshl_add_u32 v8, v9, 4, v8""")
    k.waitall()
    srd(k, 12, 6, NB['ws']); srd(k, 28, 18, NB['wo'])
    for i in range(20):
        k(f"s_add_u32 m0, s17, {1024*i}")
        k(f"buffer_load_dwordx4 v8, s[28:31], s25 offen lds")
        k(f"s_add_u32 s25, s25, {8*1280}")
    k("""v_lshrrev_b32 v4, 4, v2
    v_bfe_u32 v5, v2, 2, 2
    v_and_b32 v6, 3, v2
    v_lshlrev_b32 v7, 4, v2""")
    for sp in range(5):
        k(f"""v_add_u32 v9, {4*sp}, v4
        v_mul_u32_u24 v10, 52, v9
        v_lshrrev_b32 v10, 8, v10         ; m'
        v_mul_u32_u24 v10, 20, v10
        v_lshl_add_u32 v10, v9, 2, v10    ; 4 sigma + 20 m' = 40m' + 4u
        v_add_u32 v10, v10, v5
        v_lshlrev_b32 v10, 7, v10
        v_lshl_add_u32 v10, v6, 3, v10
        v_add_u32 v{12+sp}, s17, v10""")
    k.wait_vm(0)
    k(f"""s_mul_i32 s20, s20, {5*5120}
    s_add_u32 s20, s20, {WOP}
    s_lshl_b32 s21, s21, 2""")
    for f in range(4):
        k(f"""s_add_u32 s32, s21, {f}
        s_mul_i32 s33, s32, 52
        s_lshr_b32 s33, s33, 8
        s_mul_i32 s34, s33, 5
        s_sub_u32 s34, s32, s34
        s_mul_i32 s33, s33, {20*5120}
        s_lshl_b32 s34, s34, 10
        s_add_u32 s33, s33, s34
        s_add_u32 s33, s33, s20""")
        for sp in range(5):
            d = 24 + (f % 2) * 20 + sp * 4
            for a_ in range(2):
                k(f"ds_read_b64_tr_b16 v[{d+2*a_}:{d+2*a_+1}], v{12+sp} offset:{a_*2560 + f*32}")
        for sp in range(5):
            d = 24 + (f % 2) * 20 + sp * 4
            k(f"buffer_store_dwordx4 v[{d}:{d+3}], v7, s[12:15], s33 offen sc1")
            if sp < 4: k(f"s_add_u32 s33, s33, 5120")
    k.label(f"L_{nm}_end")
    k("s_endpgm")
    return k, LDS

def gen_k2():
    k = Kern("k2_attn_kernel")
    KL = 0; VL = 30720; RP = 61440; LDS = RP + 7 * 4096
    S = [24, 96]
    QF = 168; KF = 176; T = 192; VF = 60; O = [84, 132]
    stamp(k, 0)
    k(f"""s_cmp_ge_u32 s2, 256
    s_cbranch_scc1 L_k2_end
    s_load_dwordx2 s[6:7], s[0:1], {ARG['ws']}
    s_load_dwordx2 s[18:19], s[0:1], {ARG['wd']}
    s_load_dwordx4 s[8:11], s[0:1], {ARG['wg']}
    s_and_b32 s20, s2, 7
    s_lshl_b32 s21, s20, 1
    s_bfe_u32 s20, s2, 0x10003
    s_add_u32 s21, s21, s20
    s_lshr_b32 s22, s2, 4
    v_lshrrev_b32 v1, 6, v0
    v_and_b32 v2, 63, v0
    v_readfirstlane_b32 s24, v1       ; wave
    v_and_b32 v3, 15, v2              ; i / q
    v_lshrrev_b32 v4, 4, v2           ; g
    v_lshlrev_b32 v7, 4, v2           ; lane*16
    s_lshl_b32 s25, s22, 3
    s_add_u32 s25, s25, s24
    s_mul_i32 s26, s21, 1280
    s_lshl_b32 s27, s22, 3
    s_mul_i32 s28, s24, 3
    s_add_u32 s27, s27, s28
    s_sub_u32 s27, s27, 16
    s_mul_i32 s28, s24, 3840""")
    for t in range(4):
        k(f"""v_add_u32 v12, {64*t}, v2
        v_mul_u32_u24 v13, 820, v12
        v_lshrrev_b32 v13, 16, v13        ; p/80
        v_mul_u32_u24 v14, 80, v13
        v_sub_u32 v14, v12, v14
        v_add_u32 v13, s27, v13
        v_cmp_gt_i32 vcc, 0, v13
        v_mul_i32_i24 v13, 20480, v13
        v_lshl_add_u32 v13, v14, 4, v13
        v_mov_b32 v14, 0x7ffffff0
        v_cndmask_b32 v{8+t}, v13, v14, vcc""")
    k.waitall()
    srd(k, 12, 6, NB['ws'])
    k(f"s_add_u32 s29, s26, {KB}")
    for t in range(4):
        k(f"s_add_u32 m0, s28, {1024*t}")
        if t == 3: k("s_mov_b32 exec_hi, 0x0000ffff")
        k(f"buffer_load_dwordx4 v{8+t}, s[12:15], s29 offen lds")
    k("s_mov_b64 exec, -1")
    k(f"""v_min_u32 v12, 2, v4
    v_lshlrev_b32 v12, 8, v12
    v_lshl_add_u32 v12, v3, 4, v12    ; min(g,2)*256 + i*16
    s_mul_i32 s30, s25, 20480
    s_add_u32 s30, s30, s26
    s_add_u32 s30, s30, {QB}
    buffer_load_dwordx4 v[{QF}:{QF+3}], v12, s[12:15], s30 offen""")
    kid = k(f"buffer_load_dwordx4 v[{QF+4}:{QF+7}], v12, s[12:15], s30 offen offset:512")
    k(f"""s_lshr_b32 s31, s24, 2            ; hb
    s_and_b32 s32, s24, 3
    s_lshl_b32 s33, s21, 1
    s_add_u32 s33, s33, s31           ; head
    s_mul_i32 s33, s33, 81920
    s_add_u32 s33, s33, {VB}
    s_mul_i32 s34, s22, 5120
    s_sub_u32 s34, s34, 10240
    s_lshl_b32 s35, s32, 12
    s_add_u32 s34, s34, s35
    s_mul_i32 s36, s31, 15360
    s_add_u32 s36, s36, s35
    s_add_u32 s36, s36, {VL}
    v_mov_b32 v14, 0x7ffffff0""")
    for t in range(4):
        k(f"""v_add_u32 v13, s34, v7
        v_cmp_gt_i32 vcc, 0, v13
        v_cndmask_b32 v13, v13, v14, vcc
        s_add_u32 m0, s36, {1024*t}""")
        if t == 3:
            k("""s_cmp_eq_u32 s32, 3
            s_cbranch_scc1 L_k2_v3""")
        k(f"buffer_load_dwordx4 v13, s[12:15], s33 offen lds")
        if t < 3: k("s_add_u32 s34, s34, 1024")
    k.label("L_k2_v3")
    k(f"""s_and_b32 s31, s24, 6
    s_mul_i32 s32, s31, 1280
    v_add_u32 v8, s32, v12
    s_mul_i32 s32, s31, 640
    s_add_u32 s32, s32, {VL}
    v_add_u32 v9, s32, v7
    v_and_b32 v11, 3, v3
    v_lshl_add_u32 v11, v4, 2, v11
    v_lshlrev_b32 v11, 4, v11
    v_add_u32 v11, s32, v11
    v_cmp_gt_u32 s[48:49], 4, v3
    v_mov_b32 v18, 0x3f803f80
    v_lshlrev_b32 v13, 2, v4
    s_and_b32 s33, s24, 1             ; parity""")
    MK = {0: 64, 1: 72, 16: 80, 17: 40}
    if PROF: MK = {0: 64, 1: 72, 16: 80, 17: 40}
    for r in range(4):
        k(f"""v_add_u32 v14, {r}, v13
        v_cmp_le_u32 s[50:51], v14, v3
        s_not_b64 s[52:53], s[50:51]
        s_cmp_eq_u32 s33, 0
        s_cselect_b64 s[{MK[0]+2*r}:{MK[0]+2*r+1}], s[52:53], 0
        s_cselect_b64 s[{MK[1]+2*r}:{MK[1]+2*r+1}], -1, s[52:53]
        s_cselect_b64 s[{MK[16]+2*r}:{MK[16]+2*r+1}], s[50:51], -1
        s_cselect_b64 s[{MK[17]+2*r}:{MK[17]+2*r+1}], 0, s[50:51]""")
    k(f"""s_mul_i32 s35, s25, 20480
    s_add_u32 s35, s35, s26
    s_add_u32 s35, s35, {OB}
    v_lshlrev_b32 v15, 8, v4
    v_lshl_add_u32 v15, v3, 4, v15    ; g*256 + q*16
    v_lshlrev_b32 v16, 4, v3
    v_mov_b32 v10, 0x7ffffff0
    v_cmp_gt_u32 vcc, 16, v2
    v_cndmask_b32 v16, v10, v16, vcc
    s_mov_b32 s36, 0x3ea52b5c
    v_mov_b32 v17, 0xf149f2ca
    v_cmp_gt_u32 s[50:51], 2, v4      ; g < 2
    v_cmp_gt_u32 s[52:53], 3, v4      ; g < 3
    v_cmp_ne_u32 s[54:55], 0, v4
    s_and_b64 s[54:55], s[54:55], s[52:53]   ; g in {{1,2}}""")
    k.wait_vm(3)
    for e, mk in ((0, 52), (1, 52), (2, 50), (3, 50), (4, 54), (5, 54), (6, 52), (7, 52)):
        k(f"v_cndmask_b32 v{QF+e}, 0, v{QF+e}, s[{mk}:{mk+1}]")
    k("s_barrier")
    def kread(t, i): return f"ds_read_b128 v[{KF+4*(i%4)}:{KF+4*(i%4)+3}], v8 offset:{i*1280 + t*512}"
    def qk(t):
        out = [kread(t, 0), kread(t, 1), kread(t, 2)]
        for i in range(18):
            if i + 3 < 18: out.append(kread(t, i + 3))
            out.append(f"v_mfma_f32_16x16x32_bf16 v[{S[t]+4*i}:{S[t]+4*i+3}], v[{KF+4*(i%4)}:{KF+4*(i%4)+3}], v[{QF+4*t}:{QF+4*t+3}], 0")
        return out
    def vread(t, c):
        d = VF + (c % 3) * 8
        return [f"ds_read_b128 v[{d}:{d+3}], v9 offset:{t*15360 + c*1280}", f"ds_read_b128 v[{d+4}:{d+7}], v11 offset:{t*15360 + c*1280+1024}"]
    def pv(t):
        out = vread(t, 0) + vread(t, 1)
        for c in range(9):
            d = VF + (c % 3) * 8
            if c + 2 < 9: out += vread(t, c + 2)
            for e in range(4): out.append(f"v_cndmask_b32 v{d+4+e}, v18, v{d+4+e}, s[48:49]")
            for dd in range(2):
                acc = f"v[{O[t]+4*dd}:{O[t]+4*dd+3}]"
                out.append(f"v_mfma_f32_16x16x32_bf16 {acc}, v[{d+4*dd}:{d+4*dd+3}], v[{S[t]+4*c}:{S[t]+4*c+3}], {acc if c else 0}")
        return out
    def fixup(t):
        lab = f"L_k2_fix{t}"
        k._nop(10)
        k(f"""s_cmp_ge_u32 s22, 2
        s_cbranch_scc1 {lab}
        s_and_b32 s37, s25, 0xfffe
        s_sub_u32 s37, 16, s37""")
        for tau in range(16):
            k.raw(f"    s_cmp_le_i32 s37, {tau}\n    s_cbranch_scc1 {lab}")
            for r in range(4): k.raw(f"    v_mov_b32 v{S[t]+4*tau+r}, v17")
        k.label(lab)
        k._nop(2)
    def softmax(t):
        s0 = S[t]; TT = T + 4 * t
        out = [lambda: fixup(t)]
        for ti in (0, 1, 16, 17):
            for r in range(4):
                out.append(f"v_cndmask_b32 v{s0+4*ti+r}, v17, v{s0+4*ti+r}, s[{MK[ti]+2*r}:{MK[ti]+2*r+1}]")
        regs = list(range(s0, s0 + 72))
        for j in range(4):
            out.append(f"v_max_f32 v{TT+j}, v{regs[j*18]}, v{regs[j*18+1]}")
        for i in range(8):
            for j in range(4):
                out.append(f"v_max3_f32 v{TT+j}, v{TT+j}, v{regs[j*18+2+2*i]}, v{regs[j*18+3+2*i]}")
        out += [f"v_max3_f32 v{TT}, v{TT}, v{TT+1}, v{TT+2}", f"v_max_f32 v{TT}, v{TT}, v{TT+3}",
                f"v_mov_b32 v{TT+1}, v{TT}", f"v_permlane16_swap_b32 v{TT}, v{TT+1}", f"v_max_f32 v{TT}, v{TT}, v{TT+1}",
                f"v_mov_b32 v{TT+1}, v{TT}", f"v_permlane32_swap_b32 v{TT}, v{TT+1}", f"v_max_f32 v{TT}, v{TT}, v{TT+1}",
                f"v_mul_f32 v{TT}, s36, v{TT}", f"v_sub_f32 v{TT}, 0, v{TT}"]
        G = 8
        for g0 in range(0, 72, G):
            for i in range(G): out.append(f"v_fma_f32 v{s0+g0+i}, v{s0+g0+i}, s36, v{TT}")
            for i in range(G): out.append(f"v_exp_f32 v{s0+g0+i}, v{s0+g0+i}")
            if g0 >= G:
                for i in range(0, G, 2): out.append(f"v_cvt_pk_bf16_f32 v{s0+(g0-G+i)//2}, v{s0+g0-G+i}, v{s0+g0-G+i+1}")
        for i in range(64, 72, 2): out.append(f"v_cvt_pk_bf16_f32 v{s0+i//2}, v{s0+i}, v{s0+i+1}")
        return out
    FO = 160
    def final(t):
        F = 140 + 10 * t
        out = [f"v_mov_b32 v{F}, v{O[t]+4}", f"v_mov_b32 v{F+1}, v{O[t]+4}",
               f"v_permlane16_swap_b32 v{F}, v{F+1}", f"v_rcp_f32 v{F+1}, v{F+1}"]
        for i in range(8): out.append(f"v_mul_f32 v{F+2+i}, v{O[t]+i}, v{F+1}")
        o = F + 2
        out += [f"v_cvt_pk_bf16_f32 v{FO+2*t}, v{o}, v{o+1}", f"v_cvt_pk_bf16_f32 v{FO+2*t+1}, v{o+2}, v{o+3}",
                f"v_cvt_pk_bf16_f32 v{FO+4+2*t}, v{o+4}, v{o+5}", f"v_cvt_pk_bf16_f32 v{FO+4+2*t+1}, v{o+6}, v{o+7}"]
        return out
    def mix(valu, mf):
        n = len(valu); m = len(mf); j = 0
        for i, v in enumerate(valu):
            if callable(v): v()
            else: k(v)
            while j < m and (j + 1) * n <= (i + 1) * m: k(mf[j]); j += 1
        while j < m: k(mf[j]); j += 1
    for m in qk(0): k(m)
    k.wait_vm(0)
    k("s_barrier")
    k(f"""s_cmp_ge_u32 s24, 4
    s_cbranch_scc1 L_k2_rpB
    s_cmp_ge_u32 s2, 240
    s_cbranch_scc1 L_k2_norp1""")
    srd(k, 28, 8, NB['wg']); srd(k, 4, 10, NB['wu'])
    repackgu_issue(k, 2, 24, RP, 28, 4, 100, 52, 2, 12, RP + 6*4096)
    k("s_branch L_k2_norp1")
    k.label("L_k2_rpB")
    k(f"""s_sub_u32 s16, s24, 4
    s_lshl_b32 s16, s16, 8
    s_add_u32 s16, s16, s2
    s_add_u32 s16, s16, 200
    s_lshl_b32 s17, s24, 12
    s_add_u32 s17, s17, {RP}
    s_cmp_ge_u32 s16, 680
    s_cbranch_scc1 L_k2_norp1""")
    srd(k, 28, 18, NB['wd'])
    rid = repack16_issue(k, 16, 17, 28, 28, 100, 52, 2)
    k.label("L_k2_norp1")
    k._nop(4)
    prefetch_lin(k, 12, WOP, 8*20*5120, 512, 0, 104, 38, dst='v200', full=True)
    mix(softmax(0), qk(1))
    k.wait_vm(1)
    k("s_barrier")
    mix(softmax(1), pv(0))
    mix(final(0), pv(1))
    for v in final(1): k(v)
    k(f"buffer_store_dwordx4 v[{FO}:{FO+3}], v15, s[12:15], s35 offen sc1")
    k(f"buffer_store_dwordx4 v[{FO+4}:{FO+7}], v16, s[12:15], s35 offen offset:1024 sc1")
    k(f"""s_cmp_ge_u32 s24, 4
    s_cbranch_scc1 L_k2_rpB2
    s_cmp_ge_u32 s2, 240
    s_cbranch_scc1 L_k2_norp2
    v_lshrrev_b32 v20, 5, v2
    s_mov_b32 s30, 0xffff0000""")
    repackgu_gs_lds(k, RP + 6*4096, 24, 20)
    repackgu_finish(k, 24, RP, 12, 24, 96, 52, 2, 20, 30)
    k("s_branch L_k2_norp2")
    k.label("L_k2_rpB2")
    k.vmq = []; k.lgq = []; k.pend_vm = {}; k.pend_lg = {}
    k(f"""s_cmp_ge_u32 s16, 680
    s_cbranch_scc1 L_k2_norp2""")
    repack16_finish(k, 16, 17, 12, 24, 52, 2, rid, wd=True)
    k.label("L_k2_norp2")
    stamp_flush(k, 1, wg=41)
    k.label("L_k2_end")
    k("s_endpgm")
    return k, LDS

def gen_gemm16(mode):
    wo = (mode == 'wo')
    nm = 'k3' if wo else 'k5'
    k = Kern("k3_wo_kernel" if wo else "k5_down_kernel")
    NS32 = 20 if wo else 48
    NC = NS32 // 4
    NS = 5 if wo else 7
    LA = 5
    R = 3
    XB = OB if wo else ACT
    WP = WOP if wo else WDP
    SS = 20480
    LDS = NS * SS
    ACC = 40; WF = 64; EX = 148; TMP = 180
    XA = 0; XD = LA + 2
    stamp(k, 0)
    k(f"""s_cmp_ge_u32 s2, 256
    s_cbranch_scc1 L_{nm}_end
    s_load_dwordx2 s[6:7], s[0:1], {ARG['ws']}
    s_load_dwordx2 s[36:37], s[0:1], {ARG['x'] if wo else ARG['out']}
    s_and_b32 s20, s2, 7
    s_lshr_b32 s21, s2, 3
{MAP35}
    v_lshrrev_b32 v1, 6, v0
    v_and_b32 v2, 63, v0
    v_readfirstlane_b32 s24, v1       ; wave
    v_lshlrev_b32 v5, 4, v2           ; lane*16
    v_and_b32 v3, 15, v2              ; tok
    v_lshrrev_b32 v4, 4, v2           ; g
    s_lshl_b32 s31, s22, 2
    s_add_u32 s31, s31, s24           ; T16 owned
    s_mul_i32 s25, s23, {NS32*5120}
    s_mul_i32 s26, s24, 5120
    s_add_u32 s25, s25, s26
    s_add_u32 s25, s25, {WP}
    s_mul_i32 s27, s31, {NS32*1024}
    s_add_u32 s27, s27, {XB}          ; X base
    v_add_u32 v6, 4096, v5""")
    k.waitall()
    srd(k, 12, 6, NB['ws'])
    srd(k, 16, 36, NB['x'])
    dma = {}
    def issue(c):
        out = []
        slot = c % NS
        def fx():
            k(f"s_add_u32 s30, s27, {c*4096}")
            for i in range(4):
                r = XA + (c % XD) * 16 + i * 4
                k(f"buffer_load_dwordx4 a[{r}:{r+3}], v5, s[12:15], s30 offen offset:{1024*i}")
        out.append(fx)
        def fw():
            k(f"s_add_u32 s29, s25, {c*SS}")
            k(f"s_add_u32 m0, s26, {slot*SS}")
            for t in range(4):
                k(f"buffer_load_dwordx4 v5, s[12:15], s29 offen offset:{1024*t} lds")
            k(f"s_add_u32 m0, s26, {slot*SS + 4096}")
            dma[c] = k(f"buffer_load_dwordx4 v6, s[12:15], s29 offen lds")
        out.append(fw)
        return out
    LA0 = 2
    for c in range(LA0):
        for f in issue(c): f()
    goff = MOD + (2 if wo else 5) * 2560
    k(f"""s_mul_i32 s32, s23, 320
    s_add_u32 s32, s32, {goff}
    v_lshlrev_b32 v13, 4, v4          ; g*16
    s_lshr_b32 s33, s31, 1
    s_mul_i32 s33, s33, 40960
    s_mul_i32 s34, s23, 5120
    s_add_u32 s33, s33, s34
    s_add_u32 s33, s33, {X1}          ; X1 soffset
    s_and_b32 s34, s31, 1
    s_lshl_b32 s34, s34, 8
    v_lshl_add_u32 v14, v3, 4, s34    ; tok32*16
    v_lshrrev_b32 v15, 1, v4
    v_lshl_add_u32 v14, v15, 9, v14   ; + h*512
    v_and_b32 v15, 1, v4
    v_lshl_add_u32 v14, v15, 3, v14
    s_mul_i32 s34, s31, {16*1280}
    s_mul_i32 s35, s23, 160
    s_add_u32 s34, s34, s35
    v_mul_u32_u24 v15, 1280, v3
    v_lshl_add_u32 v15, v4, 3, v15
    v_add_u32 v21, 4096, v14
    v_add_u32 v7, {3*SS}, v5
    v_add_u32 v8, {6*SS}, v5""")
    epi_loads = []
    for j in range(5):
        epi_loads.append(f"buffer_load_dwordx4 v[{EX+4*j}:{EX+4*j+3}], v13, s[12:15], s32 offen offset:{64*j}")
        if wo: epi_loads.append(f"buffer_load_dwordx2 v[{EX+20+2*j}:{EX+21+2*j}], v15, s[16:19], s34 offen offset:{32*j}")
        else:  epi_loads.append(f"buffer_load_dwordx2 v[{EX+20+2*j}:{EX+21+2*j}], v14, s[12:15], s33 offen offset:{1024*j}" if j < 4 else
                                f"buffer_load_dwordx2 v[{EX+20+2*j}:{EX+21+2*j}], v21, s[12:15], s33 offen")
    if wo: epi_loads.append(lambda: prefetch_lin(k, 12, WGUP, 48*40960, 256, 0, 30, 40, dst='v34'))
    def reads(s):
        c = s // 4; ks = s % 4; slot = c % NS
        base = (5, 7, 8)[slot // 3]; so = (slot % 3) * SS
        return [f"ds_read_b128 v[{WF+(s%4)*20+j*4}:{WF+(s%4)*20+j*4+3}], v{base} offset:{so + ks*5120 + j*1024}" for j in range(5)]
    stamp(k, 1)
    k.wait_vm_id(dma[0])
    k("s_barrier")
    for q in range(R):
        for t in reads(q): k(t)
    stamp(k, 2)
    pend = issue(2); nxt = 3
    for s in range(NS32):
        if (s + R) % 4 == 0 and (s + R) // 4 < NC:
            cb = (s + R) // 4
            for t in pend:
                if callable(t): t()
                else: k(t)
            pend = []
            k.wait_vm_id(dma[cb])
            k("s_barrier")
            for _ in range(2):
                if nxt < NC and nxt <= cb - 1 + LA:
                    pend = pend + issue(nxt); nxt += 1
            if nxt >= NC and epi_loads and len(pend) <= 2: pend = pend + epi_loads; epi_loads = []
        c = s // 4
        fill = reads(s + R) if s + R < NS32 else []
        n = 1 if len(pend) <= 4 else 4
        fill = fill + pend[:n]; pend = pend[n:]
        mf = []
        for j in range(5):
            w = f"v[{WF+(s%4)*20+j*4}:{WF+(s%4)*20+j*4+3}]"
            xr = XA + (c % XD) * 16 + (s % 4) * 4
            d0 = ACC + j * 4
            mf.append(f"v_mfma_f32_16x16x32_bf16 v[{d0}:{d0+3}], {w}, a[{xr}:{xr+3}], {'v[%d:%d]' % (d0, d0+3) if s else 0}")
        interleave(k, mf, fill)
    for t in pend + epi_loads:
        if callable(t): t()
        else: k(t)
    stamp(k, 3)
    stamp(k, 4)
    k("s_mov_b32 s30, 0xffff0000")
    PK = TMP + 16
    if wo:
        k("v_mov_b32 v26, 0"); k("v_mov_b32 v27, 0")
        k(f"""v_and_b32 v22, 1, v4
        v_lshlrev_b32 v23, 3, v22
        v_sub_u32 v23, v14, v23
        v_lshl_add_u32 v22, v22, 10, v23  ; + (g&1)*1024
        v_add_u32 v23, 4096, v23""")
    else:
        k(f"""v_and_b32 v22, 1, v4
        v_lshlrev_b32 v23, 3, v22
        v_sub_u32 v23, v15, v23           ; tok*1280 + (g>>1)*16
        v_lshl_add_u32 v22, v22, 5, v23   ; + (g&1)*32""")
    for j in range(5):
        a0 = ACC + 4 * j; gq = EX + 4 * j; xr = EX + 20 + 2 * j; T = TMP + 8 * (j % 2); P_ = PK + 2 * j
        k(f"""v_cvt_pk_bf16_f32 v{T}, v{a0}, v{a0+1}
        v_cvt_pk_bf16_f32 v{T+1}, v{a0+2}, v{a0+3}
        v_lshlrev_b32 v{a0}, 16, v{T}
        v_and_b32 v{a0+1}, s30, v{T}
        v_lshlrev_b32 v{a0+2}, 16, v{T+1}
        v_and_b32 v{a0+3}, s30, v{T+1}
        v_mul_f32 v{a0}, v{a0}, v{gq}
        v_mul_f32 v{a0+1}, v{a0+1}, v{gq+1}
        v_mul_f32 v{a0+2}, v{a0+2}, v{gq+2}
        v_mul_f32 v{a0+3}, v{a0+3}, v{gq+3}
        v_cvt_pk_bf16_f32 v{T}, v{a0}, v{a0+1}
        v_cvt_pk_bf16_f32 v{T+1}, v{a0+2}, v{a0+3}
        v_lshlrev_b32 v{a0}, 16, v{T}
        v_and_b32 v{a0+1}, s30, v{T}
        v_lshlrev_b32 v{a0+2}, 16, v{T+1}
        v_and_b32 v{a0+3}, s30, v{T+1}
        v_lshlrev_b32 v{T+2}, 16, v{xr}
        v_and_b32 v{T+3}, s30, v{xr}
        v_lshlrev_b32 v{T+4}, 16, v{xr+1}
        v_and_b32 v{T+5}, s30, v{xr+1}
        v_add_f32 v{a0}, v{a0}, v{T+2}
        v_add_f32 v{a0+1}, v{a0+1}, v{T+3}
        v_add_f32 v{a0+2}, v{a0+2}, v{T+4}
        v_add_f32 v{a0+3}, v{a0+3}, v{T+5}
        v_cvt_pk_bf16_f32 v{P_}, v{a0}, v{a0+1}
        v_cvt_pk_bf16_f32 v{P_+1}, v{a0+2}, v{a0+3}""")
        if wo:
            k(f"""v_lshlrev_b32 v{a0}, 16, v{P_}
            v_and_b32 v{a0+1}, s30, v{P_}
            v_lshlrev_b32 v{a0+2}, 16, v{P_+1}
            v_and_b32 v{a0+3}, s30, v{P_+1}""")
            for e in range(4):
                k(f"v_add_f32 v26, v26, v{a0+e}")
                k(f"v_fmac_f32 v27, v{a0+e}, v{a0+e}")
        if j == 4:
            k(f"v_mov_b32 v{P_+2}, v{P_}"); k(f"v_mov_b32 v{P_+3}, v{P_+1}")
        if j % 2 == 1 or j == 4:
            q = PK + 2 * (j - 1 if j % 2 else j)
            k(f"v_permlane16_swap_b32 v{q}, v{q+2}")
            k(f"v_permlane16_swap_b32 v{q+1}, v{q+3}")
            jj = j - 1 if j % 2 else j
            if wo:
                if j < 4: k(f"buffer_store_dwordx4 v[{q}:{q+3}], v22, s[12:15], s33 offen offset:{1024*jj} sc1")
                else: k(f"buffer_store_dwordx4 v[{q}:{q+3}], v23, s[12:15], s33 offen sc1")
            else:
                k(f"buffer_store_dwordx4 v[{q}:{q+3}], v{22 if j < 4 else 23}, s[16:19], s34 offen offset:{32*jj}")
    if wo:
        for r in (26, 27):
            k(f"""v_mov_b32 v28, v{r}
            v_permlane16_swap_b32 v{r}, v28
            v_add_f32 v{r}, v{r}, v28
            v_mov_b32 v28, v{r}
            v_permlane32_swap_b32 v{r}, v28
            v_add_f32 v{r}, v{r}, v28""")
        k(f"""s_lshl_b32 s38, s31, 10           ; T16*16*64
        s_lshl_b32 s39, s23, 3
        s_add_u32 s38, s38, s39
        s_add_u32 s38, s38, {ST}
        v_lshlrev_b32 v28, 6, v3
        v_mov_b32 v29, 0x7ffffff0
        v_cmp_gt_u32 vcc, 16, v2
        v_cndmask_b32 v28, v29, v28, vcc
        buffer_store_dwordx2 v[26:27], v28, s[12:15], s38 offen""")
    stamp_flush(k, 5)
    k.label(f"L_{nm}_end")
    k("s_endpgm")
    return k, LDS

def gen_k4():
    k = Kern("k4_ffn_kernel")
    NS = 4; SS = 40960; LA = 3
    LDS = NS * SS
    ACC = 32; XF = 80; WF = 92; GWR = 128; SWR = 176; TMP = 224; STT = 24; R = 2
    stamp(k, 0)
    k(f"""s_cmp_ge_u32 s2, 256
    s_cbranch_scc1 L_k4_end
    s_load_dwordx2 s[6:7], s[0:1], {ARG['ws']}
    s_and_b32 s20, s2, 7
    s_lshr_b32 s21, s2, 3
{MAP14}
    v_lshrrev_b32 v1, 6, v0
    v_and_b32 v2, 63, v0
    v_readfirstlane_b32 s24, v1       ; wave
    v_lshrrev_b32 v20, 5, v2          ; h
    v_lshlrev_b32 v5, 4, v2           ; lane*16
    s_and_b32 s25, s24, 3             ; tm
    s_lshr_b32 s26, s24, 2            ; tn
    s_lshr_b32 s27, s24, 1
    s_lshl_b32 s28, s22, 2
    s_add_u32 s27, s27, s28
    s_mul_i32 s27, s27, 40960
    s_and_b32 s28, s24, 1
    s_lshl_b32 s28, s28, 11
    s_add_u32 s27, s27, s28
    s_add_u32 s27, s27, {X1}          ; X src
    s_lshl_b32 s28, s24, 11
    s_mul_i32 s29, s24, 3             ; q0
    s_mul_i32 s30, s23, {6*40960}
    s_add_u32 s30, s30, {WGUP}""")
    for i in range(3):
        k(f"""s_add_u32 s31, s29, {i}
        s_lshr_b32 s32, s31, 2
        s_mul_i32 s32, s32, 40960
        s_and_b32 s31, s31, 3
        s_lshl_b32 s31, s31, 10
        s_add_u32 s32, s32, s31
        s_add_u32 s{40+i}, s32, s30""")
    k(f"""s_lshl_b32 s29, s29, 10
    s_add_u32 s29, s29, 16384""")
    k.waitall()
    srd(k, 12, 6, NB['ws'])
    dma = {}
    def issue(c):
        slot = c % NS
        out = []
        def fx():
            k(f"s_add_u32 m0, s28, {slot*SS}")
            k(f"s_add_u32 s33, s27, {c*4096}")
            k(f"buffer_load_dwordx4 v5, s[12:15], s33 offen lds")
            k(f"buffer_load_dwordx4 v5, s[12:15], s33 offen offset:1024 lds")
        out.append(fx)
        for i in range(3):
            def fw(i=i):
                k(f"s_add_u32 m0, s29, {slot*SS + i*1024}")
                k(f"s_add_u32 s33, s{40+i}, {c*4096}")
                dma[c] = k(f"buffer_load_dwordx4 v5, s[12:15], s33 offen lds")
            out.append(fw)
        for f in out: f.c = c
        return out
    for f in issue(0): f()
    k(f"""v_and_b32 v7, 31, v2
    v_lshlrev_b32 v7, 6, v7
    v_lshl_add_u32 v7, v20, 5, v7
    s_lshl_b32 s34, s22, 2
    s_add_u32 s34, s34, s25           ; T32
    s_lshl_b32 s35, s34, 11
    s_add_u32 s35, s35, {ST}
    buffer_load_dwordx4 v[{TMP}:{TMP+3}], v7, s[12:15], s35 offen
    buffer_load_dwordx4 v[{TMP+4}:{TMP+7}], v7, s[12:15], s35 offen offset:16""")
    for f in issue(1): f()
    k(f"""s_lshl_b32 s35, s25, 12
    v_add_u32 v8, s35, v5
    s_mul_i32 s35, s26, 12288
    s_add_u32 s35, s35, 16384
    v_add_u32 v12, s35, v5""")
    for g in range(1, 4):
        k(f"v_add_u32 v{8+g}, {g*SS}, v8")
        k(f"v_add_u32 v{12+g}, {g*SS}, v12")
    for i in range(48): k(f"v_mov_b32 v{ACC+i}, 0")
    def reads(s):
        c = s // 4; ks = s % 4; slot = c % NS
        out = [f"ds_read_b128 v[{XF+(s%3)*4}:{XF+(s%3)*4+3}], v{8+slot} offset:{ks*1024}"]
        for j in range(3):
            d = WF + (s % 3) * 12 + j * 4
            out.append(f"ds_read_b128 v[{d}:{d+3}], v{12+slot} offset:{j*4096 + ks*1024}")
        return out
    def stats():
        b = TMP
        k(f"""v_add_f32 v{b}, v{b}, v{b+2}
        v_add_f32 v{b+1}, v{b+1}, v{b+3}
        v_add_f32 v{b+4}, v{b+4}, v{b+6}
        v_add_f32 v{b+5}, v{b+5}, v{b+7}
        v_add_f32 v{b}, v{b}, v{b+4}
        v_add_f32 v{b+1}, v{b+1}, v{b+5}
        v_mov_b32 v{b+2}, v{b}
        v_mov_b32 v{b+3}, v{b+1}
        v_permlane32_swap_b32 v{b}, v{b+2}
        v_permlane32_swap_b32 v{b+1}, v{b+3}
        v_add_f32 v{b}, v{b}, v{b+2}
        v_add_f32 v{b+1}, v{b+1}, v{b+3}
        v_mul_f32 v{b}, 0x3acccccd, v{b}
        v_mul_f32 v{b+1}, 0x3acccccd, v{b+1}
        v_fma_f32 v{b+1}, -v{b}, v{b}, v{b+1}
        v_max_f32 v{b+1}, 0, v{b+1}""")
        bf16r(k, b, b); bf16r(k, b + 1, b + 1)
        k(f"v_add_f32 v{b+1}, 0x3727c5ac, v{b+1}")
        bf16r(k, b + 1, b + 1)
        k(f"v_sqrt_f32 v{b+1}, v{b+1}")
        bf16r(k, b + 1, b + 1)
        k(f"v_rcp_f32 v{STT}, v{b+1}")
        k(f"v_sub_f32 v{STT+1}, 0, v{b}")
    stamp(k, 1)
    k.wait_vm_id(dma[0])
    k("s_barrier")
    stamp(k, 2)
    for q in range(R):
        for t in reads(q): k(t)
    pend = issue(2) + issue(3)
    gs_id = None
    for s in range(40):
        if (s + R) % 4 == 0 and (s + R) // 4 <= 10:
            cb = (s + R) // 4
            while cb < 10 and cb not in dma or (cb < 10 and any(getattr(f, 'c', None) == cb for f in pend)):
                f = pend.pop(0); f()
            if cb < 10: k.wait_vm_id(dma[cb])
            if cb == 10: k.wait_vm_id(gs_id)
            k("s_barrier")
            stamp(k, 2 + cb)
            if cb >= 2 and cb - 2 + NS <= 9: pend = pend + issue(cb - 2 + NS)
            if cb == 9:
                pend = pend + [stats]
            if cb == 8:
                def fg():
                    nonlocal gs_id
                    k(f"""s_and_b32 s33, s24, 1
                    s_mul_i32 s35, s33, 12288
                    s_lshl_b32 s33, s33, 10
                    s_add_u32 m0, s33, {2*SS}
                    s_mul_i32 s33, s23, 768
                    s_add_u32 s33, s33, s35
                    s_add_u32 s33, s33, {GSUM}""")
                    gs_id = k(f"buffer_load_dwordx4 v5, s[12:15], s33 offen lds")
                pend = pend + [fg, lambda: prefetch_lin(k, 12, WDP, 8*48*5120, 512, 0, 26, 36, dst='v30', full=True)]
        fill = reads(s + R) if s + R < 40 else []
        if s >= 38:
            if s == 38:
                k(f"""s_mul_i32 s33, s26, 384
                s_add_u32 s33, s33, {2*SS}
                v_lshlrev_b32 v16, 4, v20
                v_add_u32 v16, s33, v16""")
            for a in (2 * (s - 38), 2 * (s - 38) + 1):
                for j in range(3):
                    fill.append(f"ds_read_b128 v[{GWR+16*j+4*a}:{GWR+16*j+4*a+3}], v16 offset:{j*128 + a*32}")
                    fill.append(f"ds_read_b128 v[{SWR+16*j+4*a}:{SWR+16*j+4*a+3}], v16 offset:{1024 + j*128 + a*32}")
        n = min(len(pend), 2)
        fill = fill + pend[:n]; pend = pend[n:]
        mf = []
        for j in range(3):
            w = f"v[{WF+(s%3)*12+j*4}:{WF+(s%3)*12+j*4+3}]"; x = f"v[{XF+(s%3)*4}:{XF+(s%3)*4+3}]"
            d = f"v[{ACC+16*j}:{ACC+16*j+15}]"
            mf.append(f"v_mfma_f32_32x32x16_bf16 {d}, {w}, {x}, {d}")
        interleave(k, mf, fill)
    k(f"""s_mul_i32 s31, s23, 6
    s_mul_i32 s32, s26, 3
    s_add_u32 s31, s31, s32           ; b16 base
    s_mul_i32 s32, s34, {2*48*1024}
    s_add_u32 s29, s32, {ACT}
    v_bfe_u32 v3, v2, 4, 1
    v_mul_u32_u24 v4, {48*1024}, v3
    v_and_b32 v3, 15, v2
    v_lshl_add_u32 v4, v3, 4, v4
    v_lshl_add_u32 v4, v20, 8, v4
    s_mov_b32 s35, 0xbfb8aa3b""")
    for j in range(3):
        k(f"""s_add_u32 s32, s31, {j}
        s_lshl_b32 s33, s32, 9            ; b16*512 = s32*1024 + (b16&1)*512
        s_add_u32 s33, s33, s29""")
        r = ACC + 16 * j; gw = GWR + 16 * j; sw = SWR + 16 * j
        T = TMP + 8 * (j % 2); O = TMP + 16 + 4 * j
        for e in range(16): k(f"v_fmac_f32 v{r+e}, v{gw+e}, v{STT+1}")
        for e in range(16): k(f"v_fmac_f32 v{sw+e}, v{r+e}, v{STT}")
        for e in range(8): k(f"v_mul_f32 v{T+e}, s35, v{sw+e}")
        for e in range(8): k(f"v_exp_f32 v{T+e}, v{T+e}")
        for e in range(8): k(f"v_add_f32 v{T+e}, 1.0, v{T+e}")
        for e in range(8): k(f"v_rcp_f32 v{T+e}, v{T+e}")
        for e in range(8): k(f"v_mul_f32 v{sw+e}, v{sw+e}, v{sw+8+e}")
        for e in range(8): k(f"v_mul_f32 v{sw+e}, v{sw+e}, v{T+e}")
        for e in range(4): k(f"v_cvt_pk_bf16_f32 v{O+e}, v{sw+2*e}, v{sw+2*e+1}")
        k(f"buffer_store_dwordx4 v[{O}:{O+3}], v4, s[12:15], s33 offen sc1")
    stamp_flush(k, 13)
    k.label("L_k4_end")
    k("s_endpgm")
    return k, LDS

def all_kernels():
    k0 = gen_k0()
    k1, l1 = gen_gemm32('qkv')
    k2, l2 = gen_k2()
    k3, l3 = gen_gemm16('wo')
    k4, l4 = gen_k4()
    k5, l5 = gen_gemm16('down')
    return [(k0, 256, 256, 4096), (k1, 256, 512, l1), (k2, 256, 512, l2), (k3, 256, 256, l3), (k4, 256, 512, l4), (k5, 256, 256, l5)]

if __name__ == "__main__":
    if len(sys.argv) > 1 and sys.argv[1] == "prof": PROF = True
    for e in sys.argv[2:]: EXP.add(e)
    open("cur" + "_".join([""] + sys.argv[2:]) + ".s", "w").write(build_file(all_kernels()))
```

```python
import sys
sys.path.insert(0, "work")
import gen as G
from gen import *

CNT = 0x1BD8000
C1, C2, C3, C4, CWO, CRP = 0, 16, 32, 48, 64, 80
RP = 131072
MPROF = False
LDX = "sc1"

def reset(k):
    k.vmq = []; k.lgq = []; k.pend_vm = {}; k.pend_lg = {}

DPROF = False
def mstamp(k, slot, wave=0):
    if DPROF and slot < 15:
        lab = f"L_ds{slot}_{len(k.lines)}"
        k.raw(f"""    s_cmp_lg_u32 s3, {wave}
    s_cbranch_scc1 {lab}
    s_cmp_lg_u32 s2, 37
    s_cbranch_scc1 {lab}
    s_memrealtime s[100:101]
    s_waitcnt lgkmcnt(0)
    v_mov_b32 v255, s100
    s_load_dwordx2 s[100:101], s[0:1], {ARG['dbg']}
    s_waitcnt lgkmcnt(0)
    v_mov_b32 v254, {4 + 4*slot}
    s_mov_b64 exec, 1
    global_store_dword v254, v255, s[100:101]
    s_mov_b64 exec, -1
{lab}:""")
        k.maxv = max(k.maxv, 255); k.maxs = max(k.maxs, 101)
        return
    if not MPROF: return
    lab = f"L_ms{slot}_{len(k.lines)}"
    k.raw(f"""    s_cmp_lg_u32 s3, {wave}
    s_cbranch_scc1 {lab}
    s_memrealtime s[100:101]
    s_waitcnt lgkmcnt(0)
    s_lshl_b32 s101, s2, 2
    s_add_u32 s101, s101, {G.PROFOFF + slot * 1024}
    v_mov_b32 v255, s100
    v_mov_b32 v254, s101
    s_memtime s[100:101]
    s_waitcnt lgkmcnt(0)
    v_mov_b32 v253, s100
    s_mov_b64 exec, 1
    global_store_dword v254, v255, s[84:85]
    v_add_u32 v254, 16384, v254
    global_store_dword v254, v253, s[84:85]
    s_mov_b64 exec, -1
{lab}:""")
    k.maxv = max(k.maxv, 255); k.maxs = max(k.maxs, 101)
    k.vm_extra = True

FLG = 0x1C40000
NREP = 16; RSTR = 16384
FX, FM, F1, FW, F2, F3, F4, FRP = 0, 2048, 4096, 6144, 8192, 10240, 12288, 14336
MODP = 0x4000
MODP = 0x1BE0000
GSP = 0x1C00000
TAG = 83

def flag_store(k, soff, wave, name):
    k(f"""s_cmp_lg_u32 s3, {wave}
    s_cbranch_scc1 L_sig_{name}
    s_add_u32 s{soff}, s{soff}, {FLG}
    v_lshlrev_b32 v250, 14, v2
    v_add_u32 v250, s{soff}, v250
    v_mov_b32 v251, s{TAG}
    s_mov_b64 exec, 0xffff""")
    k.raw("    global_store_dword v250, v251, s[84:85] sc1")
    k("s_mov_b64 exec, -1")
    k.label(f"L_sig_{name}")
    k._nop(2)

def signal(k, soff, name, wave=0):
    k.waitall()
    k.label(f"L_sigb_{name}")
    k("s_barrier")
    reset(k)
    flag_store(k, soff, wave, name)

SLP = 2
def wait(k, name, poller, voff, nl, barrier=True, slp=None):
    k(f"""s_cmp_lg_u32 s3, {poller}
    s_cbranch_scc1 L_wt_{name}
    s_and_b32 s82, s2, 15
    s_lshl_b32 s82, s82, 14
    s_add_u32 s82, s82, {FLG}
    v_add_u32 v247, s82, v{voff}
    s_mov_b32 s82, 0x200000""")
    if nl < 64:
        if nl <= 32: k(f"s_mov_b64 exec, {(1 << nl) - 1}")
        else: k(f"s_mov_b32 exec_hi, {(1 << (nl - 32)) - 1}")
    k.label(f"L_wl_{name}")
    k.raw(f"""    global_load_dwordx4 v[248:251], v247, s[84:85] sc1
    s_waitcnt vmcnt(0)
    v_xor_b32 v248, s{TAG}, v248
    v_xor_b32 v249, s{TAG}, v249
    v_xor_b32 v250, s{TAG}, v250
    v_xor_b32 v251, s{TAG}, v251
    v_or3_b32 v248, v248, v249, v250
    v_or_b32 v248, v248, v251
    v_cmp_ne_u32 vcc, 0, v248
    s_nop 4
    s_cbranch_vccz L_wd_{name}
    s_sleep {slp or SLP}
    s_sub_u32 s82, s82, 1
    s_cmp_lg_u32 s82, 0
    s_cbranch_scc1 L_wl_{name}
L_wd_{name}:
    s_mov_b64 exec, -1""")
    k.label(f"L_wt_{name}")
    k._nop(2)
    if barrier: k("s_barrier")

def get_tag(k, name):
    k.raw(f"""    s_mov_b32 s82, 0x200000
    v_mov_b32 v250, 0
L_tg_{name}:
    s_waitcnt vmcnt(0)
    v_readfirstlane_b32 s{TAG}, v252
    s_nop 3
    s_cmp_lg_u32 s{TAG}, 0
    s_cbranch_scc1 L_tgd_{name}
    global_load_dword v252, v250, s[80:81] sc1
    s_sub_u32 s82, s82, 1
    s_cmp_lg_u32 s82, 0
    s_cbranch_scc1 L_tg_{name}
L_tgd_{name}:""")
    reset(k)

def gemv_unit(k, name, first, VB=0):
    k(f"""s_load_dwordx4 s[52:55], s[0:1], {ARG['c']}
    s_lshr_b32 s36, s2, 2             ; cgp
    s_and_b32 s37, s2, 3
    s_lshl_b32 s37, s37, 1
    s_and_b32 s38, s3, 1
    s_add_u32 s37, s37, s38           ; ke
    s_mul_i32 s38, s37, {80*7680}
    s_lshl_b32 s39, s36, 7
    s_add_u32 s38, s38, s39
    s_mul_i32 s39, s37, 160
    v_lshrrev_b32 v1, 3, v2
    v_and_b32 v3, 7, v2
    v_mul_u32_u24 v4, 7680, v1
    v_lshl_add_u32 v4, v3, 4, v4
    v_lshlrev_b32 v5, 1, v1""")
    k.wait_lg(0)
    srd(k, 16, 54, NB['wmod']); srd(k, 44, 52, NB['c'])
    for i in range(10):
        k(f"buffer_load_dwordx4 v[{8+4*i}:{11+4*i}], v4, s[16:19], s38 offen")
        if i < 9: k(f"s_add_u32 s38, s38, {8*7680}")
    for i in range(10):
        k(f"buffer_load_ushort v{50+i}, v5, s[44:47], s39 offen offset:{16*i}")
    k.raw("    v_mov_b32 v250, 0\n    global_load_dword v252, v250, s[80:81] sc1")
    get_tag(k, name)
    for i in range(10):
        c = 50 + i
        k(f"""v_lshlrev_b32 v{c}, 16, v{c}
        v_mul_f32 v{c+10}, 0xbfb8aa3b, v{c}""")
    for i in range(10): k(f"v_exp_f32 v{60+i}, v{60+i}")
    for i in range(10): k(f"v_add_f32 v{60+i}, 1.0, v{60+i}")
    for i in range(10): k(f"v_rcp_f32 v{60+i}, v{60+i}")
    for i in range(10): k(f"v_mul_f32 v{50+i}, v{50+i}, v{60+i}")
    for i in range(10): bf16r(k, 50 + i, 50 + i)
    for j in range(8): k(f"v_mov_b32 v{72+j}, 0")
    for i in range(10):
        for d in range(4):
            k(f"v_lshlrev_b32 v{80+2*d}, 16, v{8+4*i+d}")
            k(f"v_and_b32 v{81+2*d}, 0xffff0000, v{8+4*i+d}")
        for j in range(8): k(f"v_fmac_f32 v{72+j}, v{80+j}, v{50+i}")
    for j in range(8): k(f"v_add_f32_dpp v{72+j}, v{72+j}, v{72+j} row_ror:8 row_mask:0xf bank_mask:0xf")
    for sw in ("16", "32"):
        for j in range(8): k(f"v_mov_b32 v{80+j}, v{72+j}")
        for j in range(8): k(f"v_permlane{sw}_swap_b32 v{72+j}, v{80+j}")
        for j in range(8): k(f"v_add_f32 v{72+j}, v{72+j}, v{80+j}")
    k(f"""s_mul_i32 s38, s37, 15360
    s_lshl_b32 s39, s36, 8
    s_add_u32 s38, s38, s39
    s_add_u32 s38, s38, {MODP}
    v_lshlrev_b32 v4, 5, v2
    s_mov_b64 exec, 0xff
    buffer_store_dwordx4 v[72:75], v4, s[12:15], s38 offen sc1
    buffer_store_dwordx4 v[76:79], v4, s[12:15], s38 offen offset:16 sc1
    s_mov_b64 exec, -1
    s_lshl_b32 s36, s36, 3
    s_add_u32 s36, s36, s37
    s_lshl_b32 s36, s36, 2
    s_add_u32 s36, s36, {FLG + FM}""")

def p0(k):
    k("""s_cmp_ge_u32 s3, 6
    s_cbranch_scc1 L_p0_gemv""")
    st = snap(k)
    srd(k, 16, 86, NB['x'])
    k("""s_lshl_b32 s36, s2, 3
    s_and_b32 s37, s3, 1
    s_lshl_b32 s37, s37, 2
    s_add_u32 s36, s36, s37
    v_lshrrev_b32 v1, 4, v2
    v_add_u32 v1, s36, v1            ; row
    v_and_b32 v3, 15, v2
    v_mul_u32_u24 v4, 1280, v1
    v_lshl_add_u32 v4, v3, 4, v4""")
    for i in range(5):
        k(f"buffer_load_dwordx4 v[{8+4*i}:{11+4*i}], v4, s[16:19], 0 offen offset:{256*i}")
    k.raw("    v_mov_b32 v250, 0\n    global_load_dword v252, v250, s[80:81] sc1")
    get_tag(k, "ln")
    for i in range(20):
        k(f"v_lshlrev_b32 v{32+2*i}, 16, v{8+i}")
        k(f"v_and_b32 v{33+2*i}, 0xffff0000, v{8+i}")
    k("v_add_f32 v4, v32, v33"); k("v_add_f32 v5, v34, v35")
    for i in range(4, 40, 2):
        k(f"v_add_f32 v4, v4, v{32+i}"); k(f"v_add_f32 v5, v5, v{33+i}")
    k("v_add_f32 v4, v4, v5")
    row16_sum(k, 4)
    k("v_mul_f32 v4, 0x3acccccd, v4")
    k("v_mov_b32 v5, 0"); k("v_mov_b32 v28, 0")
    for i in range(0, 40, 2):
        k(f"v_sub_f32 v6, v{32+i}, v4"); k(f"v_sub_f32 v7, v{33+i}, v4")
        k(f"v_fmac_f32 v5, v6, v6"); k(f"v_fmac_f32 v28, v7, v7")
    k("v_add_f32 v5, v5, v28")
    row16_sum(k, 5)
    k("v_mul_f32 v5, 0x3acccccd, v5")
    bf16r(k, 4, 4); bf16r(k, 5, 5)
    k("v_add_f32 v5, 0x3727c5ac, v5")
    bf16r(k, 5, 5)
    k("v_sqrt_f32 v5, v5")
    bf16r(k, 5, 5)
    k("v_rcp_f32 v5, v5")
    for i in range(20):
        k(f"v_sub_f32 v{32+2*i}, v{32+2*i}, v4")
        k(f"v_sub_f32 v{33+2*i}, v{33+2*i}, v4")
    for i in range(20): k(f"v_cvt_pk_bf16_f32 v{8+i}, v{32+2*i}, v{33+2*i}")
    for i in range(20):
        k(f"v_lshlrev_b32 v{32+2*i}, 16, v{8+i}")
        k(f"v_and_b32 v{33+2*i}, 0xffff0000, v{8+i}")
    for i in range(40): k(f"v_mul_f32 v{32+i}, v{32+i}, v5")
    for i in range(20): k(f"v_cvt_pk_bf16_f32 v{8+i}, v{32+2*i}, v{33+2*i}")
    for i in range(20):
        k(f"v_lshlrev_b32 v{32+2*i}, 16, v{8+i}")
        k(f"v_and_b32 v{33+2*i}, 0xffff0000, v{8+i}")
    for i in range(20): k(f"v_cvt_pkrtz_f16_f32 v{8+i}, v{32+2*i}, v{33+2*i}")
    k(f"""v_lshrrev_b32 v6, 5, v1
    v_mul_u32_u24 v6, 40960, v6
    v_lshrrev_b32 v7, 1, v3
    v_lshl_add_u32 v6, v7, 10, v6
    v_and_b32 v7, 1, v3
    v_lshl_add_u32 v6, v7, 9, v6
    v_and_b32 v7, 31, v1
    v_lshl_add_u32 v6, v7, 4, v6""")
    for i in range(5):
        k(f"s_mov_b32 s36, {XN + i*8192}")
        k(f"buffer_store_dwordx4 v[{8+4*i}:{11+4*i}], v6, s[12:15], s36 offen sc1")
    k(f"""s_lshl_b32 s36, s2, 1
    s_and_b32 s37, s3, 1
    s_add_u32 s36, s36, s37
    s_lshl_b32 s36, s36, 2
    s_add_u32 s36, s36, {FLG + FX}
    s_branch L_p0_flag""")
    k.label("L_p0_gemv")
    restore(k, st)
    k(f"""s_cmp_ge_u32 s2, 240
    s_cbranch_scc1 L_p0_skip""")
    gemv_unit(k, "gv", True)
    k.label("L_p0_flag")
    k.waitall()
    k(f"""v_lshlrev_b32 v250, 14, v2
    v_add_u32 v250, s36, v250
    v_mov_b32 v251, s{TAG}
    s_mov_b64 exec, 0xffff
    global_store_dword v250, v251, s[84:85] sc1
    s_mov_b64 exec, -1
    s_branch L_p0_done""")
    k.label("L_p0_skip")
    k.raw("    v_mov_b32 v250, 0\n    global_load_dword v252, v250, s[80:81] sc1")
    get_tag(k, "sk")
    k.label("L_p0_done")
    reset(k); k._nop(4)
    k("s_barrier")

def p1(k):
    NSLOT = 5; SS = 16384; NT = 2; GRP = 4
    XHB = 6 * SS; GSB_L = XHB + 49152
    k(f"""s_and_b32 s20, s2, 7
    s_lshr_b32 s21, s2, 3
{MAP14}
    s_mov_b32 s24, s3
    s_mov_b32 s30, 0xffff0000
    v_lshrrev_b32 v20, 5, v2          ; h
    v_lshlrev_b32 v5, 4, v2
    s_cmp_ge_u32 s24, 4
    s_cbranch_scc1 L_p1_prod
    s_cmp_ge_u32 s23, 15
    s_cbranch_scc1 L_p1_idle""")
    st0 = snap(k)
    ACC = 32; XF = 128; WF = 144; TMP = 168
    srd(k, 8, 88, NB['wqkv'])
    k(f"""v_lshrrev_b32 v13, 4, v2
    v_and_b32 v14, 15, v2
    v_lshlrev_b32 v15, 2, v13
    v_xor_b32 v14, v14, v15
    v_mul_u32_u24 v13, 3840, v13
    v_lshl_add_u32 v13, v14, 4, v13
    s_mul_i32 s40, s24, {16*3840}
    s_lshl_b32 s41, s23, 8
    s_add_u32 s40, s40, s41
    s_lshl_b32 s41, s24, 12""")
    dma_ids = {}
    def wdma(c):
        slot = c % NSLOT
        out = []
        for i in range(4):
            def f(i=i):
                k(f"s_add_u32 m0, s41, {slot*SS + i*1024}")
                k(f"s_add_u32 s42, s40, {(64*c + 4*i)*3840}")
                dma_ids[c] = k(f"buffer_load_dwordx4 v13, s[8:11], s42 offen lds")
            out.append(f)
        return out
    LAW = 3
    k.raw("    v_mov_b32 v250, 0\n    global_load_dword v252, v250, s[80:81] sc1")
    get_tag(k, "cons")
    k("""v_mov_b32 v250, 163824
    v_mov_b32 v251, 0
    ds_write_b32 v250, v251""")
    k.wait_lg(0)
    k("s_barrier")
    for c in range(LAW):
        for f in wdma(c): f()
    k(f"""s_lshr_b32 s25, s24, 1            ; tm
    s_and_b32 s26, s24, 1             ; tn
    v_bfe_u32 v21, v2, 4, 1
    v_bfe_u32 v22, v2, 2, 2
    v_and_b32 v23, 3, v2
    v_lshlrev_b32 v24, 11, v20
    v_lshl_add_u32 v24, v22, 8, v24
    v_lshl_add_u32 v24, v21, 5, v24
    v_lshl_add_u32 v24, v23, 3, v24
    s_lshl_b32 s27, s26, 1""")
    for j in range(2):
        k(f"s_add_u32 s28, s27, {j}")
        k(f"v_xor_b32 v25, s28, v22")
        k(f"v_lshl_add_u32 v{8+j*2}, v25, 6, v24")
        k(f"v_add_u32 v{9+j*2}, {GRP*SS}, v{8+j*2}")
    k(f"""s_lshl_b32 s27, s25, 11
    s_add_u32 s27, s27, {XHB}
    v_add_u32 v12, s27, v5""")
    if 'nopf1' not in G.EXP:
        prefetch(k, 8, 256, 0, 3840, 640, 16, 2048, 100, 44)
    if 'notouch' not in G.EXP:
        k(f"""s_mul_i32 s46, s22, 15
        s_add_u32 s46, s46, s23
        s_lshl_b32 s46, s46, 13
        v_lshlrev_b32 v104, 7, v2
        s_cmp_eq_u32 s24, 0
        s_cselect_b32 s48, s92, s94
        s_cselect_b32 s49, s93, s95
        s_cmp_ge_u32 s24, 2
        s_cselect_b32 s48, s96, s48
        s_cselect_b32 s49, s97, s49
        s_and_b32 s49, s49, 0xffff
        s_mov_b32 s50, {NB['wg']}
        s_mov_b32 s51, 0x00020000
        buffer_load_dword v105, v104, s[48:51], s46 offen""")
    if 'noft' not in G.EXP:
        k(f"""s_and_b32 s44, s2, 15
        s_lshl_b32 s44, s44, 14
        s_add_u32 s44, s44, {FLG}
        v_lshlrev_b32 v100, 7, v0
        v_mov_b32 v101, 0x7ffffff0
        v_cmp_gt_u32 vcc, 128, v0
        v_cndmask_b32 v100, v101, v100, vcc
        buffer_load_dword v102, v100, s[12:15], s44 offen""")
    for i in range(64): k(f"v_mov_b32 v{ACC+i}, 0")
    def reads(s):
        c = s // 4; ks = s % 4; slot = c % NSLOT
        grp = slot // GRP; so = (slot % GRP) * SS
        out = []
        for i in range(2):
            d = XF + (s % 2) * 8 + i * 4
            out.append(f"ds_read_b128 v[{d}:{d+3}], v12 offset:{(c%3)*16384 + ks*4096 + i*1024}")
        for j in range(NT):
            for a in range(2):
                d = WF + (s % 2) * 12 + j * 4 + a * 2
                out.append(f"ds_read_b64_tr_b16 v[{d}:{d+1}], v{8+j*2+grp} offset:{so + ks*4096 + a*1024}")
        return [out[0]] + out[2:4] + [out[1]] + out[4:]
    k.wait_vm_id(dma_ids[0])
    mstamp(k, 15, 0)
    k("s_barrier")
    mstamp(k, 11, 0)
    for t in reads(0): k(t)
    k("s_cmp_ge_u32 s23, 10")
    k("s_cbranch_scc1 L_p1_v")
    st1 = snap(k); dma1 = dict(dma_ids)
    def mainloop(swap):
        pend = wdma(LAW)
        for s in range(40):
            c = s // 4
            if s % 4 == 3 and c < 9:
                k.wait_vm_id(dma_ids[c + 1]); k.wait_lg(0)
                k("s_barrier")
                if c + 1 + LAW <= 9: pend = wdma(c + 1 + LAW)
            fill = reads(s + 1) if s + 1 < 40 else []
            nd = min(len(pend), 2)
            fill = fill + pend[:nd]; pend = pend[nd:]
            fi = 0
            for j in range(NT):
                for i in range(2):
                    w = f"v[{WF+(s%2)*12+j*4}:{WF+(s%2)*12+j*4+3}]"; x = f"v[{XF+(s%2)*8+i*4}:{XF+(s%2)*8+i*4+3}]"
                    d0 = ACC + 16 * (i * NT + j); d = f"v[{d0}:{d0+15}]"
                    k(f"v_mfma_f32_32x32x16_bf16 {d}, {x if swap else w}, {w if swap else x}, {d}")
                    for _ in range(2):
                        if fi < len(fill):
                            f = fill[fi]; fi += 1
                            if callable(f): f()
                            else: k(f)
    mainloop(False)
    mstamp(k, 12, 0)
    k(f"""s_cmp_ge_u32 s23, 5
    s_cselect_b32 s29, {KB-QB}, 0
    s_cselect_b32 s31, 5, 0
    s_add_u32 s29, s29, {QB}
    s_sub_u32 s31, s23, s31
    s_lshl_b32 s31, s31, 12
    s_lshl_b32 s32, s26, 11
    s_add_u32 s29, s29, s31
    s_add_u32 s29, s29, s32
    s_lshl_b32 s32, s22, 3
    s_lshl_b32 s33, s25, 2
    s_add_u32 s32, s32, s33
    s_mul_i32 s32, s32, 20480
    s_add_u32 s29, s29, s32
    s_add_u32 s31, s29, 40960
    v_bfe_u32 v3, v2, 4, 1
    v_mul_u32_u24 v4, 20480, v3
    v_and_b32 v3, 15, v2
    v_lshl_add_u32 v4, v3, 4, v4
    v_lshl_add_u32 v4, v20, 8, v4""")
    n = 0
    for j in range(2):
        for i in range(2):
            for ap in range(2):
                r = ACC + 16 * (i * NT + j) + 8 * ap
                t = TMP + 4 * (n % 4); n += 1
                for e in range(4): k(f"v_cvt_pk_bf16_f32 v{t+e}, v{r+2*e}, v{r+2*e+1}")
                k(f"v_permlane32_swap_b32 v{t}, v{t+2}")
                k(f"v_permlane32_swap_b32 v{t+1}, v{t+3}")
                k(f"buffer_store_dwordx4 v[{t}:{t+3}], v4, s[12:15], s{29 if i == 0 else 31} offen offset:{j*1024 + ap*512} sc1")
    k("s_branch L_p1_done")
    k.label("L_p1_v")
    restore(k, st1); dma_ids.clear(); dma_ids.update(dma1)
    mainloop(True)
    mstamp(k, 12, 0)
    k(f"""s_sub_u32 s31, s23, 10
    s_lshl_b32 s31, s31, 7
    s_lshl_b32 s32, s26, 6
    s_add_u32 s31, s31, s32
    s_lshl_b32 s32, s22, 2
    s_lshl_b32 s33, s25, 1
    s_add_u32 s32, s32, s33
    s_mul_i32 s32, s32, 1280
    s_add_u32 s29, s32, {VB}
    v_and_b32 v3, 31, v2
    v_add_u32 v5, s31, v3
    s_mov_b32 s33, 81920""")
    n = 0
    for j in range(2):
        k(f"""v_add_u32 v6, {32*j}, v5
        v_mul_u32_u24 v7, 0xcccd, v6
        v_lshrrev_b32 v7, 20, v7
        v_mul_u32_u24 v8, 20, v7
        v_sub_u32 v8, v6, v8
        v_mul_lo_u32 v7, v7, s33
        v_lshl_add_u32 v7, v8, 4, v7
        v_cmp_gt_u32 vcc, 16, v8
        v_lshlrev_b32 v9, 8, v20
        v_lshlrev_b32 v10, 6, v20
        v_add_u32 v10, 768, v10
        v_cndmask_b32 v9, v10, v9, vcc
        v_add_u32 v7, v7, v9
        v_mov_b32 v9, 128
        v_mov_b32 v10, 512
        v_cndmask_b32 v9, v9, v10, vcc
        v_add_u32 v9, v7, v9""")
        for i in range(2):
            for a1 in range(2):
                t = TMP + 4 * (n % 4); n += 1
                r0 = ACC + 16 * (i * NT + j) + 4 * a1; r1 = r0 + 8
                k(f"v_cvt_pk_bf16_f32 v{t}, v{r0}, v{r0+1}")
                k(f"v_cvt_pk_bf16_f32 v{t+1}, v{r0+2}, v{r0+3}")
                k(f"v_cvt_pk_bf16_f32 v{t+2}, v{r1}, v{r1+1}")
                k(f"v_cvt_pk_bf16_f32 v{t+3}, v{r1+2}, v{r1+3}")
                k(f"buffer_store_dwordx4 v[{t}:{t+3}], v{7 if a1 == 0 else 9}, s[12:15], s29 offen offset:{1280*i} sc1")
    k("s_branch L_p1_done")
    k.label("L_p1_prod")
    restore(k, st0)
    GSR = 32; TMP = 64; OUT = 80; XR = 104; D = 4; LAX = 2
    p0(k)
    k(f"""s_cmp_ge_u32 s23, 15
    s_cbranch_scc1 L_sigb_p1
    s_sub_u32 s24, s24, 4
    v_lshrrev_b32 v20, 5, v2
    v_lshlrev_b32 v5, 4, v2
    s_lshl_b32 s25, s22, 7
    s_add_u32 s25, s25, {FX - 40*16}
    v_add_u32 v6, s25, v5
    v_add_u32 v7, {FM}, v5
    v_cmp_gt_u32 vcc, 40, v2
    v_cndmask_b32 v6, v6, v7, vcc""")
    wait(k, "p1", 4, 6, 48, barrier=False)
    k.raw(f"""    v_mov_b32 v250, 163824
    s_cmp_lg_u32 s3, 4
    s_cbranch_scc1 L_p1_lspin
    v_mov_b32 v251, 1
    ds_write_b32 v250, v251
    s_branch L_p1_lgo
L_p1_lspin:
    ds_read_b32 v251, v250
    s_waitcnt lgkmcnt(0)
    v_readfirstlane_b32 s82, v251
    s_nop 3
    s_cmp_lg_u32 s82, 0
    s_cbranch_scc1 L_p1_lgo
    s_sleep 1
    s_branch L_p1_lspin
L_p1_lgo:
    s_waitcnt lgkmcnt(0)""")
    mstamp(k, 10, 4)
    k(f"""v_lshrrev_b32 v3, 2, v2
    v_and_b32 v4, 3, v2
    v_lshlrev_b32 v6, 8, v3
    v_lshl_add_u32 v6, v4, 4, v6
    v_cmp_gt_u32 vcc, 40, v2
    v_mov_b32 v7, 0x7ffffff0
    v_cndmask_b32 v6, v7, v6, vcc
    s_lshl_b32 s25, s24, 6
    s_add_u32 s25, s25, {MODP}
    s_mul_i32 s26, s22, {4*40960}
    s_lshl_b32 s27, s24, 10
    s_add_u32 s26, s26, s27
    s_add_u32 s26, s26, {XN}""")
    for e in range(8):
        k(f"buffer_load_dwordx4 v[{168+8*e}:{171+8*e}], v6, s[12:15], s25 offen offset:2560 {LDX}")
        k(f"buffer_load_dwordx4 v[{172+8*e}:{175+8*e}], v6, s[12:15], s25 offen {LDX}")
        if e < 7: k("s_add_u32 s25, s25, 15360")
    wr_ids = {}
    def issue(c):
        if c > 9: return
        for t in range(4):
            r = XR + (c % D) * 16 + t * 4
            k(f"s_add_u32 s29, s26, {t*40960 + c*4096}")
            k(f"buffer_load_dwordx4 v[{r}:{r+3}], v5, s[12:15], s29 offen {LDX}")
    for c in range(LAX): issue(c)
    for e in range(1, 8):
        for q in range(8): k(f"v_add_f32 v{168+q}, v{168+q}, v{168+8*e+q}")
    for q in range(8): bf16r(k, GSR + q, 168 + q)
    for q in range(4):
        k(f"v_add_f32 v{GSR+q}, 1.0, v{GSR+q}")
        bf16r(k, GSR + q, GSR + q)
    k(f"""s_mul_i32 s25, s24, 1280
    s_add_u32 s25, s25, {GSB_L}
    v_lshlrev_b32 v14, 7, v3
    v_lshrrev_b32 v15, 1, v4
    v_lshl_add_u32 v14, v15, 6, v14
    v_and_b32 v15, 1, v4
    v_lshl_add_u32 v14, v15, 4, v14
    v_add_u32 v14, s25, v14
    v_cmp_gt_u32 vcc, 40, v2
    s_and_saveexec_b64 s[34:35], vcc
    ds_write_b128 v14, v[{GSR}:{GSR+3}]
    ds_write_b128 v14, v[{GSR+4}:{GSR+7}] offset:32
    s_mov_b64 exec, s[34:35]
    v_lshlrev_b32 v15, 6, v20
    v_add_u32 v15, s25, v15
    s_lshl_b32 s25, s24, 12
    s_add_u32 s25, s25, {XHB}
    v_add_u32 v16, s25, v5""")
    k.wait_lg(0)
    def gs_reads(c):
        b = GSR + (c % 2) * 16
        for i in range(4): k(f"ds_read_b128 v[{b+4*i}:{b+4*i+3}], v15 offset:{c*128 + 16*i}")
    def norm(c):
        b = GSR + (c % 2) * 16
        for t in range(4):
            r = XR + (c % D) * 16 + t * 4; o = OUT + t * 4; T = TMP + (t % 2) * 8
            for d in range(8):
                k(f"v_fma_mix_f32 v{T+d}, v{r+d//2}, v{b+d}, v{b+8+d} op_sel:[{d%2},0,0] op_sel_hi:[1,0,0]")
            for d in range(4): k(f"v_cvt_pk_bf16_f32 v{o+d}, v{T+2*d}, v{T+2*d+1}")
            wr_ids[c] = k(f"ds_write_b128 v16, v[{o}:{o+3}] offset:{(c%3)*16384 + t*1024}")
    gs_reads(0); gs_reads(1)
    issue(LAX)
    norm(0)
    issue(LAX + 1)
    gs_reads(2)
    k.wait_lg_id(wr_ids[0])
    k("s_barrier")
    norm(1)
    SCR = 81920; GSL = 152576
    for p in range(9):
        issue(p + 2 + LAX)
        if p == 6:
            k(f"""s_mul_i32 s46, s22, 15
            s_add_u32 s46, s46, s23           ; unit 0..239
            s_lshl_b32 s47, s46, 13
            v_lshlrev_b32 v168, 7, v2
            s_and_b32 s52, s2, 15
            s_lshl_b32 s52, s52, 14
            s_add_u32 s52, s52, {FLG + F1}
            s_cmp_eq_u32 s24, 9
            s_cselect_b32 s48, s96, s84
            s_cselect_b32 s49, s97, s85
            s_cselect_b32 s50, {NB['wd']}, s14
            s_cselect_b32 s47, s47, s52
            s_and_b32 s49, s49, 0xffff
            s_mov_b32 s51, 0x00020000
            s_cmp_eq_u32 s24, 1
            s_cselect_b32 s52, 8192, 0
            s_add_u32 s47, s47, s52
            buffer_load_dword v169, v168, s[48:51], s47 offen""")
        if p + 3 <= 9: gs_reads(p + 3)
        if p + 2 <= 9: norm(p + 2)
        k.wait_lg_id(wr_ids[p + 1])
        k("s_barrier")
    mstamp(k, 14, 4)
    k("s_branch L_sigb_p1")
    k.label("L_p1_idle")
    restore(k, st0)
    k("s_barrier")
    k.raw("    v_mov_b32 v250, 0\n    global_load_dword v252, v250, s[80:81] sc1")
    get_tag(k, "idle")
    k(f"""s_cmp_eq_u32 s24, 3
    s_cbranch_scc1 L_p1_fin
    s_nop 0""")
    k(f"""s_lshl_b32 s16, s24, 4
    s_add_u32 s16, s16, s22
    s_cmp_ge_u32 s16, 40
    s_cbranch_scc1 L_p1_done
    s_mul_i32 s17, s24, 20480
    s_mul_i32 s20, s16, 26
    s_lshr_b32 s20, s20, 8
    s_mul_i32 s21, s20, 10
    s_sub_u32 s21, s16, s21
    s_mul_i32 s25, s20, {160*1280}
    s_lshl_b32 s26, s21, 7
    s_add_u32 s25, s25, s26
    v_lshrrev_b32 v8, 3, v2
    v_mul_u32_u24 v8, 1280, v8
    v_and_b32 v9, 7, v2
    v_lshl_add_u32 v8, v9, 4, v8""")
    srd(k, 28, 90, NB['wo'])
    for i in range(20):
        k(f"s_add_u32 m0, s17, {1024*i}")
        k(f"buffer_load_dwordx4 v8, s[28:31], s25 offen lds")
        k(f"s_add_u32 s25, s25, {8*1280}")
    k("""v_lshrrev_b32 v4, 4, v2
    v_bfe_u32 v5, v2, 2, 2
    v_and_b32 v6, 3, v2
    v_lshlrev_b32 v7, 4, v2""")
    for sp in range(5):
        k(f"""v_add_u32 v9, {4*sp}, v4
        v_mul_u32_u24 v10, 52, v9
        v_lshrrev_b32 v10, 8, v10
        v_mul_u32_u24 v10, 20, v10
        v_lshl_add_u32 v10, v9, 2, v10
        v_add_u32 v10, v10, v5
        v_lshlrev_b32 v10, 7, v10
        v_lshl_add_u32 v10, v6, 3, v10
        v_add_u32 v{12+sp}, s17, v10""")
    k.wait_vm(0)
    k(f"""s_mul_i32 s20, s20, {5*5120}
    s_add_u32 s20, s20, {WOP}
    s_lshl_b32 s21, s21, 2""")
    for f in range(4):
        k(f"""s_add_u32 s32, s21, {f}
        s_mul_i32 s33, s32, 52
        s_lshr_b32 s33, s33, 8
        s_mul_i32 s34, s33, 5
        s_sub_u32 s34, s32, s34
        s_mul_i32 s33, s33, {20*5120}
        s_lshl_b32 s34, s34, 10
        s_add_u32 s33, s33, s34
        s_add_u32 s33, s33, s20""")
        for sp in range(5):
            d = 24 + (f % 2) * 20 + sp * 4
            for a_ in range(2):
                k(f"ds_read_b64_tr_b16 v[{d+2*a_}:{d+2*a_+1}], v{12+sp} offset:{a_*2560 + f*32}")
        for sp in range(5):
            d = 24 + (f % 2) * 20 + sp * 4
            k(f"buffer_store_dwordx4 v[{d}:{d+3}], v7, s[12:15], s33 offen sc1")
            if sp < 4: k(f"s_add_u32 s33, s33, 5120")
    k("s_branch L_p1_done")
    k.label("L_p1_fin")
    reset(k)
    k(f"v_add_u32 v6, {FM + 640}, v5")
    wait(k, "fin0", 3, 6, 64, barrier=False, slp=16)
    k(f"v_add_u32 v6, {FM + 640 + 256}, v5")
    wait(k, "fin1", 3, 6, 64, barrier=False, slp=16)
    k(f"""s_mul_i32 s25, s22, 640
    s_add_u32 s26, s25, {MODP + 5120}
    v_mov_b32 v7, 0x7ffffff0
    v_cmp_gt_u32 vcc, 40, v2
    v_cndmask_b32 v6, v7, v5, vcc""")
    for e in range(8):
        k(f"buffer_load_dwordx4 v[{32+4*e}:{35+4*e}], v6, s[12:15], s26 offen {LDX}")
        if e < 7: k("s_add_u32 s26, s26, 15360")
    for e in range(1, 8):
        for q in range(4): k(f"v_add_f32 v{32+q}, v{32+q}, v{32+4*e+q}")
    for q in range(4): bf16r(k, 32 + q, 32 + q)
    k("""s_lshr_b32 s27, s22, 2
    s_cmp_lg_u32 s27, 2
    s_cbranch_scc1 L_p1_fin2""")
    for q in range(4):
        k(f"v_add_f32 v{32+q}, 1.0, v{32+q}")
        bf16r(k, 32 + q, 32 + q)
    k.label("L_p1_fin2")
    k._nop(2)
    k(f"""s_add_u32 s26, s25, {MOD + 5120}
    buffer_store_dwordx4 v[32:35], v6, s[12:15], s26 offen sc1""")
    k.label("L_p1_done")
    reset(k); k._nop(12)
    mstamp(k, 13, 0)
    k.waitall()
    k.label("L_sigb_p1")
    k("s_barrier")
    reset(k)
    k(f"""s_lshl_b32 s36, s22, 7
    s_lshl_b32 s37, s23, 2
    s_add_u32 s36, s36, s37
    s_add_u32 s36, s36, {F1}""")
    flag_store(k, 36, 0, "p1")
    k(f"""s_cmp_lt_u32 s23, 15
    s_cbranch_scc1 L_p1_nofw
    s_lshl_b32 s36, s22, 2
    s_add_u32 s36, s36, {FW}""")
    flag_store(k, 36, 1, "p1w")
    k.label("L_p1_nofw")
    k("s_mov_b32 s61, s23")

def p2(k):
    KL = 0; VL = 30720
    S = [24, 96]
    QF = 168; KF = 176; T = 192; VF = 60; O = [84, 132]
    k(f"""s_and_b32 s20, s2, 7
    s_lshl_b32 s21, s20, 1
    s_bfe_u32 s20, s2, 0x10003
    s_add_u32 s21, s21, s20           ; m
    s_lshr_b32 s22, s2, 4             ; qb
    s_mov_b32 s24, s3
    v_and_b32 v3, 15, v2
    v_lshrrev_b32 v4, 4, v2
    v_lshlrev_b32 v7, 4, v2""")
    k(f"""s_lshl_b32 s25, s22, 3
    s_add_u32 s25, s25, s24
    s_mul_i32 s26, s21, 1280
    s_lshl_b32 s27, s22, 3
    s_mul_i32 s28, s24, 3
    s_add_u32 s27, s27, s28
    s_sub_u32 s27, s27, 16
    s_mul_i32 s28, s24, 3840""")
    for t in range(4):
        k(f"""v_add_u32 v12, {64*t}, v2
        v_mul_u32_u24 v13, 820, v12
        v_lshrrev_b32 v13, 16, v13
        v_mul_u32_u24 v14, 80, v13
        v_sub_u32 v14, v12, v14
        v_add_u32 v13, s27, v13
        v_cmp_gt_i32 vcc, 0, v13
        v_mul_i32_i24 v13, 20480, v13
        v_lshl_add_u32 v13, v14, 4, v13
        v_mov_b32 v14, 0x7ffffff0
        v_cndmask_b32 v{8+t}, v13, v14, vcc""")
    k(f"""v_lshrrev_b32 v19, 2, v2
    v_sub_u32 v19, s22, v19
    v_max_i32 v19, 0, v19
    v_lshlrev_b32 v19, 7, v19
    v_and_b32 v21, 3, v2
    v_lshl_add_u32 v19, v21, 4, v19
    v_add_u32 v19, {F1}, v19
    v_lshlrev_b32 v21, 4, v21
    v_add_u32 v21, {FW}, v21
    v_cmp_gt_u32 vcc, 12, v2
    v_cndmask_b32 v19, v21, v19, vcc""")
    wait(k, "p2", 7, 19, 16)
    mstamp(k, 2)
    k(f"s_add_u32 s29, s26, {KB}")
    for t in range(4):
        k(f"s_add_u32 m0, s28, {1024*t}")
        if t == 3: k("s_mov_b32 exec_hi, 0x0000ffff")
        k(f"buffer_load_dwordx4 v{8+t}, s[12:15], s29 offen {LDX} lds")
    k("s_mov_b64 exec, -1")
    k(f"""v_min_u32 v12, 2, v4
    v_lshlrev_b32 v12, 8, v12
    v_lshl_add_u32 v12, v3, 4, v12
    s_mul_i32 s30, s25, 20480
    s_add_u32 s30, s30, s26
    s_add_u32 s30, s30, {QB}
    buffer_load_dwordx4 v[{QF}:{QF+3}], v12, s[12:15], s30 offen {LDX}
    buffer_load_dwordx4 v[{QF+4}:{QF+7}], v12, s[12:15], s30 offen offset:512 {LDX}""")
    k(f"""s_lshr_b32 s31, s24, 2
    s_and_b32 s32, s24, 3
    s_lshl_b32 s33, s21, 1
    s_add_u32 s33, s33, s31
    s_mul_i32 s33, s33, 81920
    s_add_u32 s33, s33, {VB}
    s_mul_i32 s34, s22, 5120
    s_sub_u32 s34, s34, 10240
    s_lshl_b32 s35, s32, 12
    s_add_u32 s34, s34, s35
    s_mul_i32 s36, s31, 15360
    s_add_u32 s36, s36, s35
    s_add_u32 s36, s36, {VL}
    v_mov_b32 v14, 0x7ffffff0""")
    for t in range(4):
        k(f"""v_add_u32 v13, s34, v7
        v_cmp_gt_i32 vcc, 0, v13
        v_cndmask_b32 v13, v13, v14, vcc
        s_add_u32 m0, s36, {1024*t}""")
        if t == 3:
            k("""s_cmp_eq_u32 s32, 3
            s_cbranch_scc1 L_p2_v3""")
        k(f"buffer_load_dwordx4 v13, s[12:15], s33 offen {LDX} lds")
        if t < 3: k("s_add_u32 s34, s34, 1024")
    k.label("L_p2_v3")
    k(f"""s_and_b32 s31, s24, 6
    s_mul_i32 s32, s31, 1280
    v_add_u32 v8, s32, v12
    s_mul_i32 s32, s31, 640
    s_add_u32 s32, s32, {VL}
    v_add_u32 v9, s32, v7
    v_and_b32 v11, 3, v3
    v_lshl_add_u32 v11, v4, 2, v11
    v_lshlrev_b32 v11, 4, v11
    v_add_u32 v11, s32, v11
    v_cmp_gt_u32 s[48:49], 4, v3
    v_mov_b32 v18, 0x3f803f80
    v_lshlrev_b32 v13, 2, v4
    s_and_b32 s33, s24, 1""")
    MK = {0: 50, 1: 58, 16: 66, 17: 74}
    for r in range(4):
        k(f"""v_add_u32 v14, {r}, v13
        v_cmp_le_u32 s[4:5], v14, v3
        s_not_b64 s[6:7], s[4:5]
        s_cmp_eq_u32 s33, 0
        s_cselect_b64 s[{MK[0]+2*r}:{MK[0]+2*r+1}], s[6:7], 0
        s_cselect_b64 s[{MK[1]+2*r}:{MK[1]+2*r+1}], -1, s[6:7]
        s_cselect_b64 s[{MK[16]+2*r}:{MK[16]+2*r+1}], s[4:5], -1
        s_cselect_b64 s[{MK[17]+2*r}:{MK[17]+2*r+1}], 0, s[4:5]""")
    k(f"""s_mul_i32 s35, s25, 20480
    s_add_u32 s35, s35, s26
    s_add_u32 s35, s35, {OB}
    v_lshlrev_b32 v15, 8, v4
    v_lshl_add_u32 v15, v3, 4, v15
    v_lshlrev_b32 v16, 4, v3
    v_mov_b32 v10, 0x7ffffff0
    v_cmp_gt_u32 vcc, 16, v2
    v_cndmask_b32 v16, v10, v16, vcc
    s_mov_b32 s36, 0x3ea52b5c
    v_mov_b32 v17, 0xf149f2ca
    v_cmp_gt_u32 s[4:5], 2, v4
    v_cmp_gt_u32 s[6:7], 3, v4
    v_cmp_ne_u32 s[8:9], 0, v4
    s_and_b64 s[8:9], s[8:9], s[6:7]""")
    k.wait_vm(3)
    for e, mk in ((0, 6), (1, 6), (2, 4), (3, 4), (4, 8), (5, 8), (6, 6), (7, 6)):
        k(f"v_cndmask_b32 v{QF+e}, 0, v{QF+e}, s[{mk}:{mk+1}]")
    k("s_barrier")
    def kread(t, i): return f"ds_read_b128 v[{KF+4*(i%4)}:{KF+4*(i%4)+3}], v8 offset:{i*1280 + t*512}"
    def qk(t):
        out = [kread(t, 0), kread(t, 1), kread(t, 2)]
        for i in range(18):
            if i + 3 < 18: out.append(kread(t, i + 3))
            out.append(f"v_mfma_f32_16x16x32_bf16 v[{S[t]+4*i}:{S[t]+4*i+3}], v[{KF+4*(i%4)}:{KF+4*(i%4)+3}], v[{QF+4*t}:{QF+4*t+3}], 0")
        return out
    def vread(t, c):
        d = VF + (c % 3) * 8
        return [f"ds_read_b128 v[{d}:{d+3}], v9 offset:{t*15360 + c*1280}", f"ds_read_b128 v[{d+4}:{d+7}], v11 offset:{t*15360 + c*1280+1024}"]
    def pv(t):
        out = vread(t, 0) + vread(t, 1)
        for c in range(9):
            d = VF + (c % 3) * 8
            if c + 2 < 9: out += vread(t, c + 2)
            for e in range(4): out.append(f"v_cndmask_b32 v{d+4+e}, v18, v{d+4+e}, s[48:49]")
            for dd in range(2):
                acc = f"v[{O[t]+4*dd}:{O[t]+4*dd+3}]"
                out.append(f"v_mfma_f32_16x16x32_bf16 {acc}, v[{d+4*dd}:{d+4*dd+3}], v[{S[t]+4*c}:{S[t]+4*c+3}], {acc if c else 0}")
        return out
    def fixup(t):
        lab = f"L_p2_fix{t}"
        k._nop(10)
        k(f"""s_cmp_ge_u32 s22, 2
        s_cbranch_scc1 {lab}
        s_and_b32 s37, s25, 0xfffe
        s_sub_u32 s37, 16, s37""")
        for tau in range(16):
            k.raw(f"    s_cmp_le_i32 s37, {tau}\n    s_cbranch_scc1 {lab}")
            for r in range(4): k.raw(f"    v_mov_b32 v{S[t]+4*tau+r}, v17")
        k.label(lab)
        k._nop(2)
    def softmax(t):
        s0 = S[t]; TT = T + 4 * t
        out = [lambda: fixup(t)]
        for ti in (0, 1, 16, 17):
            for r in range(4):
                out.append(f"v_cndmask_b32 v{s0+4*ti+r}, v17, v{s0+4*ti+r}, s[{MK[ti]+2*r}:{MK[ti]+2*r+1}]")
        regs = list(range(s0, s0 + 72))
        for j in range(4):
            out.append(f"v_max_f32 v{TT+j}, v{regs[j*18]}, v{regs[j*18+1]}")
        for i in range(8):
            for j in range(4):
                out.append(f"v_max3_f32 v{TT+j}, v{TT+j}, v{regs[j*18+2+2*i]}, v{regs[j*18+3+2*i]}")
        out += [f"v_max3_f32 v{TT}, v{TT}, v{TT+1}, v{TT+2}", f"v_max_f32 v{TT}, v{TT}, v{TT+3}",
                f"v_mov_b32 v{TT+1}, v{TT}", f"v_permlane16_swap_b32 v{TT}, v{TT+1}", f"v_max_f32 v{TT}, v{TT}, v{TT+1}",
                f"v_mov_b32 v{TT+1}, v{TT}", f"v_permlane32_swap_b32 v{TT}, v{TT+1}", f"v_max_f32 v{TT}, v{TT}, v{TT+1}",
                f"v_mul_f32 v{TT}, s36, v{TT}", f"v_sub_f32 v{TT}, 0, v{TT}"]
        Gs = 8
        for g0 in range(0, 72, Gs):
            for i in range(Gs): out.append(f"v_fma_f32 v{s0+g0+i}, v{s0+g0+i}, s36, v{TT}")
            for i in range(Gs): out.append(f"v_exp_f32 v{s0+g0+i}, v{s0+g0+i}")
            if g0 >= Gs:
                for i in range(0, Gs, 2): out.append(f"v_cvt_pk_bf16_f32 v{s0+(g0-Gs+i)//2}, v{s0+g0-Gs+i}, v{s0+g0-Gs+i+1}")
        for i in range(64, 72, 2): out.append(f"v_cvt_pk_bf16_f32 v{s0+i//2}, v{s0+i}, v{s0+i+1}")
        return out
    FO = 160
    def final(t):
        F = 140 + 10 * t
        out = [f"v_mov_b32 v{F}, v{O[t]+4}", f"v_mov_b32 v{F+1}, v{O[t]+4}",
               f"v_permlane16_swap_b32 v{F}, v{F+1}", f"v_rcp_f32 v{F+1}, v{F+1}"]
        for i in range(8): out.append(f"v_mul_f32 v{F+2+i}, v{O[t]+i}, v{F+1}")
        o = F + 2
        out += [f"v_cvt_pk_bf16_f32 v{FO+2*t}, v{o}, v{o+1}", f"v_cvt_pk_bf16_f32 v{FO+2*t+1}, v{o+2}, v{o+3}",
                f"v_cvt_pk_bf16_f32 v{FO+4+2*t}, v{o+4}, v{o+5}", f"v_cvt_pk_bf16_f32 v{FO+4+2*t+1}, v{o+6}, v{o+7}"]
        return out
    def mix(valu, mf):
        n = len(valu); m = len(mf); j = 0
        for i, v in enumerate(valu):
            if callable(v): v()
            else: k(v)
            while j < m and (j + 1) * n <= (i + 1) * m: k(mf[j]); j += 1
        while j < m: k(mf[j]); j += 1
    for m in qk(0): k(m)
    k.wait_vm(0)
    k("s_barrier")
    k(f"""s_cmp_ge_u32 s24, 4
    s_cbranch_scc1 L_p2_rpB
    s_cmp_ge_u32 s2, 240
    s_cbranch_scc1 L_p2_norp1""")
    srd(k, 28, 92, NB['wg']); srd(k, 4, 94, NB['wu'])
    repackgu_issue(k, 2, 24, RP, 28, 4, 100, 40, 2, 12, None)
    repackgu_gsdma(k, 100, 40, 2, 12, RP + 6*4096, fl=LDX)
    k("s_branch L_p2_norp1")
    k.label("L_p2_rpB")
    k(f"""s_sub_u32 s16, s24, 4
    s_lshl_b32 s16, s16, 8
    s_add_u32 s16, s16, s2
    s_add_u32 s16, s16, 200
    s_lshl_b32 s17, s24, 12
    s_add_u32 s17, s17, {RP}
    s_cmp_ge_u32 s16, 680
    s_cbranch_scc1 L_p2_norp1""")
    srd(k, 28, 96, NB['wd'])
    rid = repack16_issue(k, 16, 17, 28, 28, 100, 40, 2)
    k.label("L_p2_norp1")
    reset(k); k._nop(4)
    prefetch_lin(k, 12, WOP, 8*20*5120, 512, 0, 104, 38, dst='v200', full=True)
    mix(softmax(0), qk(1))
    mix(softmax(1), pv(0))
    k.wait_vm(0)
    k("s_barrier")
    mix(final(0), pv(1))
    for v in final(1): k(v)
    k(f"buffer_store_dwordx4 v[{FO}:{FO+3}], v15, s[12:15], s35 offen sc1")
    k(f"buffer_store_dwordx4 v[{FO+4}:{FO+7}], v16, s[12:15], s35 offen offset:1024 sc1")
    k(f"""s_lshl_b32 s22, s22, 7
    s_lshl_b32 s21, s21, 2
    s_add_u32 s22, s22, s21
    s_add_u32 s22, s22, {F2}
    s_cmp_ge_u32 s24, 4
    s_cbranch_scc1 L_p2_fin
    s_cmp_ge_u32 s2, 240
    s_cbranch_scc1 L_p2_fin
    v_lshrrev_b32 v20, 5, v2
    s_mov_b32 s30, 0xffff0000""")
    repackgu_gs_lds(k, RP + 6*4096, 176, 20)
    repackgu_finish(k, 24, RP, 12, 176, 24, 40, 2, 20, 30, gsp=GSP)
    k.raw("    s_waitcnt vmcnt(6)")
    k("s_branch L_sigb_p2")
    k.label("L_p2_fin")
    reset(k); k._nop(4)
    signal(k, 22, "p2")
    k.rid = rid

def p35(k, wo):
    nm = 'p3' if wo else 'p5'
    NS32 = 20 if wo else 48
    NC = NS32 // 4
    NS = 5 if wo else 7
    R = 3; XD = 5
    XB = OB if wo else ACT
    WP = WOP if wo else WDP
    SS = 20480
    ACC = 32; WF = 52; EX = 132; XA = 164; TMP = 52
    EXX = EX
    k(f"""s_and_b32 s20, s2, 7
    s_lshr_b32 s21, s2, 3
{MAP35}
    v_lshlrev_b32 v5, 4, v2
    v_add_u32 v6, 4096, v5
    s_cmp_lt_u32 s3, 4
    s_cbranch_scc1 L_{nm}_comp""")
    st0 = snap(k)
    k(f"""s_sub_u32 s24, s3, 4
    s_mul_i32 s25, s23, {NS32*5120}
    s_mul_i32 s26, s24, 5120
    s_add_u32 s25, s25, s26
    s_add_u32 s25, s25, {WP}""")
    dma = {}
    def fw(c):
        slot = c % NS
        k(f"s_add_u32 s29, s25, {c*SS}")
        k(f"s_add_u32 m0, s26, {slot*SS}")
        for t in range(4):
            k(f"buffer_load_dwordx4 v5, s[12:15], s29 offen offset:{1024*t} {LDX} lds")
        k(f"s_add_u32 m0, s26, {slot*SS + 4096}")
        dma[c] = k(f"buffer_load_dwordx4 v6, s[12:15], s29 offen {LDX} lds")
    if wo:
        k(f"""s_cmp_ge_u32 s16, 680
        s_cbranch_scc1 L_p3_norp""")
        stn = snap(k)
        repack16_finish(k, 16, 17, 12, 24, 40, 2, None, wd=True)
        k.label("L_p3_norp")
        restore(k, stn); k._nop(4)
    for c in range(NS): fw(c)
    if wo: k.raw("    s_waitcnt vmcnt(25)")
    k("s_barrier")
    if wo:
        k(f"""s_lshl_b32 s36, s2, 2
        s_add_u32 s36, s36, {FRP}""")
        flag_store(k, 36, 4, "rp")
    for cb in range(NC):
        k.wait_vm_id(dma[cb])
        k("s_barrier")
        if cb >= 2 and cb - 2 + NS < NC: fw(cb - 2 + NS)
    if wo and 'pfgu' in G.EXP:
        prefetch_lin(k, 12, WGUP, 48*40960, 256, 0, 30, 40, tid_off=256, dst='v34')
    k(f"s_branch L_sigb_p3" if wo else "s_endpgm")
    k.label(f"L_{nm}_comp")
    restore(k, st0)
    goff = MOD + (2 if wo else 5) * 2560
    srd(k, 16, 86 if wo else 98, NB['x'])
    k(f"""s_mov_b32 s24, s3
    v_and_b32 v3, 15, v2
    v_lshrrev_b32 v4, 4, v2
    s_lshl_b32 s31, s22, 2
    s_add_u32 s31, s31, s24           ; T16
    s_mul_i32 s27, s31, {NS32*1024}
    s_add_u32 s27, s27, {XB}
    s_mul_i32 s32, s23, 320
    s_add_u32 s32, s32, {goff}
    v_lshlrev_b32 v13, 4, v4
    s_lshr_b32 s33, s31, 1
    s_mul_i32 s33, s33, 40960
    s_mul_i32 s34, s23, 5120
    s_add_u32 s33, s33, s34
    s_add_u32 s33, s33, {X1}
    s_and_b32 s34, s31, 1
    s_lshl_b32 s34, s34, 8
    v_lshl_add_u32 v14, v3, 4, s34
    v_lshrrev_b32 v15, 1, v4
    v_lshl_add_u32 v14, v15, 9, v14
    v_and_b32 v15, 1, v4
    v_lshl_add_u32 v14, v15, 3, v14
    s_mul_i32 s34, s31, {16*1280}
    s_mul_i32 s35, s23, 160
    s_add_u32 s34, s34, s35
    v_mul_u32_u24 v15, 1280, v3
    v_lshl_add_u32 v15, v4, 3, v15
    v_add_u32 v21, 4096, v14
    v_add_u32 v7, {3*SS}, v5
    v_add_u32 v8, {6*SS}, v5""")
    k(f"""s_lshr_b32 s36, s22, 1
    s_lshl_b32 s36, s36, 7
    s_add_u32 s36, s36, {F2 if wo else F4}
    v_add_u32 v19, s36, v5""")
    if wo: k.waitall()
    for j in range(5):
        k(f"buffer_load_dwordx4 v[{EX+4*j}:{EX+4*j+3}], v13, s[12:15], s32 offen offset:{64*j} {LDX}")
        if wo: k(f"buffer_load_dwordx2 v[{EX+20+2*j}:{EX+21+2*j}], v15, s[16:19], s34 offen offset:{32*j}")
        else:
            k(f"v_mov_b32 v{EX+20+2*j}, v{236+2*j}"); k(f"v_mov_b32 v{EX+21+2*j}, v{237+2*j}")
    wait(k, nm, 0, 19, 4)
    mstamp(k, 4 if wo else 8)
    def fx(c):
        k(f"s_add_u32 s30, s27, {c*4096}")
        for i in range(4):
            r = XA + (c % XD) * 16 + i * 4
            k(f"buffer_load_dwordx4 v[{r}:{r+3}], v5, s[12:15], s30 offen offset:{1024*i} {LDX}")
    for c in range(min(XD - 1, NC)): fx(c)
    nxt = min(XD - 1, NC)
    epi = []
    def reads(s):
        c = s // 4; ks = s % 4; slot = c % NS
        base = (5, 7, 8)[slot // 3]; so = (slot % 3) * SS
        return [f"ds_read_b128 v[{WF+(s%4)*20+j*4}:{WF+(s%4)*20+j*4+3}], v{base} offset:{so + ks*5120 + j*1024}" for j in range(5)]
    k("s_barrier")
    for q in range(R):
        for t in reads(q): k(t)
    pend = []
    for s in range(NS32):
        if (s + R) % 4 == 0 and (s + R) // 4 < NC:
            k("s_barrier")
        c = s // 4
        if s % 4 == 0:
            if nxt < NC and nxt <= c + XD - 1: pend = pend + [lambda c_=nxt: fx(c_)]; nxt += 1
            elif epi: pend = pend + epi; epi = []
        fill = reads(s + R) if s + R < NS32 else []
        n = min(len(pend), 4)
        fill = fill + pend[:n]; pend = pend[n:]
        mf = []
        for j in range(5):
            w = f"v[{WF+(s%4)*20+j*4}:{WF+(s%4)*20+j*4+3}]"
            xr = XA + (c % XD) * 16 + (s % 4) * 4
            d0 = ACC + j * 4
            mf.append(f"v_mfma_f32_16x16x32_bf16 v[{d0}:{d0+3}], {w}, v[{xr}:{xr+3}], {'v[%d:%d]' % (d0, d0+3) if s else 0}")
        interleave(k, mf, fill)
    for t in pend + epi:
        if callable(t): t()
        else: k(t)
    k("s_mov_b32 s30, 0xffff0000")
    PK = TMP + 16
    if wo:
        k("v_mov_b32 v26, 0"); k("v_mov_b32 v27, 0")
        k(f"""v_and_b32 v22, 1, v4
        v_lshlrev_b32 v23, 3, v22
        v_sub_u32 v23, v14, v23
        v_lshl_add_u32 v22, v22, 10, v23
        v_add_u32 v23, 4096, v23""")
    else:
        k(f"""v_and_b32 v22, 1, v4
        v_lshlrev_b32 v23, 3, v22
        v_sub_u32 v23, v15, v23
        v_lshl_add_u32 v22, v22, 5, v23""")
    for j in range(5):
        a0 = ACC + 4 * j; gq = EX + 4 * j; xr = EX + 20 + 2 * j; T = TMP + 8 * (j % 2); P_ = PK + 2 * j
        k(f"""v_cvt_pk_bf16_f32 v{T}, v{a0}, v{a0+1}
        v_cvt_pk_bf16_f32 v{T+1}, v{a0+2}, v{a0+3}
        v_lshlrev_b32 v{a0}, 16, v{T}
        v_and_b32 v{a0+1}, s30, v{T}
        v_lshlrev_b32 v{a0+2}, 16, v{T+1}
        v_and_b32 v{a0+3}, s30, v{T+1}
        v_mul_f32 v{a0}, v{a0}, v{gq}
        v_mul_f32 v{a0+1}, v{a0+1}, v{gq+1}
        v_mul_f32 v{a0+2}, v{a0+2}, v{gq+2}
        v_mul_f32 v{a0+3}, v{a0+3}, v{gq+3}
        v_cvt_pk_bf16_f32 v{T}, v{a0}, v{a0+1}
        v_cvt_pk_bf16_f32 v{T+1}, v{a0+2}, v{a0+3}
        v_lshlrev_b32 v{a0}, 16, v{T}
        v_and_b32 v{a0+1}, s30, v{T}
        v_lshlrev_b32 v{a0+2}, 16, v{T+1}
        v_and_b32 v{a0+3}, s30, v{T+1}
        v_lshlrev_b32 v{T+2}, 16, v{xr}
        v_and_b32 v{T+3}, s30, v{xr}
        v_lshlrev_b32 v{T+4}, 16, v{xr+1}
        v_and_b32 v{T+5}, s30, v{xr+1}
        v_add_f32 v{a0}, v{a0}, v{T+2}
        v_add_f32 v{a0+1}, v{a0+1}, v{T+3}
        v_add_f32 v{a0+2}, v{a0+2}, v{T+4}
        v_add_f32 v{a0+3}, v{a0+3}, v{T+5}
        v_cvt_pk_bf16_f32 v{P_}, v{a0}, v{a0+1}
        v_cvt_pk_bf16_f32 v{P_+1}, v{a0+2}, v{a0+3}""")
        if wo:
            k(f"""v_lshlrev_b32 v{a0}, 16, v{P_}
            v_and_b32 v{a0+1}, s30, v{P_}
            v_lshlrev_b32 v{a0+2}, 16, v{P_+1}
            v_and_b32 v{a0+3}, s30, v{P_+1}""")
            for e in range(4):
                k(f"v_add_f32 v26, v26, v{a0+e}")
                k(f"v_fmac_f32 v27, v{a0+e}, v{a0+e}")
            k(f"v_mov_b32 v{236+2*j}, v{P_}"); k(f"v_mov_b32 v{237+2*j}, v{P_+1}")
        if j == 4:
            k(f"v_mov_b32 v{P_+2}, v{P_}"); k(f"v_mov_b32 v{P_+3}, v{P_+1}")
        if j % 2 == 1 or j == 4:
            q = PK + 2 * (j - 1 if j % 2 else j)
            k(f"v_permlane16_swap_b32 v{q}, v{q+2}")
            k(f"v_permlane16_swap_b32 v{q+1}, v{q+3}")
            jj = j - 1 if j % 2 else j
            if wo:
                if j < 4: k(f"buffer_store_dwordx4 v[{q}:{q+3}], v22, s[12:15], s33 offen offset:{1024*jj} sc1")
                else: k(f"buffer_store_dwordx4 v[{q}:{q+3}], v23, s[12:15], s33 offen sc1")
            else:
                k(f"buffer_store_dwordx4 v[{q}:{q+3}], v{22 if j < 4 else 23}, s[16:19], s34 offen offset:{32*jj}")
    if wo:
        for r in (26, 27):
            k(f"""v_mov_b32 v28, v{r}
            v_permlane16_swap_b32 v{r}, v28
            v_add_f32 v{r}, v{r}, v28
            v_mov_b32 v28, v{r}
            v_permlane32_swap_b32 v{r}, v28
            v_add_f32 v{r}, v{r}, v28""")
        k(f"""s_lshl_b32 s38, s31, 10
        s_lshl_b32 s39, s23, 3
        s_add_u32 s38, s38, s39
        s_add_u32 s38, s38, {ST}
        v_lshlrev_b32 v28, 6, v3
        v_mov_b32 v29, 0x7ffffff0
        v_cmp_gt_u32 vcc, 16, v2
        v_cndmask_b32 v28, v29, v28, vcc
        buffer_store_dwordx2 v[26:27], v28, s[12:15], s38 offen sc1""")
    k.label(f"L_{nm}_done")
    reset(k); k._nop(12)
    if wo:
        k(f"v_add_u32 v19, {FRP}, v5")
        wait(k, "crp", 1, 19, 64, barrier=False, slp=4)

        k(f"""s_and_b32 s36, s22, 1
        s_lshl_b32 s36, s36, 3
        s_add_u32 s36, s36, s23
        s_lshl_b32 s36, s36, 2
        s_lshr_b32 s22, s22, 1
        s_lshl_b32 s22, s22, 7
        s_add_u32 s22, s22, s36
        s_add_u32 s22, s22, {F3}""")
        signal(k, 22, nm)

def p4(k):
    NS = 4; SS = 40960
    ACC = 32; XF = 80; WF = 92; GWR = 128; SWR = 176; TMP = 224; STT = 24; R = 2
    k(f"""s_and_b32 s20, s2, 7
    s_lshr_b32 s21, s2, 3
{MAP14}
    s_mov_b32 s24, s3
    v_lshrrev_b32 v20, 5, v2
    v_lshlrev_b32 v5, 4, v2
    s_and_b32 s25, s24, 3
    s_lshr_b32 s26, s24, 2
    s_lshr_b32 s27, s24, 1
    s_lshl_b32 s28, s22, 2
    s_add_u32 s27, s27, s28
    s_mul_i32 s27, s27, 40960
    s_and_b32 s28, s24, 1
    s_lshl_b32 s28, s28, 11
    s_add_u32 s27, s27, s28
    s_add_u32 s27, s27, {X1}
    s_lshl_b32 s28, s24, 11
    s_mul_i32 s29, s24, 3
    s_mul_i32 s30, s23, {6*40960}
    s_add_u32 s30, s30, {WGUP}""")
    for i in range(3):
        k(f"""s_add_u32 s31, s29, {i}
        s_lshr_b32 s32, s31, 2
        s_mul_i32 s32, s32, 40960
        s_and_b32 s31, s31, 3
        s_lshl_b32 s31, s31, 10
        s_add_u32 s32, s32, s31
        s_add_u32 s{40+i}, s32, s30""")
    k(f"""s_lshl_b32 s29, s29, 10
    s_add_u32 s29, s29, 16384""")
    dma = {}
    def fx(c):
        slot = c % NS
        k(f"s_add_u32 m0, s28, {slot*SS}")
        k(f"s_add_u32 s33, s27, {c*4096}")
        k(f"buffer_load_dwordx4 v5, s[12:15], s33 offen {LDX} lds")
        dma[c] = k(f"buffer_load_dwordx4 v5, s[12:15], s33 offen offset:1024 {LDX} lds")
    def fw(c, i):
        slot = c % NS
        k(f"s_add_u32 m0, s29, {slot*SS + i*1024}")
        k(f"s_add_u32 s33, s{40+i}, {c*4096}")
        dma[c] = k(f"buffer_load_dwordx4 v5, s[12:15], s33 offen {LDX} lds")
    def issue(c):
        out = [lambda: fx(c)] + [(lambda i=i: fw(c, i)) for i in range(3)]
        for f in out: f.c = c
        return out
    for c in range(NS):
        for i in range(3): fw(c, i)
    k(f"""v_and_b32 v7, 31, v2
    v_lshlrev_b32 v7, 6, v7
    v_lshl_add_u32 v7, v20, 5, v7
    s_lshl_b32 s34, s22, 2
    s_add_u32 s34, s34, s25
    s_lshl_b32 s35, s25, 12
    v_add_u32 v8, s35, v5
    s_mul_i32 s35, s26, 12288
    s_add_u32 s35, s35, 16384
    v_add_u32 v12, s35, v5
    s_lshl_b32 s36, s22, 7
    s_add_u32 s36, s36, {F3}
    v_add_u32 v18, s36, v5
    ; gsum partial gather: thread t<384: vec = t/192, col = t%192 -> byte = vec*12288 + nb*768 + col*4
    v_cmp_gt_u32 vcc, 192, v0
    v_mov_b32 v21, {12288 - 768}
    v_cndmask_b32 v21, v21, 0, vcc
    v_lshl_add_u32 v21, v0, 2, v21
    v_mov_b32 v22, 0x7ffffff0
    v_cmp_gt_u32 vcc, 0x180, v0
    v_cndmask_b32 v21, v22, v21, vcc
    s_mul_i32 s36, s23, 768
    s_add_u32 s36, s36, {GSP}""")
    for e in range(10):
        k(f"buffer_load_dword v{GWR+e}, v21, s[12:15], s36 offen {LDX}")
        if e < 9: k("s_add_u32 s36, s36, 24576")
    for g in range(1, 4):
        k(f"v_add_u32 v{8+g}, {g*SS}, v8")
        k(f"v_add_u32 v{12+g}, {g*SS}, v12")
    for i in range(48): k(f"v_mov_b32 v{ACC+i}, 0")
    wait(k, "p4", 0, 18, 4)
    mstamp(k, 6)
    fx(0); fx(1)
    k(f"""s_lshl_b32 s35, s34, 11
    s_add_u32 s35, s35, {ST}
    buffer_load_dwordx4 v[{TMP}:{TMP+3}], v7, s[12:15], s35 offen {LDX}
    buffer_load_dwordx4 v[{TMP+4}:{TMP+7}], v7, s[12:15], s35 offen offset:16 {LDX}""")
    fx(2); fx(3)
    def reads(s):
        c = s // 4; ks = s % 4; slot = c % NS
        out = [f"ds_read_b128 v[{XF+(s%3)*4}:{XF+(s%3)*4+3}], v{8+slot} offset:{ks*1024}"]
        for j in range(3):
            d = WF + (s % 3) * 12 + j * 4
            out.append(f"ds_read_b128 v[{d}:{d+3}], v{12+slot} offset:{j*4096 + ks*1024}")
        return out
    def stats():
        b = TMP
        k(f"""v_add_f32 v{b}, v{b}, v{b+2}
        v_add_f32 v{b+1}, v{b+1}, v{b+3}
        v_add_f32 v{b+4}, v{b+4}, v{b+6}
        v_add_f32 v{b+5}, v{b+5}, v{b+7}
        v_add_f32 v{b}, v{b}, v{b+4}
        v_add_f32 v{b+1}, v{b+1}, v{b+5}
        v_mov_b32 v{b+2}, v{b}
        v_mov_b32 v{b+3}, v{b+1}
        v_permlane32_swap_b32 v{b}, v{b+2}
        v_permlane32_swap_b32 v{b+1}, v{b+3}
        v_add_f32 v{b}, v{b}, v{b+2}
        v_add_f32 v{b+1}, v{b+1}, v{b+3}
        v_mul_f32 v{b}, 0x3acccccd, v{b}
        v_mul_f32 v{b+1}, 0x3acccccd, v{b+1}
        v_fma_f32 v{b+1}, -v{b}, v{b}, v{b+1}
        v_max_f32 v{b+1}, 0, v{b+1}""")
        bf16r(k, b, b); bf16r(k, b + 1, b + 1)
        k(f"v_add_f32 v{b+1}, 0x3727c5ac, v{b+1}")
        bf16r(k, b + 1, b + 1)
        k(f"v_sqrt_f32 v{b+1}, v{b+1}")
        bf16r(k, b + 1, b + 1)
        k(f"v_rcp_f32 v{STT}, v{b+1}")
        k(f"v_sub_f32 v{STT+1}, 0, v{b}")
    k.wait_vm_id(dma[0])
    k("s_barrier")
    for q in range(R):
        for t in reads(q): k(t)
    pend = []
    gs_id = None
    for s in range(40):
        if (s + R) % 4 == 0 and (s + R) // 4 <= 10:
            cb = (s + R) // 4
            while cb < 10 and any(getattr(f, 'c', None) == cb for f in pend):
                f = pend.pop(0); f()
            if cb < 10: k.wait_vm_id(dma[cb])
            if cb == 10: k.wait_lg(0)
            k("s_barrier")
            if cb >= 2 and cb - 2 + NS <= 9: pend = pend + issue(cb - 2 + NS)
            if cb == 9: pend = pend + [stats]
            if cb == 8:
                def fg():
                    for e in range(1, 10): k(f"v_add_f32 v{GWR}, v{GWR}, v{GWR+e}")
                    k(f"""v_cmp_gt_u32 vcc, 192, v0
                    v_mov_b32 v21, {2*SS + 1024 - 768}
                    v_mov_b32 v22, {2*SS}
                    v_cndmask_b32 v21, v21, v22, vcc
                    v_lshl_add_u32 v21, v0, 2, v21
                    ds_write_b32 v21, v{GWR}""")
                pend = pend + [fg] + ([] if 'nowdp' in G.EXP else [lambda: prefetch_lin(k, 12, WDP, 8*48*5120, 512, 0, 26, 36, dst='v30', full=True)])
        fill = reads(s + R) if s + R < 40 else []
        if s >= 38:
            if s == 38:
                k(f"""s_mul_i32 s33, s26, 384
                s_add_u32 s33, s33, {2*SS}
                v_lshlrev_b32 v16, 4, v20
                v_add_u32 v16, s33, v16""")
            for a in (2 * (s - 38), 2 * (s - 38) + 1):
                for j in range(3):
                    fill.append(f"ds_read_b128 v[{GWR+16*j+4*a}:{GWR+16*j+4*a+3}], v16 offset:{j*128 + a*32}")
                    fill.append(f"ds_read_b128 v[{SWR+16*j+4*a}:{SWR+16*j+4*a+3}], v16 offset:{1024 + j*128 + a*32}")
        n = min(len(pend), 2)
        fill = fill + pend[:n]; pend = pend[n:]
        mf = []
        for j in range(3):
            w = f"v[{WF+(s%3)*12+j*4}:{WF+(s%3)*12+j*4+3}]"; x = f"v[{XF+(s%3)*4}:{XF+(s%3)*4+3}]"
            d = f"v[{ACC+16*j}:{ACC+16*j+15}]"
            mf.append(f"v_mfma_f32_32x32x16_bf16 {d}, {w}, {x}, {d}")
        interleave(k, mf, fill)
    k(f"""s_mul_i32 s31, s23, 6
    s_mul_i32 s32, s26, 3
    s_add_u32 s31, s31, s32
    s_mul_i32 s32, s34, {2*48*1024}
    s_add_u32 s29, s32, {ACT}
    v_bfe_u32 v3, v2, 4, 1
    v_mul_u32_u24 v4, {48*1024}, v3
    v_and_b32 v3, 15, v2
    v_lshl_add_u32 v4, v3, 4, v4
    v_lshl_add_u32 v4, v20, 8, v4
    s_mov_b32 s35, 0xbfb8aa3b""")
    for j in range(3):
        k(f"""s_add_u32 s32, s31, {j}
        s_lshl_b32 s33, s32, 9
        s_add_u32 s33, s33, s29""")
        r = ACC + 16 * j; gw = GWR + 16 * j; sw = SWR + 16 * j
        T = XF + 8 * (j % 2); O = XF + 16 + 4 * j
        for e in range(16): k(f"v_fmac_f32 v{r+e}, v{gw+e}, v{STT+1}")
        for e in range(16): k(f"v_fmac_f32 v{sw+e}, v{r+e}, v{STT}")
        for e in range(8): k(f"v_mul_f32 v{T+e}, s35, v{sw+e}")
        for e in range(8): k(f"v_exp_f32 v{T+e}, v{T+e}")
        for e in range(8): k(f"v_add_f32 v{T+e}, 1.0, v{T+e}")
        for e in range(8): k(f"v_rcp_f32 v{T+e}, v{T+e}")
        for e in range(8): k(f"v_mul_f32 v{sw+e}, v{sw+e}, v{sw+8+e}")
        for e in range(8): k(f"v_mul_f32 v{sw+e}, v{sw+e}, v{T+e}")
        for e in range(4): k(f"v_cvt_pk_bf16_f32 v{O+e}, v{sw+2*e}, v{sw+2*e+1}")
        k(f"buffer_store_dwordx4 v[{O}:{O+3}], v4, s[12:15], s33 offen sc1")
    k(f"""s_lshl_b32 s22, s22, 7
    s_lshl_b32 s23, s23, 2
    s_add_u32 s22, s22, s23
    s_add_u32 s22, s22, {F4}""")
    signal(k, 22, "p4")

def gen_mega():
    k = Kern("adaLN_cond__sliding_block__swiglu_ffn__prompt_kernel")
    k(f"""s_cmp_ge_u32 s2, 256
    s_cbranch_scc1 L_mega_end
    s_load_dwordx2 s[84:85], s[0:1], {ARG['ws']}
    s_load_dwordx2 s[86:87], s[0:1], {ARG['x']}
    s_load_dwordx4 s[88:91], s[0:1], {ARG['wqkv']}
    s_load_dwordx4 s[92:95], s[0:1], {ARG['wg']}
    s_load_dwordx2 s[96:97], s[0:1], {ARG['wd']}
    s_load_dwordx2 s[98:99], s[0:1], {ARG['out']}
    s_load_dwordx2 s[80:81], s[0:1], {ARG['dbg']}
    s_memrealtime s[4:5]
    v_lshrrev_b32 v1, 6, v0
    v_and_b32 v2, 63, v0
    v_readfirstlane_b32 s3, v1""")
    k.waitall()
    srd(k, 12, 84, NB['ws'])
    k("""s_add_u32 s6, s2, s3
    s_cmp_lg_u32 s6, 0
    s_cbranch_scc1 L_notag
    s_or_b32 s4, s4, 1
    v_mov_b32 v250, 0
    v_mov_b32 v251, s4
    s_mov_b64 exec, 1
    global_store_dword v250, v251, s[80:81] sc1
    s_mov_b64 exec, -1""")
    k.label("L_notag")
    reset(k); k._nop(2)
    mstamp(k, 0)
    p1(k); mstamp(k, 1)
    p2(k); mstamp(k, 3)
    p35(k, True); mstamp(k, 5)
    p4(k); mstamp(k, 7)
    p35(k, False)
    if MPROF or DPROF: k.waitall()
    mstamp(k, 9)
    k.label("L_mega_end")
    k("s_endpgm")
    return k

def all_kernels():
    return [(gen_mega(), 256, 512, 163840)]

if __name__ == "__main__":
    if len(sys.argv) > 1 and sys.argv[1] == "prof": MPROF = True
    if len(sys.argv) > 1 and sys.argv[1] == "dprof": DPROF = True
    for e in sys.argv[2:]:
        if e.startswith("slp"): SLP = int(e[3:])
        G.EXP.add(e)
    open("mega" + "_".join([""] + sys.argv[2:]) + ".s", "w").write(build_file(all_kernels()))
```

```python
import sys
sys.path.insert(0, "work")
import gen as G
from gen import *

CNT = 0x1BD8000
C1, C2, C3, C4, CWO, CRP = 0, 16, 32, 48, 64, 80
RP = 131072
MPROF = False
LDX = "sc1"

def reset(k):
    k.vmq = []; k.lgq = []; k.pend_vm = {}; k.pend_lg = {}

DPROF = False
def mstamp(k, slot, wave=0):
    if DPROF and slot < 15:
        lab = f"L_ds{slot}_{len(k.lines)}"
        k.raw(f"""    s_cmp_lg_u32 s3, {wave}
    s_cbranch_scc1 {lab}
    s_cmp_lg_u32 s2, 37
    s_cbranch_scc1 {lab}
    s_memrealtime s[100:101]
    s_waitcnt lgkmcnt(0)
    v_mov_b32 v255, s100
    s_load_dwordx2 s[100:101], s[0:1], {ARG['dbg']}
    s_waitcnt lgkmcnt(0)
    v_mov_b32 v254, {4 + 4*slot}
    s_mov_b64 exec, 1
    global_store_dword v254, v255, s[100:101]
    s_mov_b64 exec, -1
{lab}:""")
        k.maxv = max(k.maxv, 255); k.maxs = max(k.maxs, 101)
        return
    if not MPROF: return
    lab = f"L_ms{slot}_{len(k.lines)}"
    k.raw(f"""    s_cmp_lg_u32 s3, {wave}
    s_cbranch_scc1 {lab}
    s_memrealtime s[100:101]
    s_waitcnt lgkmcnt(0)
    s_lshl_b32 s101, s2, 2
    s_add_u32 s101, s101, {G.PROFOFF + slot * 1024}
    v_mov_b32 v255, s100
    v_mov_b32 v254, s101
    s_memtime s[100:101]
    s_waitcnt lgkmcnt(0)
    v_mov_b32 v253, s100
    s_mov_b64 exec, 1
    global_store_dword v254, v255, s[84:85]
    v_add_u32 v254, 16384, v254
    global_store_dword v254, v253, s[84:85]
    s_mov_b64 exec, -1
{lab}:""")
    k.maxv = max(k.maxv, 255); k.maxs = max(k.maxs, 101)
    k.vm_extra = True

FLG = 0x1C40000
NREP = 16; RSTR = 16384
FX, FM, F1, FW, F2, F3, F4, FRP = 0, 2048, 4096, 6144, 8192, 10240, 12288, 14336
MODP = 0x4000
MODP = 0x1BE0000
GSP = 0x1C00000
TAG = 83

def flag_store(k, soff, wave, name):
    k(f"""s_cmp_lg_u32 s3, {wave}
    s_cbranch_scc1 L_sig_{name}
    s_add_u32 s{soff}, s{soff}, {FLG}
    v_lshlrev_b32 v250, 14, v2
    v_add_u32 v250, s{soff}, v250
    v_mov_b32 v251, s{TAG}
    s_mov_b64 exec, 0xffff""")
    k.raw("    global_store_dword v250, v251, s[84:85] sc1")
    k("s_mov_b64 exec, -1")
    k.label(f"L_sig_{name}")
    k._nop(2)

def signal(k, soff, name, wave=0):
    k.waitall()
    k.label(f"L_sigb_{name}")
    k("s_barrier")
    reset(k)
    flag_store(k, soff, wave, name)

SLP = 2
def wait(k, name, poller, voff, nl, barrier=True, slp=None):
    k(f"""s_cmp_lg_u32 s3, {poller}
    s_cbranch_scc1 L_wt_{name}
    s_and_b32 s82, s2, 15
    s_lshl_b32 s82, s82, 14
    s_add_u32 s82, s82, {FLG}
    v_add_u32 v247, s82, v{voff}
    s_mov_b32 s82, 0x200000""")
    if nl < 64:
        if nl <= 32: k(f"s_mov_b64 exec, {(1 << nl) - 1}")
        else: k(f"s_mov_b32 exec_hi, {(1 << (nl - 32)) - 1}")
    k.label(f"L_wl_{name}")
    k.raw(f"""    global_load_dwordx4 v[248:251], v247, s[84:85] sc1
    s_waitcnt vmcnt(0)
    v_xor_b32 v248, s{TAG}, v248
    v_xor_b32 v249, s{TAG}, v249
    v_xor_b32 v250, s{TAG}, v250
    v_xor_b32 v251, s{TAG}, v251
    v_or3_b32 v248, v248, v249, v250
    v_or_b32 v248, v248, v251
    v_cmp_ne_u32 vcc, 0, v248
    s_nop 4
    s_cbranch_vccz L_wd_{name}
    s_sleep {slp or SLP}
    s_sub_u32 s82, s82, 1
    s_cmp_lg_u32 s82, 0
    s_cbranch_scc1 L_wl_{name}
L_wd_{name}:
    s_mov_b64 exec, -1""")
    k.label(f"L_wt_{name}")
    k._nop(2)
    if barrier: k("s_barrier")

def get_tag(k, name):
    k.raw(f"""    s_mov_b32 s82, 0x200000
    v_mov_b32 v250, 0
L_tg_{name}:
    s_waitcnt vmcnt(0)
    v_readfirstlane_b32 s{TAG}, v252
    s_nop 3
    s_cmp_lg_u32 s{TAG}, 0
    s_cbranch_scc1 L_tgd_{name}
    global_load_dword v252, v250, s[80:81] sc1
    s_sub_u32 s82, s82, 1
    s_cmp_lg_u32 s82, 0
    s_cbranch_scc1 L_tg_{name}
L_tgd_{name}:""")
    reset(k)

def gemv_unit(k, name, first, VB=0):
    k(f"""s_lshr_b32 s36, s2, 2             ; cgp
    s_and_b32 s37, s2, 3
    s_lshl_b32 s37, s37, 1
    s_and_b32 s38, s3, 1
    s_add_u32 s37, s37, s38           ; ke
    s_mul_i32 s38, s37, {80*7680}
    s_lshl_b32 s39, s36, 7
    s_add_u32 s38, s38, s39
    s_mul_i32 s39, s37, 160
    v_lshrrev_b32 v1, 3, v2
    v_and_b32 v3, 7, v2
    v_mul_u32_u24 v4, 7680, v1
    v_lshl_add_u32 v4, v3, 4, v4
    v_lshlrev_b32 v5, 1, v1""")
    srd(k, 16, 78, NB['wmod']); srd(k, 44, 76, NB['c'])
    for i in range(10):
        k(f"buffer_load_dwordx4 v[{8+4*i}:{11+4*i}], v4, s[16:19], s38 offen")
        if i < 9: k(f"s_add_u32 s38, s38, {8*7680}")
    for i in range(10):
        k(f"buffer_load_ushort v{50+i}, v5, s[44:47], s39 offen offset:{16*i}")
    k.raw("    v_mov_b32 v250, 0\n    global_load_dword v252, v250, s[80:81] sc1")
    get_tag(k, name)
    mstamp(k, 14, 6)
    for i in range(10):
        c = 50 + i
        k(f"""v_lshlrev_b32 v{c}, 16, v{c}
        v_mul_f32 v{c+10}, 0xbfb8aa3b, v{c}""")
    for i in range(10): k(f"v_exp_f32 v{60+i}, v{60+i}")
    for i in range(10): k(f"v_add_f32 v{60+i}, 1.0, v{60+i}")
    for i in range(10): k(f"v_rcp_f32 v{60+i}, v{60+i}")
    for i in range(10): k(f"v_mul_f32 v{50+i}, v{50+i}, v{60+i}")
    for i in range(10): bf16r(k, 50 + i, 50 + i)
    for j in range(8): k(f"v_mov_b32 v{72+j}, 0")
    for i in range(10):
        for d in range(4):
            k(f"v_lshlrev_b32 v{80+2*d}, 16, v{8+4*i+d}")
            k(f"v_and_b32 v{81+2*d}, 0xffff0000, v{8+4*i+d}")
        for j in range(8): k(f"v_fmac_f32 v{72+j}, v{80+j}, v{50+i}")
    for j in range(8): k(f"v_add_f32_dpp v{72+j}, v{72+j}, v{72+j} row_ror:8 row_mask:0xf bank_mask:0xf")
    for sw in ("16", "32"):
        for j in range(8): k(f"v_mov_b32 v{80+j}, v{72+j}")
        for j in range(8): k(f"v_permlane{sw}_swap_b32 v{72+j}, v{80+j}")
        for j in range(8): k(f"v_add_f32 v{72+j}, v{72+j}, v{80+j}")
    k(f"""s_mul_i32 s38, s37, 15360
    s_lshl_b32 s39, s36, 8
    s_add_u32 s38, s38, s39
    s_add_u32 s38, s38, {MODP}
    v_lshlrev_b32 v4, 5, v2
    s_mov_b64 exec, 0xff
    buffer_store_dwordx4 v[72:75], v4, s[12:15], s38 offen sc1
    buffer_store_dwordx4 v[76:79], v4, s[12:15], s38 offen offset:16 sc1
    s_mov_b64 exec, -1
    s_lshl_b32 s36, s36, 3
    s_add_u32 s36, s36, s37
    s_lshl_b32 s36, s36, 2
    s_add_u32 s36, s36, {FLG + FM}""")

def p0(k):
    k("""s_cmp_ge_u32 s3, 6
    s_cbranch_scc1 L_p0_gemv""")
    st = snap(k)
    srd(k, 16, 86, NB['x'])
    k("""s_lshl_b32 s36, s2, 3
    s_and_b32 s37, s3, 1
    s_lshl_b32 s37, s37, 2
    s_add_u32 s36, s36, s37
    v_lshrrev_b32 v1, 4, v2
    v_add_u32 v1, s36, v1            ; row
    v_and_b32 v3, 15, v2
    v_mul_u32_u24 v4, 1280, v1
    v_lshl_add_u32 v4, v3, 4, v4""")
    for i in range(5):
        k(f"buffer_load_dwordx4 v[{8+4*i}:{11+4*i}], v4, s[16:19], 0 offen offset:{256*i}")
    k.raw("    v_mov_b32 v250, 0\n    global_load_dword v252, v250, s[80:81] sc1")
    get_tag(k, "ln")
    for i in range(20):
        k(f"v_lshlrev_b32 v{32+2*i}, 16, v{8+i}")
        k(f"v_and_b32 v{33+2*i}, 0xffff0000, v{8+i}")
    k("v_add_f32 v4, v32, v33"); k("v_add_f32 v5, v34, v35")
    for i in range(4, 40, 2):
        k(f"v_add_f32 v4, v4, v{32+i}"); k(f"v_add_f32 v5, v5, v{33+i}")
    k("v_add_f32 v4, v4, v5")
    row16_sum(k, 4)
    k("v_mul_f32 v4, 0x3acccccd, v4")
    k("v_mov_b32 v5, 0"); k("v_mov_b32 v28, 0")
    for i in range(0, 40, 2):
        k(f"v_sub_f32 v6, v{32+i}, v4"); k(f"v_sub_f32 v7, v{33+i}, v4")
        k(f"v_fmac_f32 v5, v6, v6"); k(f"v_fmac_f32 v28, v7, v7")
    k("v_add_f32 v5, v5, v28")
    row16_sum(k, 5)
    k("v_mul_f32 v5, 0x3acccccd, v5")
    bf16r(k, 4, 4); bf16r(k, 5, 5)
    k("v_add_f32 v5, 0x3727c5ac, v5")
    bf16r(k, 5, 5)
    k("v_sqrt_f32 v5, v5")
    bf16r(k, 5, 5)
    k("v_rcp_f32 v5, v5")
    for i in range(20):
        k(f"v_sub_f32 v{32+2*i}, v{32+2*i}, v4")
        k(f"v_sub_f32 v{33+2*i}, v{33+2*i}, v4")
    for i in range(20): k(f"v_cvt_pk_bf16_f32 v{8+i}, v{32+2*i}, v{33+2*i}")
    for i in range(20):
        k(f"v_lshlrev_b32 v{32+2*i}, 16, v{8+i}")
        k(f"v_and_b32 v{33+2*i}, 0xffff0000, v{8+i}")
    for i in range(40): k(f"v_mul_f32 v{32+i}, v{32+i}, v5")
    for i in range(20): k(f"v_cvt_pk_bf16_f32 v{8+i}, v{32+2*i}, v{33+2*i}")
    for i in range(20):
        k(f"v_lshlrev_b32 v{32+2*i}, 16, v{8+i}")
        k(f"v_and_b32 v{33+2*i}, 0xffff0000, v{8+i}")
    for i in range(20): k(f"v_cvt_pkrtz_f16_f32 v{8+i}, v{32+2*i}, v{33+2*i}")
    k(f"""v_lshrrev_b32 v6, 5, v1
    v_mul_u32_u24 v6, 40960, v6
    v_lshrrev_b32 v7, 1, v3
    v_lshl_add_u32 v6, v7, 10, v6
    v_and_b32 v7, 1, v3
    v_lshl_add_u32 v6, v7, 9, v6
    v_and_b32 v7, 31, v1
    v_lshl_add_u32 v6, v7, 4, v6""")
    for i in range(5):
        k(f"s_mov_b32 s36, {XN + i*8192}")
        k(f"buffer_store_dwordx4 v[{8+4*i}:{11+4*i}], v6, s[12:15], s36 offen sc1")
    k(f"""s_lshl_b32 s36, s2, 1
    s_and_b32 s37, s3, 1
    s_add_u32 s36, s36, s37
    s_lshl_b32 s36, s36, 2
    s_add_u32 s36, s36, {FLG + FX}
    s_branch L_p0_flag""")
    k.label("L_p0_gemv")
    restore(k, st)
    k(f"""s_cmp_ge_u32 s2, 240
    s_cbranch_scc1 L_p0_skip""")
    if 'nodly' not in G.EXP:
        k("""s_cmp_lt_u32 s2, 80
        s_cbranch_scc1 L_p0_nd""")
        k.raw("    v_mov_b32 v250, 0\n    global_load_dword v252, v250, s[80:81] sc1")
        get_tag(k, "dly")
        if 'dly2' in G.EXP:
            k.raw("    global_load_dword v252, v250, s[80:81] sc1\n    s_waitcnt vmcnt(0)")
        k.label("L_p0_nd")
    gemv_unit(k, "gv", True)
    mstamp(k, 13, 6)
    k.label("L_p0_flag")
    k.waitall()
    k(f"""v_lshlrev_b32 v250, 14, v2
    v_add_u32 v250, s36, v250
    v_mov_b32 v251, s{TAG}
    s_mov_b64 exec, 0xffff
    global_store_dword v250, v251, s[84:85] sc1
    s_mov_b64 exec, -1
    s_branch L_p0_done""")
    k.label("L_p0_skip")
    k.raw("    v_mov_b32 v250, 0\n    global_load_dword v252, v250, s[80:81] sc1")
    get_tag(k, "sk")
    k.label("L_p0_done")
    reset(k); k._nop(4)
    k("s_barrier")

def p1(k):
    NSLOT = 5; SS = 16384; NT = 2; GRP = 4
    XHB = 6 * SS; GSB_L = XHB + 49152
    k(f"""s_and_b32 s20, s2, 7
    s_lshr_b32 s21, s2, 3
{MAP14}
    s_mov_b32 s24, s3
    s_mov_b32 s30, 0xffff0000
    v_lshrrev_b32 v20, 5, v2          ; h
    v_lshlrev_b32 v5, 4, v2
    s_cmp_ge_u32 s24, 4
    s_cbranch_scc1 L_p1_prod
    s_cmp_ge_u32 s23, 15
    s_cbranch_scc1 L_p1_idle""")
    st0 = snap(k)
    ACC = 32; XF = 128; WF = 144; TMP = 168
    srd(k, 8, 88, NB['wqkv'])
    k(f"""v_lshrrev_b32 v13, 4, v2
    v_and_b32 v14, 15, v2
    v_lshlrev_b32 v15, 2, v13
    v_xor_b32 v14, v14, v15
    v_mul_u32_u24 v13, 3840, v13
    v_lshl_add_u32 v13, v14, 4, v13
    s_mul_i32 s40, s24, {16*3840}
    s_lshl_b32 s41, s23, 8
    s_add_u32 s40, s40, s41
    s_lshl_b32 s41, s24, 12""")
    dma_ids = {}
    def wdma(c):
        slot = c % NSLOT
        out = []
        for i in range(4):
            def f(i=i):
                k(f"s_add_u32 m0, s41, {slot*SS + i*1024}")
                k(f"s_add_u32 s42, s40, {(64*c + 4*i)*3840}")
                dma_ids[c] = k(f"buffer_load_dwordx4 v13, s[8:11], s42 offen lds")
            out.append(f)
        return out
    LAW = 3
    k.raw("    v_mov_b32 v250, 0\n    global_load_dword v252, v250, s[80:81] sc1")
    get_tag(k, "cons")
    k("""v_mov_b32 v250, 163824
    v_mov_b32 v251, 0
    ds_write_b32 v250, v251""")
    k.wait_lg(0)
    k("s_barrier")
    NPRE = 3
    for c in range(NPRE):
        for f in wdma(c): f()
    if False:
        k.raw(f"""    v_mov_b32 v250, 163824
L_p1_cspin:
    ds_read_b32 v251, v250
    s_waitcnt lgkmcnt(0)
    v_readfirstlane_b32 s82, v251
    s_nop 3
    s_cmp_lg_u32 s82, 0
    s_cbranch_scc1 L_p1_cgo
    s_sleep 2
    s_branch L_p1_cspin
L_p1_cgo:""")
    for c in range(NPRE, LAW):
        for f in wdma(c): f()
    k(f"""s_lshr_b32 s25, s24, 1            ; tm
    s_and_b32 s26, s24, 1             ; tn
    v_bfe_u32 v21, v2, 4, 1
    v_bfe_u32 v22, v2, 2, 2
    v_and_b32 v23, 3, v2
    v_lshlrev_b32 v24, 11, v20
    v_lshl_add_u32 v24, v22, 8, v24
    v_lshl_add_u32 v24, v21, 5, v24
    v_lshl_add_u32 v24, v23, 3, v24
    s_lshl_b32 s27, s26, 1""")
    for j in range(2):
        k(f"s_add_u32 s28, s27, {j}")
        k(f"v_xor_b32 v25, s28, v22")
        k(f"v_lshl_add_u32 v{8+j*2}, v25, 6, v24")
        k(f"v_add_u32 v{9+j*2}, {GRP*SS}, v{8+j*2}")
    k(f"""s_lshl_b32 s27, s25, 11
    s_add_u32 s27, s27, {XHB}
    v_add_u32 v12, s27, v5""")
    if 'nopf1' not in G.EXP:
        prefetch(k, 8, 256, 0, 3840, 640, 16, 2048, 100, 44)
    if 'touch' in G.EXP:
        k(f"""s_mul_i32 s46, s22, 15
        s_add_u32 s46, s46, s23
        s_lshl_b32 s46, s46, 13
        v_lshlrev_b32 v104, 7, v2
        s_cmp_eq_u32 s24, 0
        s_cselect_b32 s48, s92, s94
        s_cselect_b32 s49, s93, s95
        s_cmp_ge_u32 s24, 2
        s_cselect_b32 s48, s96, s48
        s_cselect_b32 s49, s97, s49
        s_and_b32 s49, s49, 0xffff
        s_mov_b32 s50, {NB['wg']}
        s_mov_b32 s51, 0x00020000
        buffer_load_dword v105, v104, s[48:51], s46 offen""")
    if 'ft' in G.EXP:
        k(f"""s_and_b32 s44, s2, 15
        s_lshl_b32 s44, s44, 14
        s_add_u32 s44, s44, {FLG}
        v_lshlrev_b32 v100, 7, v0
        v_mov_b32 v101, 0x7ffffff0
        v_cmp_gt_u32 vcc, 128, v0
        v_cndmask_b32 v100, v101, v100, vcc
        buffer_load_dword v102, v100, s[12:15], s44 offen""")
    for i in range(64): k(f"v_mov_b32 v{ACC+i}, 0")
    def reads(s):
        c = s // 4; ks = s % 4; slot = c % NSLOT
        grp = slot // GRP; so = (slot % GRP) * SS
        out = []
        for i in range(2):
            d = XF + (s % 2) * 8 + i * 4
            out.append(f"ds_read_b128 v[{d}:{d+3}], v12 offset:{(c%3)*16384 + ks*4096 + i*1024}")
        for j in range(NT):
            for a in range(2):
                d = WF + (s % 2) * 12 + j * 4 + a * 2
                out.append(f"ds_read_b64_tr_b16 v[{d}:{d+1}], v{8+j*2+grp} offset:{so + ks*4096 + a*1024}")
        return [out[0]] + out[2:4] + [out[1]] + out[4:]
    k.wait_vm_id(dma_ids[0])
    mstamp(k, 15, 0)
    k("s_barrier")
    mstamp(k, 11, 0)
    for t in reads(0): k(t)
    k("s_cmp_ge_u32 s23, 10")
    k("s_cbranch_scc1 L_p1_v")
    st1 = snap(k); dma1 = dict(dma_ids)
    def mainloop(swap):
        pend = wdma(LAW)
        for s in range(40):
            c = s // 4
            if s % 4 == 3 and c < 9:
                k.wait_vm_id(dma_ids[c + 1]); k.wait_lg(0)
                k("s_barrier")
                if c + 1 + LAW <= 9: pend = wdma(c + 1 + LAW)
            fill = reads(s + 1) if s + 1 < 40 else []
            nd = min(len(pend), 2)
            fill = fill + pend[:nd]; pend = pend[nd:]
            fi = 0
            for j in range(NT):
                for i in range(2):
                    w = f"v[{WF+(s%2)*12+j*4}:{WF+(s%2)*12+j*4+3}]"; x = f"v[{XF+(s%2)*8+i*4}:{XF+(s%2)*8+i*4+3}]"
                    d0 = ACC + 16 * (i * NT + j); d = f"v[{d0}:{d0+15}]"
                    k(f"v_mfma_f32_32x32x16_bf16 {d}, {x if swap else w}, {w if swap else x}, {d}")
                    for _ in range(2):
                        if fi < len(fill):
                            f = fill[fi]; fi += 1
                            if callable(f): f()
                            else: k(f)
    mainloop(False)
    mstamp(k, 12, 0)
    k(f"""s_cmp_ge_u32 s23, 5
    s_cselect_b32 s29, {KB-QB}, 0
    s_cselect_b32 s31, 5, 0
    s_add_u32 s29, s29, {QB}
    s_sub_u32 s31, s23, s31
    s_lshl_b32 s31, s31, 12
    s_lshl_b32 s32, s26, 11
    s_add_u32 s29, s29, s31
    s_add_u32 s29, s29, s32
    s_lshl_b32 s32, s22, 3
    s_lshl_b32 s33, s25, 2
    s_add_u32 s32, s32, s33
    s_mul_i32 s32, s32, 20480
    s_add_u32 s29, s29, s32
    s_add_u32 s31, s29, 40960
    v_bfe_u32 v3, v2, 4, 1
    v_mul_u32_u24 v4, 20480, v3
    v_and_b32 v3, 15, v2
    v_lshl_add_u32 v4, v3, 4, v4
    v_lshl_add_u32 v4, v20, 8, v4""")
    n = 0
    for j in range(2):
        for i in range(2):
            for ap in range(2):
                r = ACC + 16 * (i * NT + j) + 8 * ap
                t = TMP + 4 * (n % 4); n += 1
                for e in range(4): k(f"v_cvt_pk_bf16_f32 v{t+e}, v{r+2*e}, v{r+2*e+1}")
                k(f"v_permlane32_swap_b32 v{t}, v{t+2}")
                k(f"v_permlane32_swap_b32 v{t+1}, v{t+3}")
                k(f"buffer_store_dwordx4 v[{t}:{t+3}], v4, s[12:15], s{29 if i == 0 else 31} offen offset:{j*1024 + ap*512} sc1")
    k("s_branch L_p1_done")
    k.label("L_p1_v")
    restore(k, st1); dma_ids.clear(); dma_ids.update(dma1)
    mainloop(True)
    mstamp(k, 12, 0)
    k(f"""s_sub_u32 s31, s23, 10
    s_lshl_b32 s31, s31, 7
    s_lshl_b32 s32, s26, 6
    s_add_u32 s31, s31, s32
    s_lshl_b32 s32, s22, 2
    s_lshl_b32 s33, s25, 1
    s_add_u32 s32, s32, s33
    s_mul_i32 s32, s32, 1280
    s_add_u32 s29, s32, {VB}
    v_and_b32 v3, 31, v2
    v_add_u32 v5, s31, v3
    s_mov_b32 s33, 81920""")
    n = 0
    for j in range(2):
        k(f"""v_add_u32 v6, {32*j}, v5
        v_mul_u32_u24 v7, 0xcccd, v6
        v_lshrrev_b32 v7, 20, v7
        v_mul_u32_u24 v8, 20, v7
        v_sub_u32 v8, v6, v8
        v_mul_lo_u32 v7, v7, s33
        v_lshl_add_u32 v7, v8, 4, v7
        v_cmp_gt_u32 vcc, 16, v8
        v_lshlrev_b32 v9, 8, v20
        v_lshlrev_b32 v10, 6, v20
        v_add_u32 v10, 768, v10
        v_cndmask_b32 v9, v10, v9, vcc
        v_add_u32 v7, v7, v9
        v_mov_b32 v9, 128
        v_mov_b32 v10, 512
        v_cndmask_b32 v9, v9, v10, vcc
        v_add_u32 v9, v7, v9""")
        for i in range(2):
            for a1 in range(2):
                t = TMP + 4 * (n % 4); n += 1
                r0 = ACC + 16 * (i * NT + j) + 4 * a1; r1 = r0 + 8
                k(f"v_cvt_pk_bf16_f32 v{t}, v{r0}, v{r0+1}")
                k(f"v_cvt_pk_bf16_f32 v{t+1}, v{r0+2}, v{r0+3}")
                k(f"v_cvt_pk_bf16_f32 v{t+2}, v{r1}, v{r1+1}")
                k(f"v_cvt_pk_bf16_f32 v{t+3}, v{r1+2}, v{r1+3}")
                k(f"buffer_store_dwordx4 v[{t}:{t+3}], v{7 if a1 == 0 else 9}, s[12:15], s29 offen offset:{1280*i} sc1")
    k("s_branch L_p1_done")
    k.label("L_p1_prod")
    restore(k, st0)
    GSR = 32; TMP = 64; OUT = 80; XR = 104; D = 4; LAX = 2
    p0(k)
    k(f"""s_cmp_ge_u32 s23, 15
    s_cbranch_scc1 L_sigb_p1
    s_sub_u32 s24, s24, 4
    v_lshrrev_b32 v20, 5, v2
    v_lshlrev_b32 v5, 4, v2
    s_lshl_b32 s25, s22, 7
    s_add_u32 s25, s25, {FX - 40*16}
    v_add_u32 v6, s25, v5
    v_add_u32 v7, {FM}, v5
    v_cmp_gt_u32 vcc, 40, v2
    v_cndmask_b32 v6, v6, v7, vcc""")
    wait(k, "p1", 4, 6, 48, barrier=False)
    k.raw(f"""    v_mov_b32 v250, 163824
    s_cmp_lg_u32 s3, 4
    s_cbranch_scc1 L_p1_lspin
    v_mov_b32 v251, 1
    ds_write_b32 v250, v251
    s_branch L_p1_lgo
L_p1_lspin:
    ds_read_b32 v251, v250
    s_waitcnt lgkmcnt(0)
    v_readfirstlane_b32 s82, v251
    s_nop 3
    s_cmp_lg_u32 s82, 0
    s_cbranch_scc1 L_p1_lgo
    s_sleep 1
    s_branch L_p1_lspin
L_p1_lgo:
    s_waitcnt lgkmcnt(0)""")
    mstamp(k, 10, 4)
    k(f"""v_lshrrev_b32 v3, 2, v2
    v_and_b32 v4, 3, v2
    v_lshlrev_b32 v6, 8, v3
    v_lshl_add_u32 v6, v4, 4, v6
    v_cmp_gt_u32 vcc, 40, v2
    v_mov_b32 v7, 0x7ffffff0
    v_cndmask_b32 v6, v7, v6, vcc
    s_lshl_b32 s25, s24, 6
    s_add_u32 s25, s25, {MODP}
    s_mul_i32 s26, s22, {4*40960}
    s_lshl_b32 s27, s24, 10
    s_add_u32 s26, s26, s27
    s_add_u32 s26, s26, {XN}""")
    for e in range(8):
        k(f"buffer_load_dwordx4 v[{168+8*e}:{171+8*e}], v6, s[12:15], s25 offen offset:2560 {LDX}")
        k(f"buffer_load_dwordx4 v[{172+8*e}:{175+8*e}], v6, s[12:15], s25 offen {LDX}")
        if e < 7: k("s_add_u32 s25, s25, 15360")
    wr_ids = {}
    def issue(c):
        if c > 9: return
        for t in range(4):
            r = XR + (c % D) * 16 + t * 4
            k(f"s_add_u32 s29, s26, {t*40960 + c*4096}")
            k(f"buffer_load_dwordx4 v[{r}:{r+3}], v5, s[12:15], s29 offen {LDX}")
    for c in range(LAX): issue(c)
    for e in range(1, 8):
        for q in range(8): k(f"v_add_f32 v{168+q}, v{168+q}, v{168+8*e+q}")
    for q in range(8): bf16r(k, GSR + q, 168 + q)
    for q in range(4):
        k(f"v_add_f32 v{GSR+q}, 1.0, v{GSR+q}")
        bf16r(k, GSR + q, GSR + q)
    k(f"""s_mul_i32 s25, s24, 1280
    s_add_u32 s25, s25, {GSB_L}
    v_lshlrev_b32 v14, 7, v3
    v_lshrrev_b32 v15, 1, v4
    v_lshl_add_u32 v14, v15, 6, v14
    v_and_b32 v15, 1, v4
    v_lshl_add_u32 v14, v15, 4, v14
    v_add_u32 v14, s25, v14
    v_cmp_gt_u32 vcc, 40, v2
    s_and_saveexec_b64 s[34:35], vcc
    ds_write_b128 v14, v[{GSR}:{GSR+3}]
    ds_write_b128 v14, v[{GSR+4}:{GSR+7}] offset:32
    s_mov_b64 exec, s[34:35]
    v_lshlrev_b32 v15, 6, v20
    v_add_u32 v15, s25, v15
    s_lshl_b32 s25, s24, 12
    s_add_u32 s25, s25, {XHB}
    v_add_u32 v16, s25, v5""")
    k.wait_lg(0)
    def gs_reads(c):
        b = GSR + (c % 2) * 16
        for i in range(4): k(f"ds_read_b128 v[{b+4*i}:{b+4*i+3}], v15 offset:{c*128 + 16*i}")
    def norm(c):
        b = GSR + (c % 2) * 16
        for t in range(4):
            r = XR + (c % D) * 16 + t * 4; o = OUT + t * 4; T = TMP + (t % 2) * 8
            for d in range(8):
                k(f"v_fma_mix_f32 v{T+d}, v{r+d//2}, v{b+d}, v{b+8+d} op_sel:[{d%2},0,0] op_sel_hi:[1,0,0]")
            for d in range(4): k(f"v_cvt_pk_bf16_f32 v{o+d}, v{T+2*d}, v{T+2*d+1}")
            wr_ids[c] = k(f"ds_write_b128 v16, v[{o}:{o+3}] offset:{(c%3)*16384 + t*1024}")
    gs_reads(0); gs_reads(1)
    issue(LAX)
    norm(0)
    issue(LAX + 1)
    gs_reads(2)
    k.wait_lg_id(wr_ids[0])
    k("s_barrier")
    norm(1)
    SCR = 81920; GSL = 152576
    for p in range(9):
        issue(p + 2 + LAX)
        if p == 6:
            k(f"""s_mul_i32 s46, s22, 15
            s_add_u32 s46, s46, s23           ; unit 0..239
            s_lshl_b32 s47, s46, 13
            v_lshlrev_b32 v168, 7, v2
            s_and_b32 s52, s2, 15
            s_lshl_b32 s52, s52, 14
            s_add_u32 s52, s52, {FLG + F1}
            s_cmp_eq_u32 s24, 9
            s_cselect_b32 s48, s96, s84
            s_cselect_b32 s49, s97, s85
            s_cselect_b32 s50, {NB['wd']}, s14
            s_cselect_b32 s47, s47, s52
            s_and_b32 s49, s49, 0xffff
            s_mov_b32 s51, 0x00020000
            s_cmp_eq_u32 s24, 1
            s_cselect_b32 s52, 8192, 0
            s_add_u32 s47, s47, s52
            buffer_load_dword v169, v168, s[48:51], s47 offen""")
        if p + 3 <= 9: gs_reads(p + 3)
        if p + 2 <= 9: norm(p + 2)
        k.wait_lg_id(wr_ids[p + 1])
        k("s_barrier")
    k("s_branch L_sigb_p1")
    k.label("L_p1_idle")
    restore(k, st0)
    k("s_barrier")
    k.raw("    v_mov_b32 v250, 0\n    global_load_dword v252, v250, s[80:81] sc1")
    get_tag(k, "idle")
    k(f"""s_cmp_eq_u32 s24, 3
    s_cbranch_scc1 L_p1_fin
    s_nop 0""")
    k(f"""s_lshl_b32 s16, s24, 4
    s_add_u32 s16, s16, s22
    s_cmp_ge_u32 s16, 40
    s_cbranch_scc1 L_p1_done
    s_mul_i32 s17, s24, 20480
    s_mul_i32 s20, s16, 26
    s_lshr_b32 s20, s20, 8
    s_mul_i32 s21, s20, 10
    s_sub_u32 s21, s16, s21
    s_mul_i32 s25, s20, {160*1280}
    s_lshl_b32 s26, s21, 7
    s_add_u32 s25, s25, s26
    v_lshrrev_b32 v8, 3, v2
    v_mul_u32_u24 v8, 1280, v8
    v_and_b32 v9, 7, v2
    v_lshl_add_u32 v8, v9, 4, v8""")
    srd(k, 28, 90, NB['wo'])
    for i in range(20):
        k(f"s_add_u32 m0, s17, {1024*i}")
        k(f"buffer_load_dwordx4 v8, s[28:31], s25 offen lds")
        k(f"s_add_u32 s25, s25, {8*1280}")
    k("""v_lshrrev_b32 v4, 4, v2
    v_bfe_u32 v5, v2, 2, 2
    v_and_b32 v6, 3, v2
    v_lshlrev_b32 v7, 4, v2""")
    for sp in range(5):
        k(f"""v_add_u32 v9, {4*sp}, v4
        v_mul_u32_u24 v10, 52, v9
        v_lshrrev_b32 v10, 8, v10
        v_mul_u32_u24 v10, 20, v10
        v_lshl_add_u32 v10, v9, 2, v10
        v_add_u32 v10, v10, v5
        v_lshlrev_b32 v10, 7, v10
        v_lshl_add_u32 v10, v6, 3, v10
        v_add_u32 v{12+sp}, s17, v10""")
    k.wait_vm(0)
    k(f"""s_mul_i32 s20, s20, {5*5120}
    s_add_u32 s20, s20, {WOP}
    s_lshl_b32 s21, s21, 2""")
    for f in range(4):
        k(f"""s_add_u32 s32, s21, {f}
        s_mul_i32 s33, s32, 52
        s_lshr_b32 s33, s33, 8
        s_mul_i32 s34, s33, 5
        s_sub_u32 s34, s32, s34
        s_mul_i32 s33, s33, {20*5120}
        s_lshl_b32 s34, s34, 10
        s_add_u32 s33, s33, s34
        s_add_u32 s33, s33, s20""")
        for sp in range(5):
            d = 24 + (f % 2) * 20 + sp * 4
            for a_ in range(2):
                k(f"ds_read_b64_tr_b16 v[{d+2*a_}:{d+2*a_+1}], v{12+sp} offset:{a_*2560 + f*32}")
        for sp in range(5):
            d = 24 + (f % 2) * 20 + sp * 4
            k(f"buffer_store_dwordx4 v[{d}:{d+3}], v7, s[12:15], s33 offen sc1")
            if sp < 4: k(f"s_add_u32 s33, s33, 5120")
    k("s_branch L_p1_done")
    k.label("L_p1_fin")
    reset(k)
    k(f"v_add_u32 v6, {FM + 640}, v5")
    wait(k, "fin0", 3, 6, 64, barrier=False, slp=16)
    k(f"v_add_u32 v6, {FM + 640 + 256}, v5")
    wait(k, "fin1", 3, 6, 64, barrier=False, slp=16)
    k(f"""s_mul_i32 s25, s22, 640
    s_add_u32 s26, s25, {MODP + 5120}
    v_mov_b32 v7, 0x7ffffff0
    v_cmp_gt_u32 vcc, 40, v2
    v_cndmask_b32 v6, v7, v5, vcc""")
    for e in range(8):
        k(f"buffer_load_dwordx4 v[{32+4*e}:{35+4*e}], v6, s[12:15], s26 offen {LDX}")
        if e < 7: k("s_add_u32 s26, s26, 15360")
    for e in range(1, 8):
        for q in range(4): k(f"v_add_f32 v{32+q}, v{32+q}, v{32+4*e+q}")
    for q in range(4): bf16r(k, 32 + q, 32 + q)
    k("""s_lshr_b32 s27, s22, 2
    s_cmp_lg_u32 s27, 2
    s_cbranch_scc1 L_p1_fin2""")
    for q in range(4):
        k(f"v_add_f32 v{32+q}, 1.0, v{32+q}")
        bf16r(k, 32 + q, 32 + q)
    k.label("L_p1_fin2")
    k._nop(2)
    k(f"""s_add_u32 s26, s25, {MOD + 5120}
    buffer_store_dwordx4 v[32:35], v6, s[12:15], s26 offen sc1""")
    k.label("L_p1_done")
    reset(k); k._nop(12)
    k.waitall()
    k.label("L_sigb_p1")
    k("s_barrier")
    reset(k)
    k(f"""s_lshl_b32 s36, s22, 7
    s_lshl_b32 s37, s23, 2
    s_add_u32 s36, s36, s37
    s_add_u32 s36, s36, {F1}""")
    flag_store(k, 36, 0, "p1")
    k(f"""s_cmp_lt_u32 s23, 15
    s_cbranch_scc1 L_p1_nofw
    s_lshl_b32 s36, s22, 2
    s_add_u32 s36, s36, {FW}""")
    flag_store(k, 36, 1, "p1w")
    k.label("L_p1_nofw")
    k("s_mov_b32 s61, s23")

def p2(k):
    KL = 0; VL = 30720
    S = [24, 96]
    QF = 168; KF = 176; T = 192; VF = 60; O = [84, 132]
    k(f"""s_and_b32 s20, s2, 7
    s_lshl_b32 s21, s20, 1
    s_bfe_u32 s20, s2, 0x10003
    s_add_u32 s21, s21, s20           ; m
    s_lshr_b32 s22, s2, 4             ; qb
    s_mov_b32 s24, s3
    v_and_b32 v3, 15, v2
    v_lshrrev_b32 v4, 4, v2
    v_lshlrev_b32 v7, 4, v2""")
    k(f"""s_lshl_b32 s25, s22, 3
    s_add_u32 s25, s25, s24
    s_mul_i32 s26, s21, 1280
    s_lshl_b32 s27, s22, 3
    s_mul_i32 s28, s24, 3
    s_add_u32 s27, s27, s28
    s_sub_u32 s27, s27, 16
    s_mul_i32 s28, s24, 3840""")
    for t in range(4):
        k(f"""v_add_u32 v12, {64*t}, v2
        v_mul_u32_u24 v13, 820, v12
        v_lshrrev_b32 v13, 16, v13
        v_mul_u32_u24 v14, 80, v13
        v_sub_u32 v14, v12, v14
        v_add_u32 v13, s27, v13
        v_cmp_gt_i32 vcc, 0, v13
        v_mul_i32_i24 v13, 20480, v13
        v_lshl_add_u32 v13, v14, 4, v13
        v_mov_b32 v14, 0x7ffffff0
        v_cndmask_b32 v{8+t}, v13, v14, vcc""")
    k(f"""v_lshrrev_b32 v19, 2, v2
    v_sub_u32 v19, s22, v19
    v_max_i32 v19, 0, v19
    v_lshlrev_b32 v19, 7, v19
    v_and_b32 v21, 3, v2
    v_lshl_add_u32 v19, v21, 4, v19
    v_add_u32 v19, {F1}, v19
    v_lshlrev_b32 v21, 4, v21
    v_add_u32 v21, {FW}, v21
    v_cmp_gt_u32 vcc, 12, v2
    v_cndmask_b32 v19, v21, v19, vcc""")
    wait(k, "p2", 7, 19, 16)
    mstamp(k, 2)
    k(f"s_add_u32 s29, s26, {KB}")
    for t in range(4):
        k(f"s_add_u32 m0, s28, {1024*t}")
        if t == 3: k("s_mov_b32 exec_hi, 0x0000ffff")
        k(f"buffer_load_dwordx4 v{8+t}, s[12:15], s29 offen {LDX} lds")
    k("s_mov_b64 exec, -1")
    k(f"""v_min_u32 v12, 2, v4
    v_lshlrev_b32 v12, 8, v12
    v_lshl_add_u32 v12, v3, 4, v12
    s_mul_i32 s30, s25, 20480
    s_add_u32 s30, s30, s26
    s_add_u32 s30, s30, {QB}
    buffer_load_dwordx4 v[{QF}:{QF+3}], v12, s[12:15], s30 offen {LDX}
    buffer_load_dwordx4 v[{QF+4}:{QF+7}], v12, s[12:15], s30 offen offset:512 {LDX}""")
    k(f"""s_lshr_b32 s31, s24, 2
    s_and_b32 s32, s24, 3
    s_lshl_b32 s33, s21, 1
    s_add_u32 s33, s33, s31
    s_mul_i32 s33, s33, 81920
    s_add_u32 s33, s33, {VB}
    s_mul_i32 s34, s22, 5120
    s_sub_u32 s34, s34, 10240
    s_lshl_b32 s35, s32, 12
    s_add_u32 s34, s34, s35
    s_mul_i32 s36, s31, 15360
    s_add_u32 s36, s36, s35
    s_add_u32 s36, s36, {VL}
    v_mov_b32 v14, 0x7ffffff0""")
    for t in range(4):
        k(f"""v_add_u32 v13, s34, v7
        v_cmp_gt_i32 vcc, 0, v13
        v_cndmask_b32 v13, v13, v14, vcc
        s_add_u32 m0, s36, {1024*t}""")
        if t == 3:
            k("""s_cmp_eq_u32 s32, 3
            s_cbranch_scc1 L_p2_v3""")
        k(f"buffer_load_dwordx4 v13, s[12:15], s33 offen {LDX} lds")
        if t < 3: k("s_add_u32 s34, s34, 1024")
    k.label("L_p2_v3")
    k(f"""s_and_b32 s31, s24, 6
    s_mul_i32 s32, s31, 1280
    v_add_u32 v8, s32, v12
    s_mul_i32 s32, s31, 640
    s_add_u32 s32, s32, {VL}
    v_add_u32 v9, s32, v7
    v_and_b32 v11, 3, v3
    v_lshl_add_u32 v11, v4, 2, v11
    v_lshlrev_b32 v11, 4, v11
    v_add_u32 v11, s32, v11
    v_cmp_gt_u32 s[48:49], 4, v3
    v_mov_b32 v18, 0x3f803f80
    v_lshlrev_b32 v13, 2, v4
    s_and_b32 s33, s24, 1""")
    MK = {0: 50, 1: 58, 16: 66, 17: 74}
    for r in range(4):
        k(f"""v_add_u32 v14, {r}, v13
        v_cmp_le_u32 s[4:5], v14, v3
        s_not_b64 s[6:7], s[4:5]
        s_cmp_eq_u32 s33, 0
        s_cselect_b64 s[{MK[0]+2*r}:{MK[0]+2*r+1}], s[6:7], 0
        s_cselect_b64 s[{MK[1]+2*r}:{MK[1]+2*r+1}], -1, s[6:7]
        s_cselect_b64 s[{MK[16]+2*r}:{MK[16]+2*r+1}], s[4:5], -1
        s_cselect_b64 s[{MK[17]+2*r}:{MK[17]+2*r+1}], 0, s[4:5]""")
    k(f"""s_mul_i32 s35, s25, 20480
    s_add_u32 s35, s35, s26
    s_add_u32 s35, s35, {OB}
    v_lshlrev_b32 v15, 8, v4
    v_lshl_add_u32 v15, v3, 4, v15
    v_lshlrev_b32 v16, 4, v3
    v_mov_b32 v10, 0x7ffffff0
    v_cmp_gt_u32 vcc, 16, v2
    v_cndmask_b32 v16, v10, v16, vcc
    s_mov_b32 s36, 0x3ea52b5c
    v_mov_b32 v17, 0xf149f2ca
    v_cmp_gt_u32 s[4:5], 2, v4
    v_cmp_gt_u32 s[6:7], 3, v4
    v_cmp_ne_u32 s[8:9], 0, v4
    s_and_b64 s[8:9], s[8:9], s[6:7]""")
    k.wait_vm(3)
    for e, mk in ((0, 6), (1, 6), (2, 4), (3, 4), (4, 8), (5, 8), (6, 6), (7, 6)):
        k(f"v_cndmask_b32 v{QF+e}, 0, v{QF+e}, s[{mk}:{mk+1}]")
    k("s_barrier")
    def kread(t, i): return f"ds_read_b128 v[{KF+4*(i%4)}:{KF+4*(i%4)+3}], v8 offset:{i*1280 + t*512}"
    def qk(t):
        out = [kread(t, 0), kread(t, 1), kread(t, 2)]
        for i in range(18):
            if i + 3 < 18: out.append(kread(t, i + 3))
            out.append(f"v_mfma_f32_16x16x32_bf16 v[{S[t]+4*i}:{S[t]+4*i+3}], v[{KF+4*(i%4)}:{KF+4*(i%4)+3}], v[{QF+4*t}:{QF+4*t+3}], 0")
        return out
    def vread(t, c):
        d = VF + (c % 3) * 8
        return [f"ds_read_b128 v[{d}:{d+3}], v9 offset:{t*15360 + c*1280}", f"ds_read_b128 v[{d+4}:{d+7}], v11 offset:{t*15360 + c*1280+1024}"]
    def pv(t):
        out = vread(t, 0) + vread(t, 1)
        for c in range(9):
            d = VF + (c % 3) * 8
            if c + 2 < 9: out += vread(t, c + 2)
            for e in range(4): out.append(f"v_cndmask_b32 v{d+4+e}, v18, v{d+4+e}, s[48:49]")
            for dd in range(2):
                acc = f"v[{O[t]+4*dd}:{O[t]+4*dd+3}]"
                out.append(f"v_mfma_f32_16x16x32_bf16 {acc}, v[{d+4*dd}:{d+4*dd+3}], v[{S[t]+4*c}:{S[t]+4*c+3}], {acc if c else 0}")
        return out
    def fixup(t):
        lab = f"L_p2_fix{t}"
        k._nop(10)
        k(f"""s_cmp_ge_u32 s22, 2
        s_cbranch_scc1 {lab}
        s_and_b32 s37, s25, 0xfffe
        s_sub_u32 s37, 16, s37""")
        for tau in range(16):
            k.raw(f"    s_cmp_le_i32 s37, {tau}\n    s_cbranch_scc1 {lab}")
            for r in range(4): k.raw(f"    v_mov_b32 v{S[t]+4*tau+r}, v17")
        k.label(lab)
        k._nop(2)
    def softmax(t):
        s0 = S[t]; TT = T + 4 * t
        out = [lambda: fixup(t)]
        for ti in (0, 1, 16, 17):
            for r in range(4):
                out.append(f"v_cndmask_b32 v{s0+4*ti+r}, v17, v{s0+4*ti+r}, s[{MK[ti]+2*r}:{MK[ti]+2*r+1}]")
        regs = list(range(s0, s0 + 72))
        for j in range(4):
            out.append(f"v_max_f32 v{TT+j}, v{regs[j*18]}, v{regs[j*18+1]}")
        for i in range(8):
            for j in range(4):
                out.append(f"v_max3_f32 v{TT+j}, v{TT+j}, v{regs[j*18+2+2*i]}, v{regs[j*18+3+2*i]}")
        out += [f"v_max3_f32 v{TT}, v{TT}, v{TT+1}, v{TT+2}", f"v_max_f32 v{TT}, v{TT}, v{TT+3}",
                f"v_mov_b32 v{TT+1}, v{TT}", f"v_permlane16_swap_b32 v{TT}, v{TT+1}", f"v_max_f32 v{TT}, v{TT}, v{TT+1}",
                f"v_mov_b32 v{TT+1}, v{TT}", f"v_permlane32_swap_b32 v{TT}, v{TT+1}", f"v_max_f32 v{TT}, v{TT}, v{TT+1}",
                f"v_mul_f32 v{TT}, s36, v{TT}", f"v_sub_f32 v{TT}, 0, v{TT}"]
        Gs = 8
        for g0 in range(0, 72, Gs):
            for i in range(Gs): out.append(f"v_fma_f32 v{s0+g0+i}, v{s0+g0+i}, s36, v{TT}")
            for i in range(Gs): out.append(f"v_exp_f32 v{s0+g0+i}, v{s0+g0+i}")
            if g0 >= Gs:
                for i in range(0, Gs, 2): out.append(f"v_cvt_pk_bf16_f32 v{s0+(g0-Gs+i)//2}, v{s0+g0-Gs+i}, v{s0+g0-Gs+i+1}")
        for i in range(64, 72, 2): out.append(f"v_cvt_pk_bf16_f32 v{s0+i//2}, v{s0+i}, v{s0+i+1}")
        return out
    FO = 160
    def final(t):
        F = 140 + 10 * t
        out = [f"v_mov_b32 v{F}, v{O[t]+4}", f"v_mov_b32 v{F+1}, v{O[t]+4}",
               f"v_permlane16_swap_b32 v{F}, v{F+1}", f"v_rcp_f32 v{F+1}, v{F+1}"]
        for i in range(8): out.append(f"v_mul_f32 v{F+2+i}, v{O[t]+i}, v{F+1}")
        o = F + 2
        out += [f"v_cvt_pk_bf16_f32 v{FO+2*t}, v{o}, v{o+1}", f"v_cvt_pk_bf16_f32 v{FO+2*t+1}, v{o+2}, v{o+3}",
                f"v_cvt_pk_bf16_f32 v{FO+4+2*t}, v{o+4}, v{o+5}", f"v_cvt_pk_bf16_f32 v{FO+4+2*t+1}, v{o+6}, v{o+7}"]
        return out
    def mix(valu, mf):
        n = len(valu); m = len(mf); j = 0
        for i, v in enumerate(valu):
            if callable(v): v()
            else: k(v)
            while j < m and (j + 1) * n <= (i + 1) * m: k(mf[j]); j += 1
        while j < m: k(mf[j]); j += 1
    for m in qk(0): k(m)
    k.wait_vm(0)
    k("s_barrier")
    k(f"""s_cmp_ge_u32 s24, 4
    s_cbranch_scc1 L_p2_rpB
    s_cmp_ge_u32 s2, 240
    s_cbranch_scc1 L_p2_norp1""")
    srd(k, 28, 92, NB['wg']); srd(k, 4, 94, NB['wu'])
    repackgu_issue(k, 2, 24, RP, 28, 4, 100, 40, 2, 12, None)
    repackgu_gsdma(k, 100, 40, 2, 12, RP + 6*4096, fl=LDX)
    k("s_branch L_p2_norp1")
    k.label("L_p2_rpB")
    k(f"""s_sub_u32 s16, s24, 4
    s_lshl_b32 s16, s16, 8
    s_add_u32 s16, s16, s2
    s_add_u32 s16, s16, 200
    s_lshl_b32 s17, s24, 12
    s_add_u32 s17, s17, {RP}
    s_cmp_ge_u32 s16, 680
    s_cbranch_scc1 L_p2_norp1""")
    srd(k, 28, 96, NB['wd'])
    rid = repack16_issue(k, 16, 17, 28, 28, 100, 40, 2)
    k.label("L_p2_norp1")
    reset(k); k._nop(4)
    prefetch_lin(k, 12, WOP, 8*20*5120, 512, 0, 104, 38, dst='v200', full=True)
    mix(softmax(0), qk(1))
    mix(softmax(1), pv(0))
    k.wait_vm(0)
    k("s_barrier")
    mix(final(0), pv(1))
    for v in final(1): k(v)
    k(f"buffer_store_dwordx4 v[{FO}:{FO+3}], v15, s[12:15], s35 offen sc1")
    k(f"buffer_store_dwordx4 v[{FO+4}:{FO+7}], v16, s[12:15], s35 offen offset:1024 sc1")
    k(f"""s_lshl_b32 s22, s22, 7
    s_lshl_b32 s21, s21, 2
    s_add_u32 s22, s22, s21
    s_add_u32 s22, s22, {F2}
    s_cmp_ge_u32 s24, 4
    s_cbranch_scc1 L_p2_fin
    s_cmp_ge_u32 s2, 240
    s_cbranch_scc1 L_p2_fin
    v_lshrrev_b32 v20, 5, v2
    s_mov_b32 s30, 0xffff0000""")
    repackgu_gs_lds(k, RP + 6*4096, 176, 20)
    repackgu_finish(k, 24, RP, 12, 176, 24, 40, 2, 20, 30, gsp=GSP)
    k.raw("    s_waitcnt vmcnt(6)")
    k("s_branch L_sigb_p2")
    k.label("L_p2_fin")
    reset(k); k._nop(4)
    signal(k, 22, "p2")
    k.rid = rid

def p35(k, wo):
    nm = 'p3' if wo else 'p5'
    NS32 = 20 if wo else 48
    NC = NS32 // 4
    NS = 5 if wo else 7
    R = 3; XD = 5
    ROT = NC if 'norot' not in G.EXP else 0
    XB = OB if wo else ACT
    WP = WOP if wo else WDP
    SS = 20480
    ACC = 32; WF = 52; EX = 132; XA = 164; TMP = 52
    EXX = EX
    k(f"""s_and_b32 s20, s2, 7
    s_lshr_b32 s21, s2, 3
{MAP35}
    v_lshlrev_b32 v5, 4, v2
    v_add_u32 v6, 4096, v5
    s_mul_i32 s37, s20, {ROT}
    s_lshr_b32 s37, s37, 3
    s_cmp_lt_u32 s3, 4
    s_cbranch_scc1 L_{nm}_comp""")
    def nextc():
        k(f"""s_add_u32 s37, s37, 1
        s_cmp_ge_u32 s37, {NC}
        s_cselect_b32 s37, 0, s37""")
    st0 = snap(k)
    k(f"""s_sub_u32 s24, s3, 4
    s_mul_i32 s25, s23, {NS32*5120}
    s_mul_i32 s26, s24, 5120
    s_add_u32 s25, s25, s26
    s_add_u32 s25, s25, {WP}""")
    dma = {}
    def fw(c):
        slot = c % NS
        k(f"s_mul_i32 s29, s37, {SS}")
        k(f"s_add_u32 s29, s29, s25")
        nextc()
        k(f"s_add_u32 m0, s26, {slot*SS}")
        for t in range(4):
            k(f"buffer_load_dwordx4 v5, s[12:15], s29 offen offset:{1024*t} {LDX} lds")
        k(f"s_add_u32 m0, s26, {slot*SS + 4096}")
        dma[c] = k(f"buffer_load_dwordx4 v6, s[12:15], s29 offen {LDX} lds")
    if wo:
        k(f"""s_cmp_ge_u32 s16, 680
        s_cbranch_scc1 L_p3_norp""")
        stn = snap(k)
        repack16_finish(k, 16, 17, 12, 24, 40, 2, None, wd=True)
        k.label("L_p3_norp")
        restore(k, stn); k._nop(4)
    for c in range(NS): fw(c)
    if wo: k.raw("    s_waitcnt vmcnt(25)")
    k("s_barrier")
    if wo:
        k(f"""s_lshl_b32 s36, s2, 2
        s_add_u32 s36, s36, {FRP}""")
        flag_store(k, 36, 4, "rp")
    for cb in range(NC):
        k.wait_vm_id(dma[cb])
        k("s_barrier")
        if cb >= 2 and cb - 2 + NS < NC: fw(cb - 2 + NS)
    if wo and 'pfgu' in G.EXP:
        prefetch_lin(k, 12, WGUP, 48*40960, 256, 0, 30, 40, tid_off=256, dst='v34')
    k(f"s_branch L_sigb_p3" if wo else "s_endpgm")
    k.label(f"L_{nm}_comp")
    restore(k, st0)
    goff = MOD + (2 if wo else 5) * 2560
    srd(k, 16, 86 if wo else 98, NB['x'])
    k(f"""s_mov_b32 s24, s3
    v_and_b32 v3, 15, v2
    v_lshrrev_b32 v4, 4, v2
    s_lshl_b32 s31, s22, 2
    s_add_u32 s31, s31, s24           ; T16
    s_mul_i32 s27, s31, {NS32*1024}
    s_add_u32 s27, s27, {XB}
    s_mul_i32 s32, s23, 320
    s_add_u32 s32, s32, {goff}
    v_lshlrev_b32 v13, 4, v4
    s_lshr_b32 s33, s31, 1
    s_mul_i32 s33, s33, 40960
    s_mul_i32 s34, s23, 5120
    s_add_u32 s33, s33, s34
    s_add_u32 s33, s33, {X1}
    s_and_b32 s34, s31, 1
    s_lshl_b32 s34, s34, 8
    v_lshl_add_u32 v14, v3, 4, s34
    v_lshrrev_b32 v15, 1, v4
    v_lshl_add_u32 v14, v15, 9, v14
    v_and_b32 v15, 1, v4
    v_lshl_add_u32 v14, v15, 3, v14
    s_mul_i32 s34, s31, {16*1280}
    s_mul_i32 s35, s23, 160
    s_add_u32 s34, s34, s35
    v_mul_u32_u24 v15, 1280, v3
    v_lshl_add_u32 v15, v4, 3, v15
    v_add_u32 v21, 4096, v14
    v_add_u32 v7, {3*SS}, v5
    v_add_u32 v8, {6*SS}, v5""")
    k(f"""s_lshr_b32 s36, s22, 1
    s_lshl_b32 s36, s36, 7
    s_add_u32 s36, s36, {F2 if wo else F4}
    v_add_u32 v19, s36, v5""")
    if wo: k.waitall()
    for j in range(5):
        k(f"buffer_load_dwordx4 v[{EX+4*j}:{EX+4*j+3}], v13, s[12:15], s32 offen offset:{64*j} {LDX}")
        if wo: k(f"buffer_load_dwordx2 v[{EX+20+2*j}:{EX+21+2*j}], v15, s[16:19], s34 offen offset:{32*j}")
        else:
            k(f"v_mov_b32 v{EX+20+2*j}, v{236+2*j}"); k(f"v_mov_b32 v{EX+21+2*j}, v{237+2*j}")
    wait(k, nm, 0, 19, 4)
    mstamp(k, 4 if wo else 8)
    def fx(c):
        k(f"s_lshl_b32 s30, s37, 12")
        k(f"s_add_u32 s30, s30, s27")
        nextc()
        for i in range(4):
            r = XA + (c % XD) * 16 + i * 4
            k(f"buffer_load_dwordx4 v[{r}:{r+3}], v5, s[12:15], s30 offen offset:{1024*i} {LDX}")
    for c in range(min(XD - 1, NC)): fx(c)
    nxt = min(XD - 1, NC)
    epi = []
    def reads(s):
        c = s // 4; ks = s % 4; slot = c % NS
        base = (5, 7, 8)[slot // 3]; so = (slot % 3) * SS
        return [f"ds_read_b128 v[{WF+(s%4)*20+j*4}:{WF+(s%4)*20+j*4+3}], v{base} offset:{so + ks*5120 + j*1024}" for j in range(5)]
    k("s_barrier")
    for q in range(R):
        for t in reads(q): k(t)
    pend = []
    for s in range(NS32):
        if (s + R) % 4 == 0 and (s + R) // 4 < NC:
            k("s_barrier")
        c = s // 4
        if s % 4 == 0:
            if nxt < NC and nxt <= c + XD - 1: pend = pend + [lambda c_=nxt: fx(c_)]; nxt += 1
            elif epi: pend = pend + epi; epi = []
        fill = reads(s + R) if s + R < NS32 else []
        n = min(len(pend), 4)
        fill = fill + pend[:n]; pend = pend[n:]
        mf = []
        for j in range(5):
            w = f"v[{WF+(s%4)*20+j*4}:{WF+(s%4)*20+j*4+3}]"
            xr = XA + (c % XD) * 16 + (s % 4) * 4
            d0 = ACC + j * 4
            mf.append(f"v_mfma_f32_16x16x32_bf16 v[{d0}:{d0+3}], {w}, v[{xr}:{xr+3}], {'v[%d:%d]' % (d0, d0+3) if s else 0}")
        interleave(k, mf, fill)
    for t in pend + epi:
        if callable(t): t()
        else: k(t)
    k("s_mov_b32 s30, 0xffff0000")
    PK = TMP + 16
    if wo:
        k("v_mov_b32 v26, 0"); k("v_mov_b32 v27, 0")
        k(f"""v_and_b32 v22, 1, v4
        v_lshlrev_b32 v23, 3, v22
        v_sub_u32 v23, v14, v23
        v_lshl_add_u32 v22, v22, 10, v23
        v_add_u32 v23, 4096, v23""")
    else:
        k(f"""v_and_b32 v22, 1, v4
        v_lshlrev_b32 v23, 3, v22
        v_sub_u32 v23, v15, v23
        v_lshl_add_u32 v22, v22, 5, v23""")
    for j in range(5):
        a0 = ACC + 4 * j; gq = EX + 4 * j; xr = EX + 20 + 2 * j; T = TMP + 8 * (j % 2); P_ = PK + 2 * j
        k(f"""v_cvt_pk_bf16_f32 v{T}, v{a0}, v{a0+1}
        v_cvt_pk_bf16_f32 v{T+1}, v{a0+2}, v{a0+3}
        v_lshlrev_b32 v{a0}, 16, v{T}
        v_and_b32 v{a0+1}, s30, v{T}
        v_lshlrev_b32 v{a0+2}, 16, v{T+1}
        v_and_b32 v{a0+3}, s30, v{T+1}
        v_mul_f32 v{a0}, v{a0}, v{gq}
        v_mul_f32 v{a0+1}, v{a0+1}, v{gq+1}
        v_mul_f32 v{a0+2}, v{a0+2}, v{gq+2}
        v_mul_f32 v{a0+3}, v{a0+3}, v{gq+3}
        v_cvt_pk_bf16_f32 v{T}, v{a0}, v{a0+1}
        v_cvt_pk_bf16_f32 v{T+1}, v{a0+2}, v{a0+3}
        v_lshlrev_b32 v{a0}, 16, v{T}
        v_and_b32 v{a0+1}, s30, v{T}
        v_lshlrev_b32 v{a0+2}, 16, v{T+1}
        v_and_b32 v{a0+3}, s30, v{T+1}
        v_lshlrev_b32 v{T+2}, 16, v{xr}
        v_and_b32 v{T+3}, s30, v{xr}
        v_lshlrev_b32 v{T+4}, 16, v{xr+1}
        v_and_b32 v{T+5}, s30, v{xr+1}
        v_add_f32 v{a0}, v{a0}, v{T+2}
        v_add_f32 v{a0+1}, v{a0+1}, v{T+3}
        v_add_f32 v{a0+2}, v{a0+2}, v{T+4}
        v_add_f32 v{a0+3}, v{a0+3}, v{T+5}
        v_cvt_pk_bf16_f32 v{P_}, v{a0}, v{a0+1}
        v_cvt_pk_bf16_f32 v{P_+1}, v{a0+2}, v{a0+3}""")
        if wo:
            k(f"""v_lshlrev_b32 v{a0}, 16, v{P_}
            v_and_b32 v{a0+1}, s30, v{P_}
            v_lshlrev_b32 v{a0+2}, 16, v{P_+1}
            v_and_b32 v{a0+3}, s30, v{P_+1}""")
            for e in range(4):
                k(f"v_add_f32 v26, v26, v{a0+e}")
                k(f"v_fmac_f32 v27, v{a0+e}, v{a0+e}")
            k(f"v_mov_b32 v{236+2*j}, v{P_}"); k(f"v_mov_b32 v{237+2*j}, v{P_+1}")
        if j == 4:
            k(f"v_mov_b32 v{P_+2}, v{P_}"); k(f"v_mov_b32 v{P_+3}, v{P_+1}")
        if j % 2 == 1 or j == 4:
            q = PK + 2 * (j - 1 if j % 2 else j)
            k(f"v_permlane16_swap_b32 v{q}, v{q+2}")
            k(f"v_permlane16_swap_b32 v{q+1}, v{q+3}")
            jj = j - 1 if j % 2 else j
            if wo:
                if j < 4: k(f"buffer_store_dwordx4 v[{q}:{q+3}], v22, s[12:15], s33 offen offset:{1024*jj} sc1")
                else: k(f"buffer_store_dwordx4 v[{q}:{q+3}], v23, s[12:15], s33 offen sc1")
            else:
                k(f"buffer_store_dwordx4 v[{q}:{q+3}], v{22 if j < 4 else 23}, s[16:19], s34 offen offset:{32*jj}")
    if wo:
        for r in (26, 27):
            k(f"""v_mov_b32 v28, v{r}
            v_permlane16_swap_b32 v{r}, v28
            v_add_f32 v{r}, v{r}, v28
            v_mov_b32 v28, v{r}
            v_permlane32_swap_b32 v{r}, v28
            v_add_f32 v{r}, v{r}, v28""")
        k(f"""s_lshl_b32 s38, s31, 10
        s_lshl_b32 s39, s23, 3
        s_add_u32 s38, s38, s39
        s_add_u32 s38, s38, {ST}
        v_lshlrev_b32 v28, 6, v3
        v_mov_b32 v29, 0x7ffffff0
        v_cmp_gt_u32 vcc, 16, v2
        v_cndmask_b32 v28, v29, v28, vcc
        buffer_store_dwordx2 v[26:27], v28, s[12:15], s38 offen sc1""")
    k.label(f"L_{nm}_done")
    reset(k); k._nop(12)
    if wo:
        k(f"v_add_u32 v19, {FRP}, v5")
        wait(k, "crp", 1, 19, 64, barrier=False, slp=4)

        k(f"""s_and_b32 s36, s22, 1
        s_lshl_b32 s36, s36, 3
        s_add_u32 s36, s36, s23
        s_lshl_b32 s36, s36, 2
        s_lshr_b32 s22, s22, 1
        s_lshl_b32 s22, s22, 7
        s_add_u32 s22, s22, s36
        s_add_u32 s22, s22, {F3}""")
        signal(k, 22, nm)

def p4(k):
    NS = 4; SS = 40960
    ACC = 32; XF = 80; WF = 92; GWR = 128; SWR = 176; TMP = 224; STT = 24; R = 2
    k(f"""s_and_b32 s20, s2, 7
    s_lshr_b32 s21, s2, 3
{MAP14}
    s_mov_b32 s24, s3
    v_lshrrev_b32 v20, 5, v2
    v_lshlrev_b32 v5, 4, v2
    s_and_b32 s25, s24, 3
    s_lshr_b32 s26, s24, 2
    s_lshr_b32 s27, s24, 1
    s_lshl_b32 s28, s22, 2
    s_add_u32 s27, s27, s28
    s_mul_i32 s27, s27, 40960
    s_and_b32 s28, s24, 1
    s_lshl_b32 s28, s28, 11
    s_add_u32 s27, s27, s28
    s_add_u32 s27, s27, {X1}
    s_lshl_b32 s28, s24, 11
    s_mul_i32 s29, s24, 3
    s_mul_i32 s30, s23, {6*40960}
    s_add_u32 s30, s30, {WGUP}""")
    for i in range(3):
        k(f"""s_add_u32 s31, s29, {i}
        s_lshr_b32 s32, s31, 2
        s_mul_i32 s32, s32, 40960
        s_and_b32 s31, s31, 3
        s_lshl_b32 s31, s31, 10
        s_add_u32 s32, s32, s31
        s_add_u32 s{40+i}, s32, s30""")
    k(f"""s_lshl_b32 s29, s29, 10
    s_add_u32 s29, s29, 16384""")
    dma = {}
    def fx(c):
        slot = c % NS
        k(f"s_add_u32 m0, s28, {slot*SS}")
        k(f"s_add_u32 s33, s27, {c*4096}")
        k(f"buffer_load_dwordx4 v5, s[12:15], s33 offen {LDX} lds")
        dma[c] = k(f"buffer_load_dwordx4 v5, s[12:15], s33 offen offset:1024 {LDX} lds")
    def fw(c, i):
        slot = c % NS
        k(f"s_add_u32 m0, s29, {slot*SS + i*1024}")
        k(f"s_add_u32 s33, s{40+i}, {c*4096}")
        dma[c] = k(f"buffer_load_dwordx4 v5, s[12:15], s33 offen {LDX} lds")
    def issue(c):
        out = [lambda: fx(c)] + [(lambda i=i: fw(c, i)) for i in range(3)]
        for f in out: f.c = c
        return out
    for c in range(NS):
        for i in range(3): fw(c, i)
    k(f"""v_and_b32 v7, 31, v2
    v_lshlrev_b32 v7, 6, v7
    v_lshl_add_u32 v7, v20, 5, v7
    s_lshl_b32 s34, s22, 2
    s_add_u32 s34, s34, s25
    s_lshl_b32 s35, s25, 12
    v_add_u32 v8, s35, v5
    s_mul_i32 s35, s26, 12288
    s_add_u32 s35, s35, 16384
    v_add_u32 v12, s35, v5
    s_lshl_b32 s36, s22, 7
    s_add_u32 s36, s36, {F3}
    v_add_u32 v18, s36, v5
    ; gsum partial gather: thread t<384: vec = t/192, col = t%192 -> byte = vec*12288 + nb*768 + col*4
    v_cmp_gt_u32 vcc, 192, v0
    v_mov_b32 v21, {12288 - 768}
    v_cndmask_b32 v21, v21, 0, vcc
    v_lshl_add_u32 v21, v0, 2, v21
    v_mov_b32 v22, 0x7ffffff0
    v_cmp_gt_u32 vcc, 0x180, v0
    v_cndmask_b32 v21, v22, v21, vcc
    s_mul_i32 s36, s23, 768
    s_add_u32 s36, s36, {GSP}""")
    for e in range(10):
        k(f"buffer_load_dword v{GWR+e}, v21, s[12:15], s36 offen {LDX}")
        if e < 9: k("s_add_u32 s36, s36, 24576")
    for g in range(1, 4):
        k(f"v_add_u32 v{8+g}, {g*SS}, v8")
        k(f"v_add_u32 v{12+g}, {g*SS}, v12")
    for i in range(48): k(f"v_mov_b32 v{ACC+i}, 0")
    wait(k, "p4", 0, 18, 4)
    mstamp(k, 6)
    fx(0); fx(1)
    k(f"""s_lshl_b32 s35, s34, 11
    s_add_u32 s35, s35, {ST}
    buffer_load_dwordx4 v[{TMP}:{TMP+3}], v7, s[12:15], s35 offen {LDX}
    buffer_load_dwordx4 v[{TMP+4}:{TMP+7}], v7, s[12:15], s35 offen offset:16 {LDX}""")
    fx(2); fx(3)
    def reads(s):
        c = s // 4; ks = s % 4; slot = c % NS
        out = [f"ds_read_b128 v[{XF+(s%3)*4}:{XF+(s%3)*4+3}], v{8+slot} offset:{ks*1024}"]
        for j in range(3):
            d = WF + (s % 3) * 12 + j * 4
            out.append(f"ds_read_b128 v[{d}:{d+3}], v{12+slot} offset:{j*4096 + ks*1024}")
        return out
    def stats():
        b = TMP
        k(f"""v_add_f32 v{b}, v{b}, v{b+2}
        v_add_f32 v{b+1}, v{b+1}, v{b+3}
        v_add_f32 v{b+4}, v{b+4}, v{b+6}
        v_add_f32 v{b+5}, v{b+5}, v{b+7}
        v_add_f32 v{b}, v{b}, v{b+4}
        v_add_f32 v{b+1}, v{b+1}, v{b+5}
        v_mov_b32 v{b+2}, v{b}
        v_mov_b32 v{b+3}, v{b+1}
        v_permlane32_swap_b32 v{b}, v{b+2}
        v_permlane32_swap_b32 v{b+1}, v{b+3}
        v_add_f32 v{b}, v{b}, v{b+2}
        v_add_f32 v{b+1}, v{b+1}, v{b+3}
        v_mul_f32 v{b}, 0x3acccccd, v{b}
        v_mul_f32 v{b+1}, 0x3acccccd, v{b+1}
        v_fma_f32 v{b+1}, -v{b}, v{b}, v{b+1}
        v_max_f32 v{b+1}, 0, v{b+1}""")
        bf16r(k, b, b); bf16r(k, b + 1, b + 1)
        k(f"v_add_f32 v{b+1}, 0x3727c5ac, v{b+1}")
        bf16r(k, b + 1, b + 1)
        k(f"v_sqrt_f32 v{b+1}, v{b+1}")
        bf16r(k, b + 1, b + 1)
        k(f"v_rcp_f32 v{STT}, v{b+1}")
        k(f"v_sub_f32 v{STT+1}, 0, v{b}")
    k.wait_vm_id(dma[0])
    k("s_barrier")
    for q in range(R):
        for t in reads(q): k(t)
    pend = []
    gs_id = None
    for s in range(40):
        if (s + R) % 4 == 0 and (s + R) // 4 <= 10:
            cb = (s + R) // 4
            while cb < 10 and any(getattr(f, 'c', None) == cb for f in pend):
                f = pend.pop(0); f()
            if cb < 10: k.wait_vm_id(dma[cb])
            if cb == 10: k.wait_lg(0)
            k("s_barrier")
            if cb >= 2 and cb - 2 + NS <= 9: pend = pend + issue(cb - 2 + NS)
            if cb == 9: pend = pend + [stats]
            if cb == 8:
                def fg():
                    for e in range(1, 10): k(f"v_add_f32 v{GWR}, v{GWR}, v{GWR+e}")
                    k(f"""v_cmp_gt_u32 vcc, 192, v0
                    v_mov_b32 v21, {2*SS + 1024 - 768}
                    v_mov_b32 v22, {2*SS}
                    v_cndmask_b32 v21, v21, v22, vcc
                    v_lshl_add_u32 v21, v0, 2, v21
                    ds_write_b32 v21, v{GWR}""")
                pend = pend + [fg] + ([] if 'wdp' not in G.EXP else [lambda: prefetch_lin(k, 12, WDP, 8*48*5120, 512, 0, 26, 36, dst='v30', full=True)])
        fill = reads(s + R) if s + R < 40 else []
        if s >= 38:
            if s == 38:
                k(f"""s_mul_i32 s33, s26, 384
                s_add_u32 s33, s33, {2*SS}
                v_lshlrev_b32 v16, 4, v20
                v_add_u32 v16, s33, v16""")
            for a in (2 * (s - 38), 2 * (s - 38) + 1):
                for j in range(3):
                    fill.append(f"ds_read_b128 v[{GWR+16*j+4*a}:{GWR+16*j+4*a+3}], v16 offset:{j*128 + a*32}")
                    fill.append(f"ds_read_b128 v[{SWR+16*j+4*a}:{SWR+16*j+4*a+3}], v16 offset:{1024 + j*128 + a*32}")
        n = min(len(pend), 2)
        fill = fill + pend[:n]; pend = pend[n:]
        mf = []
        for j in range(3):
            w = f"v[{WF+(s%3)*12+j*4}:{WF+(s%3)*12+j*4+3}]"; x = f"v[{XF+(s%3)*4}:{XF+(s%3)*4+3}]"
            d = f"v[{ACC+16*j}:{ACC+16*j+15}]"
            mf.append(f"v_mfma_f32_32x32x16_bf16 {d}, {w}, {x}, {d}")
        interleave(k, mf, fill)
    k(f"""s_mul_i32 s31, s23, 6
    s_mul_i32 s32, s26, 3
    s_add_u32 s31, s31, s32
    s_mul_i32 s32, s34, {2*48*1024}
    s_add_u32 s29, s32, {ACT}
    v_bfe_u32 v3, v2, 4, 1
    v_mul_u32_u24 v4, {48*1024}, v3
    v_and_b32 v3, 15, v2
    v_lshl_add_u32 v4, v3, 4, v4
    v_lshl_add_u32 v4, v20, 8, v4
    s_mov_b32 s35, 0xbfb8aa3b""")
    for j in range(3):
        k(f"""s_add_u32 s32, s31, {j}
        s_lshl_b32 s33, s32, 9
        s_add_u32 s33, s33, s29""")
        r = ACC + 16 * j; gw = GWR + 16 * j; sw = SWR + 16 * j
        T = XF + 8 * (j % 2); O = XF + 16 + 4 * j
        for e in range(16): k(f"v_fmac_f32 v{r+e}, v{gw+e}, v{STT+1}")
        for e in range(16): k(f"v_fmac_f32 v{sw+e}, v{r+e}, v{STT}")
        for e in range(8): k(f"v_mul_f32 v{T+e}, s35, v{sw+e}")
        for e in range(8): k(f"v_exp_f32 v{T+e}, v{T+e}")
        for e in range(8): k(f"v_add_f32 v{T+e}, 1.0, v{T+e}")
        for e in range(8): k(f"v_rcp_f32 v{T+e}, v{T+e}")
        for e in range(8): k(f"v_mul_f32 v{sw+e}, v{sw+e}, v{sw+8+e}")
        for e in range(8): k(f"v_mul_f32 v{sw+e}, v{sw+e}, v{T+e}")
        for e in range(4): k(f"v_cvt_pk_bf16_f32 v{O+e}, v{sw+2*e}, v{sw+2*e+1}")
        k(f"buffer_store_dwordx4 v[{O}:{O+3}], v4, s[12:15], s33 offen sc1")
    k(f"""s_lshl_b32 s22, s22, 7
    s_lshl_b32 s23, s23, 2
    s_add_u32 s22, s22, s23
    s_add_u32 s22, s22, {F4}""")
    signal(k, 22, "p4")

def gen_mega():
    k = Kern("adaLN_cond__sliding_block__swiglu_ffn__prompt_kernel")
    k(f"""s_cmp_ge_u32 s2, 256
    s_cbranch_scc1 L_mega_end
    s_load_dwordx2 s[84:85], s[0:1], {ARG['ws']}
    s_load_dwordx2 s[86:87], s[0:1], {ARG['x']}
    s_load_dwordx4 s[88:91], s[0:1], {ARG['wqkv']}
    s_load_dwordx4 s[92:95], s[0:1], {ARG['wg']}
    s_load_dwordx2 s[96:97], s[0:1], {ARG['wd']}
    s_load_dwordx2 s[98:99], s[0:1], {ARG['out']}
    s_load_dwordx2 s[80:81], s[0:1], {ARG['dbg']}
    s_load_dwordx4 s[76:79], s[0:1], {ARG['c']}
    s_memrealtime s[4:5]
    v_lshrrev_b32 v1, 6, v0
    v_and_b32 v2, 63, v0
    v_readfirstlane_b32 s3, v1""")
    k.waitall()
    srd(k, 12, 84, NB['ws'])
    k("""s_add_u32 s6, s2, s3
    s_cmp_lg_u32 s6, 0
    s_cbranch_scc1 L_notag
    s_or_b32 s4, s4, 1
    v_mov_b32 v250, 0
    v_mov_b32 v251, s4
    s_mov_b64 exec, 1
    global_store_dword v250, v251, s[80:81] sc1
    s_mov_b64 exec, -1""")
    k.label("L_notag")
    reset(k); k._nop(2)
    if 'nopfcode' not in G.EXP:
        k.raw("""    s_getpc_b64 s[4:5]
L_pcref:
    s_lshr_b32 s6, s2, 3
    s_cmp_lg_u32 s6, 31
    s_cbranch_scc1 L_nopfc
    v_lshlrev_b32 v250, 7, v0
    v_cmp_gt_u32 vcc, L_mega_end-L_pcref, v250
    s_and_saveexec_b64 s[6:7], vcc
    s_cbranch_execz L_nopfc2
    global_load_dword v249, v250, s[4:5]
L_nopfc2:
    s_mov_b64 exec, -1
L_nopfc:""")
    mstamp(k, 0)
    p1(k); mstamp(k, 1)
    p2(k); mstamp(k, 3)
    p35(k, True); mstamp(k, 5)
    p4(k); mstamp(k, 7)
    p35(k, False)
    if MPROF or DPROF: k.waitall()
    mstamp(k, 9)
    k.label("L_mega_end")
    k("s_endpgm")
    return k

def all_kernels():
    return [(gen_mega(), 256, 512, 163840)]

if __name__ == "__main__":
    if len(sys.argv) > 1 and sys.argv[1] == "prof": MPROF = True
    if len(sys.argv) > 1 and sys.argv[1] == "dprof": DPROF = True
    for e in sys.argv[2:]:
        if e.startswith("slp"): SLP = int(e[3:])
        G.EXP.add(e)
    open("mega" + "_".join([""] + sys.argv[2:]) + ".s", "w").write(build_file(all_kernels()))
```

```python
import sys
sys.path.insert(0, "work")
import gen as G
from gen import *

CNT = 0x1BD8000
C1, C2, C3, C4, CWO, CRP = 0, 16, 32, 48, 64, 80
RP = 131072
MPROF = False
LDX = "sc1"

def reset(k):
    k.vmq = []; k.lgq = []; k.pend_vm = {}; k.pend_lg = {}

DPROF = False
def mstamp(k, slot, wave=0):
    if DPROF and slot < 15:
        lab = f"L_ds{slot}_{len(k.lines)}"
        k.raw(f"""    s_cmp_lg_u32 s3, {wave}
    s_cbranch_scc1 {lab}
    s_cmp_lg_u32 s2, 37
    s_cbranch_scc1 {lab}
    s_memrealtime s[100:101]
    s_waitcnt lgkmcnt(0)
    v_mov_b32 v255, s100
    s_load_dwordx2 s[100:101], s[0:1], {ARG['dbg']}
    s_waitcnt lgkmcnt(0)
    v_mov_b32 v254, {4 + 4*slot}
    s_mov_b64 exec, 1
    global_store_dword v254, v255, s[100:101]
    s_mov_b64 exec, -1
{lab}:""")
        k.maxv = max(k.maxv, 255); k.maxs = max(k.maxs, 101)
        return
    if not MPROF: return
    lab = f"L_ms{slot}_{len(k.lines)}"
    k.raw(f"""    s_cmp_lg_u32 s3, {wave}
    s_cbranch_scc1 {lab}
    s_memrealtime s[100:101]
    s_waitcnt lgkmcnt(0)
    s_lshl_b32 s101, s2, 2
    s_add_u32 s101, s101, {G.PROFOFF + slot * 1024}
    v_mov_b32 v255, s100
    v_mov_b32 v254, s101
    s_memtime s[100:101]
    s_waitcnt lgkmcnt(0)
    v_mov_b32 v253, s100
    s_mov_b64 exec, 1
    global_store_dword v254, v255, s[84:85]
    v_add_u32 v254, 16384, v254
    global_store_dword v254, v253, s[84:85]
    s_mov_b64 exec, -1
{lab}:""")
    k.maxv = max(k.maxv, 255); k.maxs = max(k.maxs, 101)
    k.vm_extra = True

FLG = 0x1C40000
NREP = 16; RSTR = 16384
FX, FM, F1, FW, F2, F3, F4, FRP = 0, 2048, 4096, 6144, 8192, 10240, 12288, 14336
MODP = 0x4000
MODP = 0x1BE0000
GSP = 0x1C00000
TAG = 83

def flag_store(k, soff, wave, name):
    k(f"""s_cmp_lg_u32 s3, {wave}
    s_cbranch_scc1 L_sig_{name}
    s_add_u32 s{soff}, s{soff}, {FLG}
    v_lshlrev_b32 v250, 14, v2
    v_add_u32 v250, s{soff}, v250
    v_mov_b32 v251, s{TAG}
    s_mov_b64 exec, 0xffff""")
    k.raw("    global_store_dword v250, v251, s[84:85] sc1")
    k("s_mov_b64 exec, -1")
    k.label(f"L_sig_{name}")
    k._nop(2)

def signal(k, soff, name, wave=0):
    k.waitall()
    k.label(f"L_sigb_{name}")
    k("s_barrier")
    reset(k)
    flag_store(k, soff, wave, name)

SLP = 2
def wait(k, name, poller, voff, nl, barrier=True, slp=None):
    k(f"""s_cmp_lg_u32 s3, {poller}
    s_cbranch_scc1 L_wt_{name}
    s_and_b32 s82, s2, 15
    s_lshl_b32 s82, s82, 14
    s_add_u32 s82, s82, {FLG}
    v_add_u32 v247, s82, v{voff}
    s_mov_b32 s82, 0x200000""")
    if nl < 64:
        if nl <= 32: k(f"s_mov_b64 exec, {(1 << nl) - 1}")
        else: k(f"s_mov_b32 exec_hi, {(1 << (nl - 32)) - 1}")
    k.label(f"L_wl_{name}")
    k.raw(f"""    global_load_dwordx4 v[248:251], v247, s[84:85] sc1
    s_waitcnt vmcnt(0)
    v_xor_b32 v248, s{TAG}, v248
    v_xor_b32 v249, s{TAG}, v249
    v_xor_b32 v250, s{TAG}, v250
    v_xor_b32 v251, s{TAG}, v251
    v_or3_b32 v248, v248, v249, v250
    v_or_b32 v248, v248, v251
    v_cmp_ne_u32 vcc, 0, v248
    s_nop 4
    s_cbranch_vccz L_wd_{name}
    s_sleep {slp or SLP}
    s_sub_u32 s82, s82, 1
    s_cmp_lg_u32 s82, 0
    s_cbranch_scc1 L_wl_{name}
L_wd_{name}:
    s_mov_b64 exec, -1""")
    k.label(f"L_wt_{name}")
    k._nop(2)
    if barrier: k("s_barrier")

def wait_s(k, name, poller, soffs, sb, barrier=True):
    n = len(soffs)
    txt = f"""    s_cmp_lg_u32 s3, {poller}
    s_cbranch_scc1 L_wt_{name}
    s_and_b32 s82, s2, 15
    s_lshl_b32 s82, s82, 14
    s_add_u32 s82, s82, {FLG}
    s_add_u32 s4, s84, s82
    s_addc_u32 s5, s85, 0
    s_mov_b32 s6, s{TAG}
    s_mov_b32 s7, s{TAG}
    s_mov_b32 s82, 0x200000
L_wl_{name}:
"""
    for i, so in enumerate(soffs):
        txt += f"    s_load_dwordx16 s[{sb+16*i}:{sb+16*i+15}], s[4:5], s{so} glc\n"
    txt += "    s_waitcnt lgkmcnt(0)\n"
    for j in range(8 * n):
        txt += f"    s_xor_b64 s[{sb+2*j}:{sb+2*j+1}], s[{sb+2*j}:{sb+2*j+1}], s[6:7]\n"
    m = 8 * n
    for j in range(1, m):
        txt += f"    s_or_b64 s[{sb}:{sb+1}], s[{sb}:{sb+1}], s[{sb+2*j}:{sb+2*j+1}]\n"
    txt += f"""    s_cbranch_scc0 L_wt_{name}
    s_sleep 1
    s_sub_u32 s82, s82, 1
    s_cmp_lg_u32 s82, 0
    s_cbranch_scc1 L_wl_{name}
L_wt_{name}:"""
    k.raw(txt)
    k.maxs = max(k.maxs, sb + 16 * n)
    k._nop(2)
    if barrier: k("s_barrier")

def get_tag(k, name):
    k.raw(f"""    s_mov_b32 s82, 0x200000
    v_mov_b32 v250, 0
L_tg_{name}:
    s_waitcnt vmcnt(0)
    v_readfirstlane_b32 s{TAG}, v252
    s_nop 3
    s_cmp_lg_u32 s{TAG}, 0
    s_cbranch_scc1 L_tgd_{name}
    global_load_dword v252, v250, s[80:81] sc1
    s_sub_u32 s82, s82, 1
    s_cmp_lg_u32 s82, 0
    s_cbranch_scc1 L_tg_{name}
L_tgd_{name}:""")
    reset(k)

def gemv_unit(k, name, first, VB=0):
    k(f"""s_lshr_b32 s36, s2, 2             ; cgp
    s_and_b32 s37, s2, 3
    s_lshl_b32 s37, s37, 1
    s_and_b32 s38, s3, 1
    s_add_u32 s37, s37, s38           ; ke
    s_mul_i32 s38, s37, {80*7680}
    s_lshl_b32 s39, s36, 7
    s_add_u32 s38, s38, s39
    s_mul_i32 s39, s37, 160
    v_lshrrev_b32 v1, 3, v2
    v_and_b32 v3, 7, v2
    v_mul_u32_u24 v4, 7680, v1
    v_lshl_add_u32 v4, v3, 4, v4
    v_lshlrev_b32 v5, 1, v1""")
    srd(k, 16, 78, NB['wmod']); srd(k, 44, 76, NB['c'])
    for i in range(10):
        k(f"buffer_load_dwordx4 v[{8+4*i}:{11+4*i}], v4, s[16:19], s38 offen")
        if i < 9: k(f"s_add_u32 s38, s38, {8*7680}")
    for i in range(10):
        k(f"buffer_load_ushort v{50+i}, v5, s[44:47], s39 offen offset:{16*i}")
    k.raw("    v_mov_b32 v250, 0\n    global_load_dword v252, v250, s[80:81] sc1")
    get_tag(k, name)
    for i in range(10):
        c = 50 + i
        k(f"""v_lshlrev_b32 v{c}, 16, v{c}
        v_mul_f32 v{c+10}, 0xbfb8aa3b, v{c}""")
    for i in range(10): k(f"v_exp_f32 v{60+i}, v{60+i}")
    for i in range(10): k(f"v_add_f32 v{60+i}, 1.0, v{60+i}")
    for i in range(10): k(f"v_rcp_f32 v{60+i}, v{60+i}")
    for i in range(10): k(f"v_mul_f32 v{50+i}, v{50+i}, v{60+i}")
    for i in range(10): bf16r(k, 50 + i, 50 + i)
    for j in range(8): k(f"v_mov_b32 v{72+j}, 0")
    for i in range(10):
        for d in range(4):
            k(f"v_lshlrev_b32 v{80+2*d}, 16, v{8+4*i+d}")
            k(f"v_and_b32 v{81+2*d}, 0xffff0000, v{8+4*i+d}")
        for j in range(8): k(f"v_fmac_f32 v{72+j}, v{80+j}, v{50+i}")
    for j in range(8): k(f"v_add_f32_dpp v{72+j}, v{72+j}, v{72+j} row_ror:8 row_mask:0xf bank_mask:0xf")
    for sw in ("16", "32"):
        for j in range(8): k(f"v_mov_b32 v{80+j}, v{72+j}")
        for j in range(8): k(f"v_permlane{sw}_swap_b32 v{72+j}, v{80+j}")
        for j in range(8): k(f"v_add_f32 v{72+j}, v{72+j}, v{80+j}")
    k(f"""s_mul_i32 s38, s37, 15360
    s_lshl_b32 s39, s36, 8
    s_add_u32 s38, s38, s39
    s_add_u32 s38, s38, {MODP}
    v_lshlrev_b32 v4, 5, v2
    s_mov_b64 exec, 0xff
    buffer_store_dwordx4 v[72:75], v4, s[12:15], s38 offen sc1
    buffer_store_dwordx4 v[76:79], v4, s[12:15], s38 offen offset:16 sc1
    s_mov_b64 exec, -1
    s_lshl_b32 s36, s36, 3
    s_add_u32 s36, s36, s37
    s_lshl_b32 s36, s36, 2
    s_add_u32 s36, s36, {FLG + FM}""")

def p0(k):
    k("""s_cmp_ge_u32 s3, 6
    s_cbranch_scc1 L_p0_gemv""")
    st = snap(k)
    srd(k, 16, 86, NB['x'])
    k("""s_lshl_b32 s36, s2, 3
    s_and_b32 s37, s3, 1
    s_lshl_b32 s37, s37, 2
    s_add_u32 s36, s36, s37
    v_lshrrev_b32 v1, 4, v2
    v_add_u32 v1, s36, v1            ; row
    v_and_b32 v3, 15, v2
    v_mul_u32_u24 v4, 1280, v1
    v_lshl_add_u32 v4, v3, 4, v4""")
    for i in range(5):
        k(f"buffer_load_dwordx4 v[{8+4*i}:{11+4*i}], v4, s[16:19], 0 offen offset:{256*i}")
    k.raw("    v_mov_b32 v250, 0\n    global_load_dword v252, v250, s[80:81] sc1")
    get_tag(k, "ln")
    for i in range(20):
        k(f"v_lshlrev_b32 v{32+2*i}, 16, v{8+i}")
        k(f"v_and_b32 v{33+2*i}, 0xffff0000, v{8+i}")
    k("v_add_f32 v4, v32, v33"); k("v_add_f32 v5, v34, v35")
    for i in range(4, 40, 2):
        k(f"v_add_f32 v4, v4, v{32+i}"); k(f"v_add_f32 v5, v5, v{33+i}")
    k("v_add_f32 v4, v4, v5")
    row16_sum(k, 4)
    k("v_mul_f32 v4, 0x3acccccd, v4")
    k("v_mov_b32 v5, 0"); k("v_mov_b32 v28, 0")
    for i in range(0, 40, 2):
        k(f"v_sub_f32 v6, v{32+i}, v4"); k(f"v_sub_f32 v7, v{33+i}, v4")
        k(f"v_fmac_f32 v5, v6, v6"); k(f"v_fmac_f32 v28, v7, v7")
    k("v_add_f32 v5, v5, v28")
    row16_sum(k, 5)
    k("v_mul_f32 v5, 0x3acccccd, v5")
    bf16r(k, 4, 4); bf16r(k, 5, 5)
    k("v_add_f32 v5, 0x3727c5ac, v5")
    bf16r(k, 5, 5)
    k("v_sqrt_f32 v5, v5")
    bf16r(k, 5, 5)
    k("v_rcp_f32 v5, v5")
    for i in range(20):
        k(f"v_sub_f32 v{32+2*i}, v{32+2*i}, v4")
        k(f"v_sub_f32 v{33+2*i}, v{33+2*i}, v4")
    for i in range(20): k(f"v_cvt_pk_bf16_f32 v{8+i}, v{32+2*i}, v{33+2*i}")
    for i in range(20):
        k(f"v_lshlrev_b32 v{32+2*i}, 16, v{8+i}")
        k(f"v_and_b32 v{33+2*i}, 0xffff0000, v{8+i}")
    for i in range(40): k(f"v_mul_f32 v{32+i}, v{32+i}, v5")
    for i in range(20): k(f"v_cvt_pk_bf16_f32 v{8+i}, v{32+2*i}, v{33+2*i}")
    for i in range(20):
        k(f"v_lshlrev_b32 v{32+2*i}, 16, v{8+i}")
        k(f"v_and_b32 v{33+2*i}, 0xffff0000, v{8+i}")
    for i in range(20): k(f"v_cvt_pkrtz_f16_f32 v{8+i}, v{32+2*i}, v{33+2*i}")
    k(f"""v_lshrrev_b32 v6, 5, v1
    v_mul_u32_u24 v6, 40960, v6
    v_lshrrev_b32 v7, 1, v3
    v_lshl_add_u32 v6, v7, 10, v6
    v_and_b32 v7, 1, v3
    v_lshl_add_u32 v6, v7, 9, v6
    v_and_b32 v7, 31, v1
    v_lshl_add_u32 v6, v7, 4, v6""")
    for i in range(5):
        k(f"s_mov_b32 s36, {XN + i*8192}")
        k(f"buffer_store_dwordx4 v[{8+4*i}:{11+4*i}], v6, s[12:15], s36 offen sc1")
    k(f"""s_lshl_b32 s36, s2, 1
    s_and_b32 s37, s3, 1
    s_add_u32 s36, s36, s37
    s_lshl_b32 s36, s36, 2
    s_add_u32 s36, s36, {FLG + FX}
    s_branch L_p0_flag""")
    k.label("L_p0_gemv")
    restore(k, st)
    k(f"""s_cmp_ge_u32 s2, 240
    s_cbranch_scc1 L_p0_skip""")
    if 'nodly' not in G.EXP:
        k("""s_cmp_lt_u32 s2, 80
        s_cbranch_scc1 L_p0_nd""")
        k.raw("    v_mov_b32 v250, 0\n    global_load_dword v252, v250, s[80:81] sc1")
        get_tag(k, "dly")
        if 'dly2' in G.EXP:
            k.raw("    global_load_dword v252, v250, s[80:81] sc1\n    s_waitcnt vmcnt(0)")
        k.label("L_p0_nd")
    gemv_unit(k, "gv", True)
    k.label("L_p0_flag")
    k.waitall()
    k(f"""v_lshlrev_b32 v250, 14, v2
    v_add_u32 v250, s36, v250
    v_mov_b32 v251, s{TAG}
    s_mov_b64 exec, 0xffff
    global_store_dword v250, v251, s[84:85] sc1
    s_mov_b64 exec, -1
    s_branch L_p0_done""")
    k.label("L_p0_skip")
    k.raw("    v_mov_b32 v250, 0\n    global_load_dword v252, v250, s[80:81] sc1")
    get_tag(k, "sk")
    k.label("L_p0_done")
    reset(k); k._nop(4)
    k("s_barrier")

def p1(k):
    NSLOT = 6; SS = 16384; NT = 2; GRP = 4
    XHB = 6 * SS; GSB_L = XHB + 49152
    k(f"""s_and_b32 s20, s2, 7
    s_lshr_b32 s21, s2, 3
{MAP14}
    s_mov_b32 s24, s3
    s_mov_b32 s30, 0xffff0000
    v_lshrrev_b32 v20, 5, v2          ; h
    v_lshlrev_b32 v5, 4, v2
    s_cmp_ge_u32 s24, 4
    s_cbranch_scc1 L_p1_prod
    s_cmp_ge_u32 s23, 15
    s_cbranch_scc1 L_p1_idle""")
    st0 = snap(k)
    ACC = 32; XF = 128; WF = 144; TMP = 168
    srd(k, 8, 88, NB['wqkv'])
    k(f"""v_lshrrev_b32 v13, 4, v2
    v_and_b32 v14, 15, v2
    v_lshlrev_b32 v15, 2, v13
    v_xor_b32 v14, v14, v15
    v_mul_u32_u24 v13, 3840, v13
    v_lshl_add_u32 v13, v14, 4, v13
    s_mul_i32 s40, s24, {16*3840}
    s_lshl_b32 s41, s23, 8
    s_add_u32 s40, s40, s41
    s_lshl_b32 s41, s24, 12""")
    dma_ids = {}
    def wdma(c):
        slot = c % NSLOT
        out = []
        for i in range(4):
            def f(i=i):
                k(f"s_add_u32 m0, s41, {slot*SS + i*1024}")
                k(f"s_add_u32 s42, s40, {(64*c + 4*i)*3840}")
                dma_ids[c] = k(f"buffer_load_dwordx4 v13, s[8:11], s42 offen lds")
            out.append(f)
        return out
    LAW = int([e for e in G.EXP if e.startswith('law')][0][3:]) if any(e.startswith('law') for e in G.EXP) else 3
    k.raw("    v_mov_b32 v250, 0\n    global_load_dword v252, v250, s[80:81] sc1")
    get_tag(k, "cons")
    k("""v_mov_b32 v250, 163824
    v_mov_b32 v251, 0
    ds_write_b32 v250, v251""")
    k.wait_lg(0)
    k("s_barrier")
    NPRE = LAW
    for c in range(NPRE):
        for f in wdma(c): f()
    if False:
        k.raw(f"""    v_mov_b32 v250, 163824
L_p1_cspin:
    ds_read_b32 v251, v250
    s_waitcnt lgkmcnt(0)
    v_readfirstlane_b32 s82, v251
    s_nop 3
    s_cmp_lg_u32 s82, 0
    s_cbranch_scc1 L_p1_cgo
    s_sleep 2
    s_branch L_p1_cspin
L_p1_cgo:""")
    for c in range(NPRE, LAW):
        for f in wdma(c): f()
    k(f"""s_lshr_b32 s25, s24, 1            ; tm
    s_and_b32 s26, s24, 1             ; tn
    v_bfe_u32 v21, v2, 4, 1
    v_bfe_u32 v22, v2, 2, 2
    v_and_b32 v23, 3, v2
    v_lshlrev_b32 v24, 11, v20
    v_lshl_add_u32 v24, v22, 8, v24
    v_lshl_add_u32 v24, v21, 5, v24
    v_lshl_add_u32 v24, v23, 3, v24
    s_lshl_b32 s27, s26, 1""")
    for j in range(2):
        k(f"s_add_u32 s28, s27, {j}")
        k(f"v_xor_b32 v25, s28, v22")
        k(f"v_lshl_add_u32 v{8+j*2}, v25, 6, v24")
        k(f"v_add_u32 v{9+j*2}, {GRP*SS}, v{8+j*2}")
    k(f"""s_lshl_b32 s27, s25, 11
    s_add_u32 s27, s27, {XHB}
    v_add_u32 v12, s27, v5""")
    if 'nopf1' not in G.EXP:
        prefetch(k, 8, 256, 0, 3840, 640, 16, 2048, 100, 44)
    if 'touch' in G.EXP:
        k(f"""s_mul_i32 s46, s22, 15
        s_add_u32 s46, s46, s23
        s_lshl_b32 s46, s46, 13
        v_lshlrev_b32 v104, 7, v2
        s_cmp_eq_u32 s24, 0
        s_cselect_b32 s48, s92, s94
        s_cselect_b32 s49, s93, s95
        s_cmp_ge_u32 s24, 2
        s_cselect_b32 s48, s96, s48
        s_cselect_b32 s49, s97, s49
        s_and_b32 s49, s49, 0xffff
        s_mov_b32 s50, {NB['wg']}
        s_mov_b32 s51, 0x00020000
        buffer_load_dword v105, v104, s[48:51], s46 offen""")
    if 'ft' in G.EXP:
        k(f"""s_and_b32 s44, s2, 15
        s_lshl_b32 s44, s44, 14
        s_add_u32 s44, s44, {FLG}
        v_lshlrev_b32 v100, 7, v0
        v_mov_b32 v101, 0x7ffffff0
        v_cmp_gt_u32 vcc, 128, v0
        v_cndmask_b32 v100, v101, v100, vcc
        buffer_load_dword v102, v100, s[12:15], s44 offen""")
    for i in range(64): k(f"v_mov_b32 v{ACC+i}, 0")
    def reads(s):
        c = s // 4; ks = s % 4; slot = c % NSLOT
        grp = slot // GRP; so = (slot % GRP) * SS
        out = []
        for i in range(2):
            d = XF + (s % 2) * 8 + i * 4
            out.append(f"ds_read_b128 v[{d}:{d+3}], v12 offset:{(c%3)*16384 + ks*4096 + i*1024}")
        for j in range(NT):
            for a in range(2):
                d = WF + (s % 2) * 12 + j * 4 + a * 2
                out.append(f"ds_read_b64_tr_b16 v[{d}:{d+1}], v{8+j*2+grp} offset:{so + ks*4096 + a*1024}")
        return [out[0]] + out[2:4] + [out[1]] + out[4:]
    k.wait_vm_id(dma_ids[0])
    k("s_barrier")
    for t in reads(0): k(t)
    k("s_cmp_ge_u32 s23, 10")
    k("s_cbranch_scc1 L_p1_v")
    st1 = snap(k); dma1 = dict(dma_ids)
    def mainloop(swap):
        pend = wdma(LAW)
        for s in range(40):
            c = s // 4
            if s % 4 == 3 and c < 9:
                k.wait_vm_id(dma_ids[c + 1]); k.wait_lg(0)
                k("s_barrier")
                if c + 1 + LAW <= 9: pend = wdma(c + 1 + LAW)
            fill = reads(s + 1) if s + 1 < 40 else []
            nd = min(len(pend), 2)
            fill = fill + pend[:nd]; pend = pend[nd:]
            fi = 0
            for j in range(NT):
                for i in range(2):
                    w = f"v[{WF+(s%2)*12+j*4}:{WF+(s%2)*12+j*4+3}]"; x = f"v[{XF+(s%2)*8+i*4}:{XF+(s%2)*8+i*4+3}]"
                    d0 = ACC + 16 * (i * NT + j); d = f"v[{d0}:{d0+15}]"
                    k(f"v_mfma_f32_32x32x16_bf16 {d}, {x if swap else w}, {w if swap else x}, {d}")
                    for _ in range(2):
                        if fi < len(fill):
                            f = fill[fi]; fi += 1
                            if callable(f): f()
                            else: k(f)
    mainloop(False)
    k(f"""s_cmp_ge_u32 s23, 5
    s_cselect_b32 s29, {KB-QB}, 0
    s_cselect_b32 s31, 5, 0
    s_add_u32 s29, s29, {QB}
    s_sub_u32 s31, s23, s31
    s_lshl_b32 s31, s31, 12
    s_lshl_b32 s32, s26, 11
    s_add_u32 s29, s29, s31
    s_add_u32 s29, s29, s32
    s_lshl_b32 s32, s22, 3
    s_lshl_b32 s33, s25, 2
    s_add_u32 s32, s32, s33
    s_mul_i32 s32, s32, 20480
    s_add_u32 s29, s29, s32
    s_add_u32 s31, s29, 40960
    v_bfe_u32 v3, v2, 4, 1
    v_mul_u32_u24 v4, 20480, v3
    v_and_b32 v3, 15, v2
    v_lshl_add_u32 v4, v3, 4, v4
    v_lshl_add_u32 v4, v20, 8, v4""")
    n = 0
    for j in range(2):
        for i in range(2):
            for ap in range(2):
                r = ACC + 16 * (i * NT + j) + 8 * ap
                t = TMP + 4 * (n % 4); n += 1
                for e in range(4): k(f"v_cvt_pk_bf16_f32 v{t+e}, v{r+2*e}, v{r+2*e+1}")
                k(f"v_permlane32_swap_b32 v{t}, v{t+2}")
                k(f"v_permlane32_swap_b32 v{t+1}, v{t+3}")
                k(f"buffer_store_dwordx4 v[{t}:{t+3}], v4, s[12:15], s{29 if i == 0 else 31} offen offset:{j*1024 + ap*512} sc1")
    k("s_branch L_p1_done")
    k.label("L_p1_v")
    restore(k, st1); dma_ids.clear(); dma_ids.update(dma1)
    mainloop(True)
    k(f"""s_sub_u32 s31, s23, 10
    s_lshl_b32 s31, s31, 7
    s_lshl_b32 s32, s26, 6
    s_add_u32 s31, s31, s32
    s_lshl_b32 s32, s22, 2
    s_lshl_b32 s33, s25, 1
    s_add_u32 s32, s32, s33
    s_mul_i32 s32, s32, 1280
    s_add_u32 s29, s32, {VB}
    v_and_b32 v3, 31, v2
    v_add_u32 v5, s31, v3
    s_mov_b32 s33, 81920""")
    n = 0
    for j in range(2):
        k(f"""v_add_u32 v6, {32*j}, v5
        v_mul_u32_u24 v7, 0xcccd, v6
        v_lshrrev_b32 v7, 20, v7
        v_mul_u32_u24 v8, 20, v7
        v_sub_u32 v8, v6, v8
        v_mul_lo_u32 v7, v7, s33
        v_lshl_add_u32 v7, v8, 4, v7
        v_cmp_gt_u32 vcc, 16, v8
        v_lshlrev_b32 v9, 8, v20
        v_lshlrev_b32 v10, 6, v20
        v_add_u32 v10, 768, v10
        v_cndmask_b32 v9, v10, v9, vcc
        v_add_u32 v7, v7, v9
        v_mov_b32 v9, 128
        v_mov_b32 v10, 512
        v_cndmask_b32 v9, v9, v10, vcc
        v_add_u32 v9, v7, v9""")
        for i in range(2):
            for a1 in range(2):
                t = TMP + 4 * (n % 4); n += 1
                r0 = ACC + 16 * (i * NT + j) + 4 * a1; r1 = r0 + 8
                k(f"v_cvt_pk_bf16_f32 v{t}, v{r0}, v{r0+1}")
                k(f"v_cvt_pk_bf16_f32 v{t+1}, v{r0+2}, v{r0+3}")
                k(f"v_cvt_pk_bf16_f32 v{t+2}, v{r1}, v{r1+1}")
                k(f"v_cvt_pk_bf16_f32 v{t+3}, v{r1+2}, v{r1+3}")
                k(f"buffer_store_dwordx4 v[{t}:{t+3}], v{7 if a1 == 0 else 9}, s[12:15], s29 offen offset:{1280*i} sc1")
    k("s_branch L_p1_done")
    k.label("L_p1_prod")
    restore(k, st0)
    GSR = 32; TMP = 64; OUT = 80; XR = 104; D = 4; LAX = 2
    p0(k)
    k(f"""s_cmp_ge_u32 s23, 15
    s_cbranch_scc1 L_sigb_p1
    s_sub_u32 s24, s24, 4
    v_lshrrev_b32 v20, 5, v2
    v_lshlrev_b32 v5, 4, v2
    s_lshl_b32 s25, s22, 7
    s_add_u32 s25, s25, {FX - 40*16}
    v_add_u32 v6, s25, v5
    v_add_u32 v7, {FM}, v5
    v_cmp_gt_u32 vcc, 40, v2
    v_cndmask_b32 v6, v6, v7, vcc""")
    wait(k, "p1", 4, 6, 48, barrier=False)
    k.raw(f"""    v_mov_b32 v250, 163824
    s_cmp_lg_u32 s3, 4
    s_cbranch_scc1 L_p1_lspin
    v_mov_b32 v251, 1
    ds_write_b32 v250, v251
    s_branch L_p1_lgo
L_p1_lspin:
    ds_read_b32 v251, v250
    s_waitcnt lgkmcnt(0)
    v_readfirstlane_b32 s82, v251
    s_nop 3
    s_cmp_lg_u32 s82, 0
    s_cbranch_scc1 L_p1_lgo
    s_sleep 1
    s_branch L_p1_lspin
L_p1_lgo:
    s_waitcnt lgkmcnt(0)""")
    k(f"""v_lshrrev_b32 v3, 2, v2
    v_and_b32 v4, 3, v2
    v_lshlrev_b32 v6, 8, v3
    v_lshl_add_u32 v6, v4, 4, v6
    v_cmp_gt_u32 vcc, 40, v2
    v_mov_b32 v7, 0x7ffffff0
    v_cndmask_b32 v6, v7, v6, vcc
    s_lshl_b32 s25, s24, 6
    s_add_u32 s25, s25, {MODP}
    s_mul_i32 s26, s22, {4*40960}
    s_lshl_b32 s27, s24, 10
    s_add_u32 s26, s26, s27
    s_add_u32 s26, s26, {XN}""")
    for e in range(8):
        k(f"buffer_load_dwordx4 v[{168+8*e}:{171+8*e}], v6, s[12:15], s25 offen offset:2560 {LDX}")
        k(f"buffer_load_dwordx4 v[{172+8*e}:{175+8*e}], v6, s[12:15], s25 offen {LDX}")
        if e < 7: k("s_add_u32 s25, s25, 15360")
    wr_ids = {}
    def issue(c):
        if c > 9: return
        for t in range(4):
            r = XR + (c % D) * 16 + t * 4
            k(f"s_add_u32 s29, s26, {t*40960 + c*4096}")
            k(f"buffer_load_dwordx4 v[{r}:{r+3}], v5, s[12:15], s29 offen {LDX}")
    for c in range(LAX): issue(c)
    for e in range(1, 8):
        for q in range(8): k(f"v_add_f32 v{168+q}, v{168+q}, v{168+8*e+q}")
    for q in range(8): bf16r(k, GSR + q, 168 + q)
    for q in range(4):
        k(f"v_add_f32 v{GSR+q}, 1.0, v{GSR+q}")
        bf16r(k, GSR + q, GSR + q)
    k(f"""s_mul_i32 s25, s24, 1280
    s_add_u32 s25, s25, {GSB_L}
    v_lshlrev_b32 v14, 7, v3
    v_lshrrev_b32 v15, 1, v4
    v_lshl_add_u32 v14, v15, 6, v14
    v_and_b32 v15, 1, v4
    v_lshl_add_u32 v14, v15, 4, v14
    v_add_u32 v14, s25, v14
    v_cmp_gt_u32 vcc, 40, v2
    s_and_saveexec_b64 s[34:35], vcc
    ds_write_b128 v14, v[{GSR}:{GSR+3}]
    ds_write_b128 v14, v[{GSR+4}:{GSR+7}] offset:32
    s_mov_b64 exec, s[34:35]
    v_lshlrev_b32 v15, 6, v20
    v_add_u32 v15, s25, v15
    s_lshl_b32 s25, s24, 12
    s_add_u32 s25, s25, {XHB}
    v_add_u32 v16, s25, v5""")
    k.wait_lg(0)
    def gs_reads(c):
        b = GSR + (c % 2) * 16
        for i in range(4): k(f"ds_read_b128 v[{b+4*i}:{b+4*i+3}], v15 offset:{c*128 + 16*i}")
    def norm(c):
        b = GSR + (c % 2) * 16
        for t in range(4):
            r = XR + (c % D) * 16 + t * 4; o = OUT + t * 4; T = TMP + (t % 2) * 8
            for d in range(8):
                k(f"v_fma_mix_f32 v{T+d}, v{r+d//2}, v{b+d}, v{b+8+d} op_sel:[{d%2},0,0] op_sel_hi:[1,0,0]")
            for d in range(4): k(f"v_cvt_pk_bf16_f32 v{o+d}, v{T+2*d}, v{T+2*d+1}")
            wr_ids[c] = k(f"ds_write_b128 v16, v[{o}:{o+3}] offset:{(c%3)*16384 + t*1024}")
    gs_reads(0); gs_reads(1)
    issue(LAX)
    norm(0)
    issue(LAX + 1)
    gs_reads(2)
    k.wait_lg_id(wr_ids[0])
    k("s_barrier")
    norm(1)
    SCR = 81920; GSL = 152576
    for p in range(9):
        issue(p + 2 + LAX)
        if p == 6:
            k(f"""s_mul_i32 s46, s22, 15
            s_add_u32 s46, s46, s23           ; unit 0..239
            s_lshl_b32 s47, s46, 13
            v_lshlrev_b32 v168, 7, v2
            s_and_b32 s52, s2, 15
            s_lshl_b32 s52, s52, 14
            s_add_u32 s52, s52, {FLG + F1}
            s_cmp_eq_u32 s24, 9
            s_cselect_b32 s48, s96, s84
            s_cselect_b32 s49, s97, s85
            s_cselect_b32 s50, {NB['wd']}, s14
            s_cselect_b32 s47, s47, s52
            s_and_b32 s49, s49, 0xffff
            s_mov_b32 s51, 0x00020000
            s_cmp_eq_u32 s24, 1
            s_cselect_b32 s52, 8192, 0
            s_add_u32 s47, s47, s52
            buffer_load_dword v169, v168, s[48:51], s47 offen""")
        if p + 3 <= 9: gs_reads(p + 3)
        if p + 2 <= 9: norm(p + 2)
        k.wait_lg_id(wr_ids[p + 1])
        k("s_barrier")
    k("s_branch L_sigb_p1")
    k.label("L_p1_idle")
    restore(k, st0)
    k("s_barrier")
    k.raw("    v_mov_b32 v250, 0\n    global_load_dword v252, v250, s[80:81] sc1")
    get_tag(k, "idle")
    k(f"""s_cmp_eq_u32 s24, 3
    s_cbranch_scc1 L_p1_fin
    s_nop 0""")
    k(f"""s_lshl_b32 s16, s24, 4
    s_add_u32 s16, s16, s22
    s_cmp_ge_u32 s16, 40
    s_cbranch_scc1 L_p1_done
    s_mul_i32 s17, s24, 20480
    s_mul_i32 s20, s16, 26
    s_lshr_b32 s20, s20, 8
    s_mul_i32 s21, s20, 10
    s_sub_u32 s21, s16, s21
    s_mul_i32 s25, s20, {160*1280}
    s_lshl_b32 s26, s21, 7
    s_add_u32 s25, s25, s26
    v_lshrrev_b32 v8, 3, v2
    v_mul_u32_u24 v8, 1280, v8
    v_and_b32 v9, 7, v2
    v_lshl_add_u32 v8, v9, 4, v8""")
    srd(k, 28, 90, NB['wo'])
    for i in range(20):
        k(f"s_add_u32 m0, s17, {1024*i}")
        k(f"buffer_load_dwordx4 v8, s[28:31], s25 offen lds")
        k(f"s_add_u32 s25, s25, {8*1280}")
    k("""v_lshrrev_b32 v4, 4, v2
    v_bfe_u32 v5, v2, 2, 2
    v_and_b32 v6, 3, v2
    v_lshlrev_b32 v7, 4, v2""")
    for sp in range(5):
        k(f"""v_add_u32 v9, {4*sp}, v4
        v_mul_u32_u24 v10, 52, v9
        v_lshrrev_b32 v10, 8, v10
        v_mul_u32_u24 v10, 20, v10
        v_lshl_add_u32 v10, v9, 2, v10
        v_add_u32 v10, v10, v5
        v_lshlrev_b32 v10, 7, v10
        v_lshl_add_u32 v10, v6, 3, v10
        v_add_u32 v{12+sp}, s17, v10""")
    k.wait_vm(0)
    k(f"""s_mul_i32 s20, s20, {5*5120}
    s_add_u32 s20, s20, {WOP}
    s_lshl_b32 s21, s21, 2""")
    for f in range(4):
        k(f"""s_add_u32 s32, s21, {f}
        s_mul_i32 s33, s32, 52
        s_lshr_b32 s33, s33, 8
        s_mul_i32 s34, s33, 5
        s_sub_u32 s34, s32, s34
        s_mul_i32 s33, s33, {20*5120}
        s_lshl_b32 s34, s34, 10
        s_add_u32 s33, s33, s34
        s_add_u32 s33, s33, s20""")
        for sp in range(5):
            d = 24 + (f % 2) * 20 + sp * 4
            for a_ in range(2):
                k(f"ds_read_b64_tr_b16 v[{d+2*a_}:{d+2*a_+1}], v{12+sp} offset:{a_*2560 + f*32}")
        for sp in range(5):
            d = 24 + (f % 2) * 20 + sp * 4
            k(f"buffer_store_dwordx4 v[{d}:{d+3}], v7, s[12:15], s33 offen sc1")
            if sp < 4: k(f"s_add_u32 s33, s33, 5120")
    k("s_branch L_p1_done")
    k.label("L_p1_fin")
    reset(k)
    k(f"v_add_u32 v6, {FM + 640}, v5")
    wait(k, "fin0", 3, 6, 64, barrier=False, slp=16)
    k(f"v_add_u32 v6, {FM + 640 + 256}, v5")
    wait(k, "fin1", 3, 6, 64, barrier=False, slp=16)
    k(f"""s_mul_i32 s25, s22, 640
    s_add_u32 s26, s25, {MODP + 5120}
    v_mov_b32 v7, 0x7ffffff0
    v_cmp_gt_u32 vcc, 40, v2
    v_cndmask_b32 v6, v7, v5, vcc""")
    for e in range(8):
        k(f"buffer_load_dwordx4 v[{32+4*e}:{35+4*e}], v6, s[12:15], s26 offen {LDX}")
        if e < 7: k("s_add_u32 s26, s26, 15360")
    for e in range(1, 8):
        for q in range(4): k(f"v_add_f32 v{32+q}, v{32+q}, v{32+4*e+q}")
    for q in range(4): bf16r(k, 32 + q, 32 + q)
    k("""s_lshr_b32 s27, s22, 2
    s_cmp_lg_u32 s27, 2
    s_cbranch_scc1 L_p1_fin2""")
    for q in range(4):
        k(f"v_add_f32 v{32+q}, 1.0, v{32+q}")
        bf16r(k, 32 + q, 32 + q)
    k.label("L_p1_fin2")
    k._nop(2)
    k(f"""s_add_u32 s26, s25, {MOD + 5120}
    buffer_store_dwordx4 v[32:35], v6, s[12:15], s26 offen sc1""")
    k.label("L_p1_done")
    reset(k); k._nop(12)
    k.waitall()
    k.label("L_sigb_p1")
    k("s_barrier")
    reset(k)
    k(f"""s_lshl_b32 s36, s22, 7
    s_lshl_b32 s37, s23, 2
    s_add_u32 s36, s36, s37
    s_add_u32 s36, s36, {F1}""")
    flag_store(k, 36, 0, "p1")
    k(f"""s_cmp_lt_u32 s23, 15
    s_cbranch_scc1 L_p1_nofw
    s_lshl_b32 s36, s22, 2
    s_add_u32 s36, s36, {FW}""")
    flag_store(k, 36, 1, "p1w")
    k.label("L_p1_nofw")
    k("s_mov_b32 s61, s23")

def p2(k):
    KL = 0; VL = 30720
    S = [24, 96]
    QF = 168; KF = 176; T = 192; VF = 60; O = [84, 132]
    k(f"""s_and_b32 s20, s2, 7
    s_lshl_b32 s21, s20, 1
    s_bfe_u32 s20, s2, 0x10003
    s_add_u32 s21, s21, s20           ; m
    s_lshr_b32 s22, s2, 4             ; qb
    s_mov_b32 s24, s3
    v_and_b32 v3, 15, v2
    v_lshrrev_b32 v4, 4, v2
    v_lshlrev_b32 v7, 4, v2""")
    k(f"""s_lshl_b32 s25, s22, 3
    s_add_u32 s25, s25, s24
    s_mul_i32 s26, s21, 1280
    s_lshl_b32 s27, s22, 3
    s_mul_i32 s28, s24, 3
    s_add_u32 s27, s27, s28
    s_sub_u32 s27, s27, 16
    s_mul_i32 s28, s24, 3840""")
    for t in range(4):
        k(f"""v_add_u32 v12, {64*t}, v2
        v_mul_u32_u24 v13, 820, v12
        v_lshrrev_b32 v13, 16, v13
        v_mul_u32_u24 v14, 80, v13
        v_sub_u32 v14, v12, v14
        v_add_u32 v13, s27, v13
        v_cmp_gt_i32 vcc, 0, v13
        v_mul_i32_i24 v13, 20480, v13
        v_lshl_add_u32 v13, v14, 4, v13
        v_mov_b32 v14, 0x7ffffff0
        v_cndmask_b32 v{8+t}, v13, v14, vcc""")
    k(f"""s_mov_b32 s8, {FW}
    s_lshl_b32 s9, s22, 7
    s_add_u32 s9, s9, {F1}
    s_sub_u32 s10, s9, 128
    s_max_u32 s10, s10, {F1}
    s_sub_u32 s11, s9, 256
    s_max_u32 s11, s11, {F1}""")
    wait_s(k, "p2w", 7, [8], 32, barrier=False)
    wait_s(k, "p2", 7, [9, 10, 11], 32)
    mstamp(k, 2)
    k(f"s_add_u32 s29, s26, {KB}")
    for t in range(4):
        k(f"s_add_u32 m0, s28, {1024*t}")
        if t == 3: k("s_mov_b32 exec_hi, 0x0000ffff")
        k(f"buffer_load_dwordx4 v{8+t}, s[12:15], s29 offen {LDX} lds")
    k("s_mov_b64 exec, -1")
    k(f"""v_min_u32 v12, 2, v4
    v_lshlrev_b32 v12, 8, v12
    v_lshl_add_u32 v12, v3, 4, v12
    s_mul_i32 s30, s25, 20480
    s_add_u32 s30, s30, s26
    s_add_u32 s30, s30, {QB}
    buffer_load_dwordx4 v[{QF}:{QF+3}], v12, s[12:15], s30 offen {LDX}
    buffer_load_dwordx4 v[{QF+4}:{QF+7}], v12, s[12:15], s30 offen offset:512 {LDX}""")
    k(f"""s_lshr_b32 s31, s24, 2
    s_and_b32 s32, s24, 3
    s_lshl_b32 s33, s21, 1
    s_add_u32 s33, s33, s31
    s_mul_i32 s33, s33, 81920
    s_add_u32 s33, s33, {VB}
    s_mul_i32 s34, s22, 5120
    s_sub_u32 s34, s34, 10240
    s_lshl_b32 s35, s32, 12
    s_add_u32 s34, s34, s35
    s_mul_i32 s36, s31, 15360
    s_add_u32 s36, s36, s35
    s_add_u32 s36, s36, {VL}
    v_mov_b32 v14, 0x7ffffff0""")
    for t in range(4):
        k(f"""v_add_u32 v13, s34, v7
        v_cmp_gt_i32 vcc, 0, v13
        v_cndmask_b32 v13, v13, v14, vcc
        s_add_u32 m0, s36, {1024*t}""")
        if t == 3:
            k("""s_cmp_eq_u32 s32, 3
            s_cbranch_scc1 L_p2_v3""")
        k(f"buffer_load_dwordx4 v13, s[12:15], s33 offen {LDX} lds")
        if t < 3: k("s_add_u32 s34, s34, 1024")
    k.label("L_p2_v3")
    k(f"""s_and_b32 s31, s24, 6
    s_mul_i32 s32, s31, 1280
    v_add_u32 v8, s32, v12
    s_mul_i32 s32, s31, 640
    s_add_u32 s32, s32, {VL}
    v_add_u32 v9, s32, v7
    v_and_b32 v11, 3, v3
    v_lshl_add_u32 v11, v4, 2, v11
    v_lshlrev_b32 v11, 4, v11
    v_add_u32 v11, s32, v11
    v_cmp_gt_u32 s[48:49], 4, v3
    v_mov_b32 v18, 0x3f803f80
    v_lshlrev_b32 v13, 2, v4
    s_and_b32 s33, s24, 1""")
    MK = {0: 50, 1: 58, 16: 66, 17: 74}
    for r in range(4):
        k(f"""v_add_u32 v14, {r}, v13
        v_cmp_le_u32 s[4:5], v14, v3
        s_not_b64 s[6:7], s[4:5]
        s_cmp_eq_u32 s33, 0
        s_cselect_b64 s[{MK[0]+2*r}:{MK[0]+2*r+1}], s[6:7], 0
        s_cselect_b64 s[{MK[1]+2*r}:{MK[1]+2*r+1}], -1, s[6:7]
        s_cselect_b64 s[{MK[16]+2*r}:{MK[16]+2*r+1}], s[4:5], -1
        s_cselect_b64 s[{MK[17]+2*r}:{MK[17]+2*r+1}], 0, s[4:5]""")
    k(f"""s_mul_i32 s35, s25, 20480
    s_add_u32 s35, s35, s26
    s_add_u32 s35, s35, {OB}
    v_lshlrev_b32 v15, 8, v4
    v_lshl_add_u32 v15, v3, 4, v15
    v_lshlrev_b32 v16, 4, v3
    v_mov_b32 v10, 0x7ffffff0
    v_cmp_gt_u32 vcc, 16, v2
    v_cndmask_b32 v16, v10, v16, vcc
    s_mov_b32 s36, 0x3ea52b5c
    v_mov_b32 v17, 0xf149f2ca
    v_cmp_gt_u32 s[4:5], 2, v4
    v_cmp_gt_u32 s[6:7], 3, v4
    v_cmp_ne_u32 s[8:9], 0, v4
    s_and_b64 s[8:9], s[8:9], s[6:7]""")
    k.wait_vm(3)
    for e, mk in ((0, 6), (1, 6), (2, 4), (3, 4), (4, 8), (5, 8), (6, 6), (7, 6)):
        k(f"v_cndmask_b32 v{QF+e}, 0, v{QF+e}, s[{mk}:{mk+1}]")
    PW = int([e for e in G.EXP if e.startswith('pw')][0][2:]) if any(e.startswith('pw') for e in G.EXP) else 0
    k("s_barrier")
    def kread(t, i): return f"ds_read_b128 v[{KF+4*(i%4)}:{KF+4*(i%4)+3}], v8 offset:{i*1280 + t*512}"
    def qk(t):
        out = [kread(t, 0), kread(t, 1), kread(t, 2)]
        for i in range(18):
            if i + 3 < 18: out.append(kread(t, i + 3))
            out.append(f"v_mfma_f32_16x16x32_bf16 v[{S[t]+4*i}:{S[t]+4*i+3}], v[{KF+4*(i%4)}:{KF+4*(i%4)+3}], v[{QF+4*t}:{QF+4*t+3}], 0")
        return out
    def vread(t, c):
        d = VF + (c % 3) * 8
        return [f"ds_read_b128 v[{d}:{d+3}], v9 offset:{t*15360 + c*1280}", f"ds_read_b128 v[{d+4}:{d+7}], v11 offset:{t*15360 + c*1280+1024}"]
    def pv(t):
        out = vread(t, 0) + vread(t, 1)
        for c in range(9):
            d = VF + (c % 3) * 8
            if c + 2 < 9: out += vread(t, c + 2)
            for e in range(4): out.append(f"v_cndmask_b32 v{d+4+e}, v18, v{d+4+e}, s[48:49]")
            for dd in range(2):
                acc = f"v[{O[t]+4*dd}:{O[t]+4*dd+3}]"
                out.append(f"v_mfma_f32_16x16x32_bf16 {acc}, v[{d+4*dd}:{d+4*dd+3}], v[{S[t]+4*c}:{S[t]+4*c+3}], {acc if c else 0}")
        return out
    def fixup(t):
        lab = f"L_p2_fix{t}"
        k._nop(10)
        k(f"""s_cmp_ge_u32 s22, 2
        s_cbranch_scc1 {lab}
        s_and_b32 s37, s25, 0xfffe
        s_sub_u32 s37, 16, s37""")
        for tau in range(16):
            k.raw(f"    s_cmp_le_i32 s37, {tau}\n    s_cbranch_scc1 {lab}")
            for r in range(4): k.raw(f"    v_mov_b32 v{S[t]+4*tau+r}, v17")
        k.label(lab)
        k._nop(2)
    def softmax(t):
        s0 = S[t]; TT = T + 4 * t
        out = [lambda: fixup(t)]
        for ti in (0, 1, 16, 17):
            for r in range(4):
                out.append(f"v_cndmask_b32 v{s0+4*ti+r}, v17, v{s0+4*ti+r}, s[{MK[ti]+2*r}:{MK[ti]+2*r+1}]")
        regs = list(range(s0, s0 + 72))
        for j in range(4):
            out.append(f"v_max_f32 v{TT+j}, v{regs[j*18]}, v{regs[j*18+1]}")
        for i in range(8):
            for j in range(4):
                out.append(f"v_max3_f32 v{TT+j}, v{TT+j}, v{regs[j*18+2+2*i]}, v{regs[j*18+3+2*i]}")
        out += [f"v_max3_f32 v{TT}, v{TT}, v{TT+1}, v{TT+2}", f"v_max_f32 v{TT}, v{TT}, v{TT+3}",
                f"v_mov_b32 v{TT+1}, v{TT}", f"v_permlane16_swap_b32 v{TT}, v{TT+1}", f"v_max_f32 v{TT}, v{TT}, v{TT+1}",
                f"v_mov_b32 v{TT+1}, v{TT}", f"v_permlane32_swap_b32 v{TT}, v{TT+1}", f"v_max_f32 v{TT}, v{TT}, v{TT+1}",
                f"v_mul_f32 v{TT}, s36, v{TT}", f"v_sub_f32 v{TT}, 0, v{TT}"]
        Gs = 8
        for g0 in range(0, 72, Gs):
            for i in range(Gs): out.append(f"v_fma_f32 v{s0+g0+i}, v{s0+g0+i}, s36, v{TT}")
            for i in range(Gs): out.append(f"v_exp_f32 v{s0+g0+i}, v{s0+g0+i}")
            if g0 >= Gs:
                for i in range(0, Gs, 2): out.append(f"v_cvt_pk_bf16_f32 v{s0+(g0-Gs+i)//2}, v{s0+g0-Gs+i}, v{s0+g0-Gs+i+1}")
        for i in range(64, 72, 2): out.append(f"v_cvt_pk_bf16_f32 v{s0+i//2}, v{s0+i}, v{s0+i+1}")
        return out
    FO = 160
    def final(t):
        F = 140 + 10 * t
        out = [f"v_mov_b32 v{F}, v{O[t]+4}", f"v_mov_b32 v{F+1}, v{O[t]+4}",
               f"v_permlane16_swap_b32 v{F}, v{F+1}", f"v_rcp_f32 v{F+1}, v{F+1}"]
        for i in range(8): out.append(f"v_mul_f32 v{F+2+i}, v{O[t]+i}, v{F+1}")
        o = F + 2
        out += [f"v_cvt_pk_bf16_f32 v{FO+2*t}, v{o}, v{o+1}", f"v_cvt_pk_bf16_f32 v{FO+2*t+1}, v{o+2}, v{o+3}",
                f"v_cvt_pk_bf16_f32 v{FO+4+2*t}, v{o+4}, v{o+5}", f"v_cvt_pk_bf16_f32 v{FO+4+2*t+1}, v{o+6}, v{o+7}"]
        return out
    def mix(valu, mf):
        n = len(valu); m = len(mf); j = 0
        for i, v in enumerate(valu):
            if callable(v): v()
            else: k(v)
            while j < m and (j + 1) * n <= (i + 1) * m: k(mf[j]); j += 1
        while j < m: k(mf[j]); j += 1
    for m in qk(0): k(m)
    k.wait_vm(0)
    k("s_barrier")
    k(f"""s_cmp_ge_u32 s24, 4
    s_cbranch_scc1 L_p2_rpB
    s_cmp_ge_u32 s2, 240
    s_cbranch_scc1 L_p2_norp1""")
    srd(k, 28, 92, NB['wg']); srd(k, 4, 94, NB['wu'])
    repackgu_issue(k, 2, 24, RP, 28, 4, 100, 40, 2, 12, None)
    repackgu_gsdma(k, 100, 40, 2, 12, RP + 6*4096, fl=LDX)
    k("s_branch L_p2_norp1")
    k.label("L_p2_rpB")
    k(f"""s_sub_u32 s16, s24, 4
    s_lshl_b32 s16, s16, 8
    s_add_u32 s16, s16, s2
    s_add_u32 s16, s16, 200
    s_lshl_b32 s17, s24, 12
    s_add_u32 s17, s17, {RP}
    s_cmp_ge_u32 s16, 680
    s_cbranch_scc1 L_p2_norp1""")
    srd(k, 28, 96, NB['wd'])
    rid = repack16_issue(k, 16, 17, 28, 28, 100, 40, 2)
    k.label("L_p2_norp1")
    reset(k); k._nop(4)
    prefetch_lin(k, 12, WOP, 8*20*5120, 512, 0, 104, 38, dst='v200', full=True)
    if 'tact' in G.EXP:
        k(f"""s_mul_i32 s38, s2, 24576
        s_add_u32 s38, s38, {ACT}
        v_lshlrev_b32 v104, 7, v0
        v_mov_b32 v105, 0x7ffffff0
        v_cmp_gt_u32 vcc, 192, v0
        v_cndmask_b32 v104, v105, v104, vcc
        buffer_load_dword v201, v104, s[12:15], s38 offen sc0 sc1""")
        k.pend_vm.pop(('v', 201), None)
    mix(softmax(0), qk(1))
    mix(softmax(1), pv(0))
    k.wait_vm(0)
    k("s_barrier")
    mix(final(0), pv(1))
    for v in final(1): k(v)
    k(f"buffer_store_dwordx4 v[{FO}:{FO+3}], v15, s[12:15], s35 offen sc1")
    k(f"buffer_store_dwordx4 v[{FO+4}:{FO+7}], v16, s[12:15], s35 offen offset:1024 sc1")
    k(f"""s_lshl_b32 s22, s22, 7
    s_lshl_b32 s21, s21, 2
    s_add_u32 s22, s22, s21
    s_add_u32 s22, s22, {F2}
    s_cmp_ge_u32 s24, 4
    s_cbranch_scc1 L_p2_fin
    s_cmp_ge_u32 s2, 240
    s_cbranch_scc1 L_p2_fin
    v_lshrrev_b32 v20, 5, v2
    s_mov_b32 s30, 0xffff0000""")
    repackgu_gs_lds(k, RP + 6*4096, 176, 20)
    repackgu_finish(k, 24, RP, 12, 176, 24, 40, 2, 20, 30, gsp=GSP)
    k.raw("    s_waitcnt vmcnt(6)")
    k("s_branch L_sigb_p2")
    k.label("L_p2_fin")
    reset(k); k._nop(4)
    signal(k, 22, "p2")
    k.rid = rid

def p35(k, wo):
    nm = 'p3' if wo else 'p5'
    NS32 = 20 if wo else 48
    NC = NS32 // 4
    NS = 5 if wo else 7
    R = 3; XD = 5
    ROT = NC if 'norot' not in G.EXP else 0
    XB = OB if wo else ACT
    WP = WOP if wo else WDP
    SS = 20480
    ACC = 32; WF = 52; EX = 132; XA = 164; TMP = 52
    EXX = EX
    k(f"""s_and_b32 s20, s2, 7
    s_lshr_b32 s21, s2, 3
{MAP35}
    v_lshlrev_b32 v5, 4, v2
    v_add_u32 v6, 4096, v5
    s_mul_i32 s37, s20, {ROT}
    s_lshr_b32 s37, s37, 3
    s_cmp_lt_u32 s3, 4
    s_cbranch_scc1 L_{nm}_comp""")
    def nextc():
        k(f"""s_add_u32 s37, s37, 1
        s_cmp_ge_u32 s37, {NC}
        s_cselect_b32 s37, 0, s37""")
    st0 = snap(k)
    k(f"""s_sub_u32 s24, s3, 4
    s_mul_i32 s25, s23, {NS32*5120}
    s_mul_i32 s26, s24, 5120
    s_add_u32 s25, s25, s26
    s_add_u32 s25, s25, {WP}""")
    dma = {}
    def fw(c):
        slot = c % NS
        k(f"s_mul_i32 s29, s37, {SS}")
        k(f"s_add_u32 s29, s29, s25")
        nextc()
        k(f"s_add_u32 m0, s26, {slot*SS}")
        for t in range(4):
            k(f"buffer_load_dwordx4 v5, s[12:15], s29 offen offset:{1024*t} {LDX} lds")
        k(f"s_add_u32 m0, s26, {slot*SS + 4096}")
        dma[c] = k(f"buffer_load_dwordx4 v6, s[12:15], s29 offen {LDX} lds")
    if wo:
        k(f"""s_cmp_ge_u32 s16, 680
        s_cbranch_scc1 L_p3_norp""")
        stn = snap(k)
        repack16_finish(k, 16, 17, 12, 24, 40, 2, None, wd=True)
        k.label("L_p3_norp")
        restore(k, stn); k._nop(4)
    for c in range(NS):
        if not wo and 'thr1' in G.EXP and c >= 1: k.wait_vm_id(dma[c - 1])
        if not wo and 'thr2' in G.EXP and c >= 2: k.wait_vm_id(dma[c - 2])
        fw(c)
    k("s_barrier")
    for cb in range(NC):
        k.wait_vm_id(dma[cb])
        if wo and cb == 1: k.waitall()
        k("s_barrier")
        if cb >= 2 and cb - 2 + NS < NC: fw(cb - 2 + NS)
        if wo and cb == 1:
            k(f"""s_lshl_b32 s36, s2, 2
            s_add_u32 s36, s36, {FRP}""")
            flag_store(k, 36, 4, "rp")
    if wo and 'pfwd3' in G.EXP:
        prefetch_lin(k, 12, WDP, 8*48*5120, 256, 0, 30, 40, tid_off=256, dst='v34', full=True)
    if wo and 'pfgu' in G.EXP:
        prefetch_lin(k, 12, WGUP, 48*40960, 256, 0, 30, 40, tid_off=256, dst='v34')
    k(f"s_branch L_sigb_p3" if wo else "s_endpgm")
    k.label(f"L_{nm}_comp")
    restore(k, st0)
    goff = MOD + (2 if wo else 5) * 2560
    srd(k, 16, 86 if wo else 98, NB['x'])
    k(f"""s_mov_b32 s24, s3
    v_and_b32 v3, 15, v2
    v_lshrrev_b32 v4, 4, v2
    s_lshl_b32 s31, s22, 2
    s_add_u32 s31, s31, s24           ; T16
    s_mul_i32 s27, s31, {NS32*1024}
    s_add_u32 s27, s27, {XB}
    s_mul_i32 s32, s23, 320
    s_add_u32 s32, s32, {goff}
    v_lshlrev_b32 v13, 4, v4
    s_lshr_b32 s33, s31, 1
    s_mul_i32 s33, s33, 40960
    s_mul_i32 s34, s23, 5120
    s_add_u32 s33, s33, s34
    s_add_u32 s33, s33, {X1}
    s_and_b32 s34, s31, 1
    s_lshl_b32 s34, s34, 8
    v_lshl_add_u32 v14, v3, 4, s34
    v_lshrrev_b32 v15, 1, v4
    v_lshl_add_u32 v14, v15, 9, v14
    v_and_b32 v15, 1, v4
    v_lshl_add_u32 v14, v15, 3, v14
    s_mul_i32 s34, s31, {16*1280}
    s_mul_i32 s35, s23, 160
    s_add_u32 s34, s34, s35
    v_mul_u32_u24 v15, 1280, v3
    v_lshl_add_u32 v15, v4, 3, v15
    v_add_u32 v21, 4096, v14
    v_add_u32 v7, {3*SS}, v5
    v_add_u32 v8, {6*SS}, v5""")
    k(f"""s_lshr_b32 s36, s22, 1
    s_lshl_b32 s36, s36, 7
    s_add_u32 s36, s36, {F2 if wo else F4}""")
    for j in range(5):
        k(f"buffer_load_dwordx4 v[{EX+4*j}:{EX+4*j+3}], v13, s[12:15], s32 offen offset:{64*j} {LDX}")
        if wo: k(f"buffer_load_dwordx2 v[{EX+20+2*j}:{EX+21+2*j}], v15, s[16:19], s34 offen offset:{32*j}")
        else:
            k(f"v_mov_b32 v{EX+20+2*j}, v{236+2*j}"); k(f"v_mov_b32 v{EX+21+2*j}, v{237+2*j}")
    wait_s(k, nm, 0, [36], 48, barrier=False)
    if wo: k.waitall()
    k("s_barrier")
    mstamp(k, 4 if wo else 8)
    def fx(c):
        k(f"s_lshl_b32 s30, s37, 12")
        k(f"s_add_u32 s30, s30, s27")
        nextc()
        for i in range(4):
            r = XA + (c % XD) * 16 + i * 4
            k(f"buffer_load_dwordx4 v[{r}:{r+3}], v5, s[12:15], s30 offen offset:{1024*i} {LDX}")
    for c in range(min(XD - 1, NC)): fx(c)
    nxt = min(XD - 1, NC)
    epi = []
    def reads(s):
        c = s // 4; ks = s % 4; slot = c % NS
        base = (5, 7, 8)[slot // 3]; so = (slot % 3) * SS
        return [f"ds_read_b128 v[{WF+(s%4)*20+j*4}:{WF+(s%4)*20+j*4+3}], v{base} offset:{so + ks*5120 + j*1024}" for j in range(5)]
    k("s_barrier")
    for q in range(R):
        for t in reads(q): k(t)
    pend = []
    for s in range(NS32):
        if (s + R) % 4 == 0 and (s + R) // 4 < NC:
            k("s_barrier")
        c = s // 4
        if s % 4 == 0:
            if nxt < NC and nxt <= c + XD - 1: pend = pend + [lambda c_=nxt: fx(c_)]; nxt += 1
            elif epi: pend = pend + epi; epi = []
        fill = reads(s + R) if s + R < NS32 else []
        n = min(len(pend), 4)
        fill = fill + pend[:n]; pend = pend[n:]
        mf = []
        for j in range(5):
            w = f"v[{WF+(s%4)*20+j*4}:{WF+(s%4)*20+j*4+3}]"
            xr = XA + (c % XD) * 16 + (s % 4) * 4
            d0 = ACC + j * 4
            mf.append(f"v_mfma_f32_16x16x32_bf16 v[{d0}:{d0+3}], {w}, v[{xr}:{xr+3}], {'v[%d:%d]' % (d0, d0+3) if s else 0}")
        interleave(k, mf, fill)
    for t in pend + epi:
        if callable(t): t()
        else: k(t)
    k("s_mov_b32 s30, 0xffff0000")
    PK = TMP + 16
    if wo:
        k("v_mov_b32 v26, 0"); k("v_mov_b32 v27, 0")
        k(f"""v_and_b32 v22, 1, v4
        v_lshlrev_b32 v23, 3, v22
        v_sub_u32 v23, v14, v23
        v_lshl_add_u32 v22, v22, 10, v23
        v_add_u32 v23, 4096, v23""")
    else:
        k(f"""v_and_b32 v22, 1, v4
        v_lshlrev_b32 v23, 3, v22
        v_sub_u32 v23, v15, v23
        v_lshl_add_u32 v22, v22, 5, v23""")
    for j in range(5):
        a0 = ACC + 4 * j; gq = EX + 4 * j; xr = EX + 20 + 2 * j; T = TMP + 8 * (j % 2); P_ = PK + 2 * j
        k(f"""v_cvt_pk_bf16_f32 v{T}, v{a0}, v{a0+1}
        v_cvt_pk_bf16_f32 v{T+1}, v{a0+2}, v{a0+3}
        v_lshlrev_b32 v{a0}, 16, v{T}
        v_and_b32 v{a0+1}, s30, v{T}
        v_lshlrev_b32 v{a0+2}, 16, v{T+1}
        v_and_b32 v{a0+3}, s30, v{T+1}
        v_mul_f32 v{a0}, v{a0}, v{gq}
        v_mul_f32 v{a0+1}, v{a0+1}, v{gq+1}
        v_mul_f32 v{a0+2}, v{a0+2}, v{gq+2}
        v_mul_f32 v{a0+3}, v{a0+3}, v{gq+3}
        v_cvt_pk_bf16_f32 v{T}, v{a0}, v{a0+1}
        v_cvt_pk_bf16_f32 v{T+1}, v{a0+2}, v{a0+3}
        v_lshlrev_b32 v{a0}, 16, v{T}
        v_and_b32 v{a0+1}, s30, v{T}
        v_lshlrev_b32 v{a0+2}, 16, v{T+1}
        v_and_b32 v{a0+3}, s30, v{T+1}
        v_lshlrev_b32 v{T+2}, 16, v{xr}
        v_and_b32 v{T+3}, s30, v{xr}
        v_lshlrev_b32 v{T+4}, 16, v{xr+1}
        v_and_b32 v{T+5}, s30, v{xr+1}
        v_add_f32 v{a0}, v{a0}, v{T+2}
        v_add_f32 v{a0+1}, v{a0+1}, v{T+3}
        v_add_f32 v{a0+2}, v{a0+2}, v{T+4}
        v_add_f32 v{a0+3}, v{a0+3}, v{T+5}
        v_cvt_pk_bf16_f32 v{P_}, v{a0}, v{a0+1}
        v_cvt_pk_bf16_f32 v{P_+1}, v{a0+2}, v{a0+3}""")
        if wo:
            k(f"""v_lshlrev_b32 v{a0}, 16, v{P_}
            v_and_b32 v{a0+1}, s30, v{P_}
            v_lshlrev_b32 v{a0+2}, 16, v{P_+1}
            v_and_b32 v{a0+3}, s30, v{P_+1}""")
            for e in range(4):
                k(f"v_add_f32 v26, v26, v{a0+e}")
                k(f"v_fmac_f32 v27, v{a0+e}, v{a0+e}")
            k(f"v_mov_b32 v{236+2*j}, v{P_}"); k(f"v_mov_b32 v{237+2*j}, v{P_+1}")
        if j == 4:
            k(f"v_mov_b32 v{P_+2}, v{P_}"); k(f"v_mov_b32 v{P_+3}, v{P_+1}")
        if j % 2 == 1 or j == 4:
            q = PK + 2 * (j - 1 if j % 2 else j)
            k(f"v_permlane16_swap_b32 v{q}, v{q+2}")
            k(f"v_permlane16_swap_b32 v{q+1}, v{q+3}")
            jj = j - 1 if j % 2 else j
            if wo:
                if j < 4: k(f"buffer_store_dwordx4 v[{q}:{q+3}], v22, s[12:15], s33 offen offset:{1024*jj} sc1")
                else: k(f"buffer_store_dwordx4 v[{q}:{q+3}], v23, s[12:15], s33 offen sc1")
            else:
                k(f"buffer_store_dwordx4 v[{q}:{q+3}], v{22 if j < 4 else 23}, s[16:19], s34 offen offset:{32*jj}")
    if wo:
        for r in (26, 27):
            k(f"""v_mov_b32 v28, v{r}
            v_permlane16_swap_b32 v{r}, v28
            v_add_f32 v{r}, v{r}, v28
            v_mov_b32 v28, v{r}
            v_permlane32_swap_b32 v{r}, v28
            v_add_f32 v{r}, v{r}, v28""")
        k(f"""s_lshl_b32 s38, s31, 10
        s_lshl_b32 s39, s23, 3
        s_add_u32 s38, s38, s39
        s_add_u32 s38, s38, {ST}
        v_lshlrev_b32 v28, 6, v3
        v_mov_b32 v29, 0x7ffffff0
        v_cmp_gt_u32 vcc, 16, v2
        v_cndmask_b32 v28, v29, v28, vcc
        buffer_store_dwordx2 v[26:27], v28, s[12:15], s38 offen sc1""")
    k.label(f"L_{nm}_done")
    reset(k); k._nop(12)
    if wo:
        k(f"v_add_u32 v19, {FRP}, v5")
        wait(k, "crp", 1, 19, 64, barrier=False, slp=4)

        k(f"""s_and_b32 s36, s22, 1
        s_lshl_b32 s36, s36, 3
        s_add_u32 s36, s36, s23
        s_lshl_b32 s36, s36, 2
        s_lshr_b32 s22, s22, 1
        s_lshl_b32 s22, s22, 7
        s_add_u32 s22, s22, s36
        s_add_u32 s22, s22, {F3}""")
        signal(k, 22, nm)

def p4(k):
    NS = 4; SS = 40960
    ACC = 32; XF = 80; WF = 92; GWR = 128; SWR = 176; TMP = 224; STT = 24; R = 2
    k(f"""s_and_b32 s20, s2, 7
    s_lshr_b32 s21, s2, 3
{MAP14}
    s_mov_b32 s24, s3
    v_lshrrev_b32 v20, 5, v2
    v_lshlrev_b32 v5, 4, v2
    s_and_b32 s25, s24, 3
    s_lshr_b32 s26, s24, 2
    s_lshr_b32 s27, s24, 1
    s_lshl_b32 s28, s22, 2
    s_add_u32 s27, s27, s28
    s_mul_i32 s27, s27, 40960
    s_and_b32 s28, s24, 1
    s_lshl_b32 s28, s28, 11
    s_add_u32 s27, s27, s28
    s_add_u32 s27, s27, {X1}
    s_lshl_b32 s28, s24, 11
    s_mul_i32 s29, s24, 3
    s_mul_i32 s30, s23, {6*40960}
    s_add_u32 s30, s30, {WGUP}""")
    for i in range(3):
        k(f"""s_add_u32 s31, s29, {i}
        s_lshr_b32 s32, s31, 2
        s_mul_i32 s32, s32, 40960
        s_and_b32 s31, s31, 3
        s_lshl_b32 s31, s31, 10
        s_add_u32 s32, s32, s31
        s_add_u32 s{40+i}, s32, s30""")
    k(f"""s_lshl_b32 s29, s29, 10
    s_add_u32 s29, s29, 16384""")
    dma = {}
    def fx(c):
        slot = c % NS
        k(f"s_add_u32 m0, s28, {slot*SS}")
        k(f"s_add_u32 s33, s27, {c*4096}")
        k(f"buffer_load_dwordx4 v5, s[12:15], s33 offen {LDX} lds")
        dma[c] = k(f"buffer_load_dwordx4 v5, s[12:15], s33 offen offset:1024 {LDX} lds")
    def fw(c, i):
        slot = c % NS
        k(f"s_add_u32 m0, s29, {slot*SS + i*1024}")
        k(f"s_add_u32 s33, s{40+i}, {c*4096}")
        dma[c] = k(f"buffer_load_dwordx4 v5, s[12:15], s33 offen {LDX} lds")
    def issue(c):
        out = [lambda: fx(c)] + [(lambda i=i: fw(c, i)) for i in range(3)]
        for f in out: f.c = c
        return out
    for c in range(NS):
        for i in range(3): fw(c, i)
    k(f"""v_and_b32 v7, 31, v2
    v_lshlrev_b32 v7, 6, v7
    v_lshl_add_u32 v7, v20, 5, v7
    s_lshl_b32 s34, s22, 2
    s_add_u32 s34, s34, s25
    s_lshl_b32 s35, s25, 12
    v_add_u32 v8, s35, v5
    s_mul_i32 s35, s26, 12288
    s_add_u32 s35, s35, 16384
    v_add_u32 v12, s35, v5
    s_lshl_b32 s36, s22, 7
    s_add_u32 s37, s36, {F3}
    ; gsum partial gather: thread t<384: vec = t/192, col = t%192 -> byte = vec*12288 + nb*768 + col*4
    v_cmp_gt_u32 vcc, 192, v0
    v_mov_b32 v21, {12288 - 768}
    v_cndmask_b32 v21, v21, 0, vcc
    v_lshl_add_u32 v21, v0, 2, v21
    v_mov_b32 v22, 0x7ffffff0
    v_cmp_gt_u32 vcc, 0x180, v0
    v_cndmask_b32 v21, v22, v21, vcc
    s_mul_i32 s36, s23, 768
    s_add_u32 s36, s36, {GSP}""")
    for e in range(10):
        k(f"buffer_load_dword v{GWR+e}, v21, s[12:15], s36 offen {LDX}")
        if e < 9: k("s_add_u32 s36, s36, 24576")
    for g in range(1, 4):
        k(f"v_add_u32 v{8+g}, {g*SS}, v8")
        k(f"v_add_u32 v{12+g}, {g*SS}, v12")
    for i in range(48): k(f"v_mov_b32 v{ACC+i}, 0")
    wait_s(k, "p4", 0, [37], 48)
    mstamp(k, 6)
    fx(0); fx(1)
    k(f"""s_lshl_b32 s35, s34, 11
    s_add_u32 s35, s35, {ST}
    buffer_load_dwordx4 v[{TMP}:{TMP+3}], v7, s[12:15], s35 offen {LDX}
    buffer_load_dwordx4 v[{TMP+4}:{TMP+7}], v7, s[12:15], s35 offen offset:16 {LDX}""")
    fx(2); fx(3)
    def reads(s):
        c = s // 4; ks = s % 4; slot = c % NS
        out = [f"ds_read_b128 v[{XF+(s%3)*4}:{XF+(s%3)*4+3}], v{8+slot} offset:{ks*1024}"]
        for j in range(3):
            d = WF + (s % 3) * 12 + j * 4
            out.append(f"ds_read_b128 v[{d}:{d+3}], v{12+slot} offset:{j*4096 + ks*1024}")
        return out
    def stats():
        b = TMP
        k(f"""v_add_f32 v{b}, v{b}, v{b+2}
        v_add_f32 v{b+1}, v{b+1}, v{b+3}
        v_add_f32 v{b+4}, v{b+4}, v{b+6}
        v_add_f32 v{b+5}, v{b+5}, v{b+7}
        v_add_f32 v{b}, v{b}, v{b+4}
        v_add_f32 v{b+1}, v{b+1}, v{b+5}
        v_mov_b32 v{b+2}, v{b}
        v_mov_b32 v{b+3}, v{b+1}
        v_permlane32_swap_b32 v{b}, v{b+2}
        v_permlane32_swap_b32 v{b+1}, v{b+3}
        v_add_f32 v{b}, v{b}, v{b+2}
        v_add_f32 v{b+1}, v{b+1}, v{b+3}
        v_mul_f32 v{b}, 0x3acccccd, v{b}
        v_mul_f32 v{b+1}, 0x3acccccd, v{b+1}
        v_fma_f32 v{b+1}, -v{b}, v{b}, v{b+1}
        v_max_f32 v{b+1}, 0, v{b+1}""")
        bf16r(k, b, b); bf16r(k, b + 1, b + 1)
        k(f"v_add_f32 v{b+1}, 0x3727c5ac, v{b+1}")
        bf16r(k, b + 1, b + 1)
        k(f"v_sqrt_f32 v{b+1}, v{b+1}")
        bf16r(k, b + 1, b + 1)
        k(f"v_rcp_f32 v{STT}, v{b+1}")
        k(f"v_sub_f32 v{STT+1}, 0, v{b}")
    k.wait_vm_id(dma[0])
    k("s_barrier")
    mstamp(k, 10, 0)
    for q in range(R):
        for t in reads(q): k(t)
    pend = []
    gs_id = None
    for s in range(40):
        if (s + R) % 4 == 0 and (s + R) // 4 <= 10:
            cb = (s + R) // 4
            while cb < 10 and any(getattr(f, 'c', None) == cb for f in pend):
                f = pend.pop(0); f()
            if cb < 10: k.wait_vm_id(dma[cb])
            if cb == 10: k.wait_lg(0)
            k("s_barrier")
            if cb == 4: mstamp(k, 11, 0)
            if cb == 8: mstamp(k, 12, 0)
            if cb >= 2 and cb - 2 + NS <= 9: pend = pend + issue(cb - 2 + NS)
            if cb == 9: pend = pend + [stats]
            if 1 <= cb <= 6 and 'nopfs' not in G.EXP:
                def pfs(i=cb - 1):
                    if i == 0:
                        k(f"""s_lshr_b32 s38, s2, 3
                        s_mul_i32 s38, s38, 61440
                        s_add_u32 s38, s38, {WDP}
                        v_lshlrev_b32 v26, 3, v2
                        v_add_u32 v26, s24, v26
                        v_lshlrev_b32 v26, 7, v26
                        v_mov_b32 v27, 0x7ffffff0
                        v_cmp_gt_u32 vcc, 10, v2
                        v_cndmask_b32 v26, v27, v26, vcc""")
                    else:
                        k("s_add_u32 s38, s38, 10240")
                    k("buffer_load_dword v30, v26, s[12:15], s38 offen")
                    k.pend_vm.pop(('v', 30), None)
                pend = pend + [pfs]
            if cb == 3 and 'pfwd4' in G.EXP: pend = pend + [lambda: prefetch_lin(k, 12, WDP, 8*48*5120, 512, 0, 26, 38, dst='v30', full=True)]
            if cb == 8:
                def fg():
                    for e in range(1, 10): k(f"v_add_f32 v{GWR}, v{GWR}, v{GWR+e}")
                    k(f"""v_cmp_gt_u32 vcc, 192, v0
                    v_mov_b32 v21, {2*SS + 1024 - 768}
                    v_mov_b32 v22, {2*SS}
                    v_cndmask_b32 v21, v21, v22, vcc
                    v_lshl_add_u32 v21, v0, 2, v21
                    ds_write_b32 v21, v{GWR}""")
                pend = pend + [fg] + ([] if 'wdp' not in G.EXP else [lambda: prefetch_lin(k, 12, WDP, 8*48*5120, 512, 0, 26, 36, dst='v30', full=True)])
        fill = reads(s + R) if s + R < 40 else []
        if s >= 38:
            if s == 38:
                k(f"""s_mul_i32 s33, s26, 384
                s_add_u32 s33, s33, {2*SS}
                v_lshlrev_b32 v16, 4, v20
                v_add_u32 v16, s33, v16""")
            for a in (2 * (s - 38), 2 * (s - 38) + 1):
                for j in range(3):
                    fill.append(f"ds_read_b128 v[{GWR+16*j+4*a}:{GWR+16*j+4*a+3}], v16 offset:{j*128 + a*32}")
                    fill.append(f"ds_read_b128 v[{SWR+16*j+4*a}:{SWR+16*j+4*a+3}], v16 offset:{1024 + j*128 + a*32}")
        n = min(len(pend), 2)
        fill = fill + pend[:n]; pend = pend[n:]
        mf = []
        for j in range(3):
            w = f"v[{WF+(s%3)*12+j*4}:{WF+(s%3)*12+j*4+3}]"; x = f"v[{XF+(s%3)*4}:{XF+(s%3)*4+3}]"
            d = f"v[{ACC+16*j}:{ACC+16*j+15}]"
            mf.append(f"v_mfma_f32_32x32x16_bf16 {d}, {w}, {x}, {d}")
        interleave(k, mf, fill)
    mstamp(k, 13, 0)
    k(f"""s_mul_i32 s31, s23, 6
    s_mul_i32 s32, s26, 3
    s_add_u32 s31, s31, s32
    s_mul_i32 s32, s34, {2*48*1024}
    s_add_u32 s29, s32, {ACT}
    v_bfe_u32 v3, v2, 4, 1
    v_mul_u32_u24 v4, {48*1024}, v3
    v_and_b32 v3, 15, v2
    v_lshl_add_u32 v4, v3, 4, v4
    v_lshl_add_u32 v4, v20, 8, v4
    s_mov_b32 s35, 0xbfb8aa3b""")
    for j in range(3):
        k(f"""s_add_u32 s32, s31, {j}
        s_lshl_b32 s33, s32, 9
        s_add_u32 s33, s33, s29""")
        r = ACC + 16 * j; gw = GWR + 16 * j; sw = SWR + 16 * j
        T = XF + 8 * (j % 2); O = XF + 16 + 4 * j
        for e in range(16): k(f"v_fmac_f32 v{r+e}, v{gw+e}, v{STT+1}")
        for e in range(16): k(f"v_fmac_f32 v{sw+e}, v{r+e}, v{STT}")
        for e in range(8): k(f"v_mul_f32 v{T+e}, s35, v{sw+e}")
        for e in range(8): k(f"v_exp_f32 v{T+e}, v{T+e}")
        for e in range(8): k(f"v_add_f32 v{T+e}, 1.0, v{T+e}")
        for e in range(8): k(f"v_rcp_f32 v{T+e}, v{T+e}")
        for e in range(8): k(f"v_mul_f32 v{sw+e}, v{sw+e}, v{sw+8+e}")
        for e in range(8): k(f"v_mul_f32 v{sw+e}, v{sw+e}, v{T+e}")
        for e in range(4): k(f"v_cvt_pk_bf16_f32 v{O+e}, v{sw+2*e}, v{sw+2*e+1}")
        k(f"buffer_store_dwordx4 v[{O}:{O+3}], v4, s[12:15], s33 offen sc1")
    k(f"""s_lshl_b32 s22, s22, 7
    s_lshl_b32 s23, s23, 2
    s_add_u32 s22, s22, s23
    s_add_u32 s22, s22, {F4}""")
    mstamp(k, 14, 0); mstamp(k, 15, 7)
    signal(k, 22, "p4")

def gen_mega():
    k = Kern("adaLN_cond__sliding_block__swiglu_ffn__prompt_kernel")
    k(f"""s_cmp_ge_u32 s2, 256
    s_cbranch_scc1 L_mega_end
    s_load_dwordx2 s[84:85], s[0:1], {ARG['ws']}
    s_load_dwordx2 s[86:87], s[0:1], {ARG['x']}
    s_load_dwordx4 s[88:91], s[0:1], {ARG['wqkv']}
    s_load_dwordx4 s[92:95], s[0:1], {ARG['wg']}
    s_load_dwordx2 s[96:97], s[0:1], {ARG['wd']}
    s_load_dwordx2 s[98:99], s[0:1], {ARG['out']}
    s_load_dwordx2 s[80:81], s[0:1], {ARG['dbg']}
    s_load_dwordx4 s[76:79], s[0:1], {ARG['c']}
    s_memrealtime s[4:5]
    v_lshrrev_b32 v1, 6, v0
    v_and_b32 v2, 63, v0
    v_readfirstlane_b32 s3, v1""")
    k.waitall()
    srd(k, 12, 84, NB['ws'])
    k("""s_add_u32 s6, s2, s3
    s_cmp_lg_u32 s6, 0
    s_cbranch_scc1 L_notag
    s_or_b32 s4, s4, 1
    v_mov_b32 v250, 0
    v_mov_b32 v251, s4
    s_mov_b64 exec, 1
    global_store_dword v250, v251, s[80:81] sc1
    s_mov_b64 exec, -1""")
    k.label("L_notag")
    reset(k); k._nop(2)
    if 'nopfcode' not in G.EXP:
        k.raw("""    s_getpc_b64 s[4:5]
L_pcref:
    s_lshr_b32 s6, s2, 3
    s_cmp_lg_u32 s6, 31
    s_cbranch_scc1 L_nopfc
    v_lshlrev_b32 v250, 7, v0
    v_cmp_gt_u32 vcc, L_mega_end-L_pcref, v250
    s_and_saveexec_b64 s[6:7], vcc
    s_cbranch_execz L_nopfc2
    global_load_dword v249, v250, s[4:5]
L_nopfc2:
    s_mov_b64 exec, -1
L_nopfc:""")
    mstamp(k, 0)
    p1(k); mstamp(k, 1)
    p2(k); mstamp(k, 3)
    p35(k, True); mstamp(k, 5)
    p4(k); mstamp(k, 7)
    p35(k, False)
    if MPROF or DPROF: k.waitall()
    mstamp(k, 9)
    k.label("L_mega_end")
    k("s_endpgm")
    return k

def all_kernels():
    return [(gen_mega(), 256, 512, 163840)]

if __name__ == "__main__":
    if len(sys.argv) > 1 and sys.argv[1] == "prof": MPROF = True
    if len(sys.argv) > 1 and sys.argv[1] == "dprof": DPROF = True
    for e in sys.argv[2:]:
        if e.startswith("slp"): SLP = int(e[3:])
        G.EXP.add(e)
    open("mega" + "_".join([""] + sys.argv[2:]) + ".s", "w").write(build_file(all_kernels()))
```

```python
import sys
sys.path.insert(0, "work")
import gen as G
from gen import *

CNT = 0x1BD8000
C1, C2, C3, C4, CWO, CRP = 0, 16, 32, 48, 64, 80
RP = 131072
MPROF = False
LDX = "sc1"

def reset(k):
    k.vmq = []; k.lgq = []; k.pend_vm = {}; k.pend_lg = {}

DPROF = False
def mstamp(k, slot, wave=0):
    if DPROF and slot < 15:
        lab = f"L_ds{slot}_{len(k.lines)}"
        k.raw(f"""    s_cmp_lg_u32 s3, {wave}
    s_cbranch_scc1 {lab}
    s_cmp_lg_u32 s2, 37
    s_cbranch_scc1 {lab}
    s_memrealtime s[100:101]
    s_waitcnt lgkmcnt(0)
    v_mov_b32 v255, s100
    s_load_dwordx2 s[100:101], s[0:1], {ARG['dbg']}
    s_waitcnt lgkmcnt(0)
    v_mov_b32 v254, {4 + 4*slot}
    s_mov_b64 exec, 1
    global_store_dword v254, v255, s[100:101]
    s_mov_b64 exec, -1
{lab}:""")
        k.maxv = max(k.maxv, 255); k.maxs = max(k.maxs, 101)
        return
    if not MPROF: return
    lab = f"L_ms{slot}_{len(k.lines)}"
    k.raw(f"""    s_cmp_lg_u32 s3, {wave}
    s_cbranch_scc1 {lab}
    s_memrealtime s[100:101]
    s_waitcnt lgkmcnt(0)
    s_lshl_b32 s101, s2, 2
    s_add_u32 s101, s101, {G.PROFOFF + slot * 1024}
    v_mov_b32 v255, s100
    v_mov_b32 v254, s101
    s_memtime s[100:101]
    s_waitcnt lgkmcnt(0)
    v_mov_b32 v253, s100
    s_mov_b64 exec, 1
    global_store_dword v254, v255, s[84:85]
    v_add_u32 v254, 16384, v254
    global_store_dword v254, v253, s[84:85]
    s_mov_b64 exec, -1
{lab}:""")
    k.maxv = max(k.maxv, 255); k.maxs = max(k.maxs, 101)
    k.vm_extra = True

FLG = 0x1C40000
NREP = 16; RSTR = 16384
FX, FM, F1, FW, F2, F3, F4, FRP = 0, 2048, 4096, 6144, 8192, 10240, 12288, 14336
MODP = 0x4000
MODP = 0x1BE0000
GSP = 0x1C00000
TAG = 83

def flag_store(k, soff, wave, name):
    k(f"""s_cmp_lg_u32 s3, {wave}
    s_cbranch_scc1 L_sig_{name}
    s_add_u32 s{soff}, s{soff}, {FLG}
    v_lshlrev_b32 v250, 14, v2
    v_add_u32 v250, s{soff}, v250
    v_mov_b32 v251, s{TAG}
    s_mov_b64 exec, 0xffff""")
    k.raw("    global_store_dword v250, v251, s[84:85] sc1")
    k("s_mov_b64 exec, -1")
    k.label(f"L_sig_{name}")
    k._nop(2)

def signal(k, soff, name, wave=0):
    k.waitall()
    k.label(f"L_sigb_{name}")
    k("s_barrier")
    reset(k)
    flag_store(k, soff, wave, name)

SLP = 2
def wait(k, name, poller, voff, nl, barrier=True, slp=None):
    k(f"""s_cmp_lg_u32 s3, {poller}
    s_cbranch_scc1 L_wt_{name}
    s_and_b32 s82, s2, 15
    s_lshl_b32 s82, s82, 14
    s_add_u32 s82, s82, {FLG}
    v_add_u32 v247, s82, v{voff}
    s_mov_b32 s82, 0x200000""")
    if nl < 64:
        if nl <= 32: k(f"s_mov_b64 exec, {(1 << nl) - 1}")
        else: k(f"s_mov_b32 exec_hi, {(1 << (nl - 32)) - 1}")
    k.label(f"L_wl_{name}")
    k.raw(f"""    global_load_dwordx4 v[248:251], v247, s[84:85] sc1
    s_waitcnt vmcnt(0)
    v_xor_b32 v248, s{TAG}, v248
    v_xor_b32 v249, s{TAG}, v249
    v_xor_b32 v250, s{TAG}, v250
    v_xor_b32 v251, s{TAG}, v251
    v_or3_b32 v248, v248, v249, v250
    v_or_b32 v248, v248, v251
    v_cmp_ne_u32 vcc, 0, v248
    s_nop 4
    s_cbranch_vccz L_wd_{name}
    s_sleep {slp or SLP}
    s_sub_u32 s82, s82, 1
    s_cmp_lg_u32 s82, 0
    s_cbranch_scc1 L_wl_{name}
L_wd_{name}:
    s_mov_b64 exec, -1""")
    k.label(f"L_wt_{name}")
    k._nop(2)
    if barrier: k("s_barrier")

def wait_s(k, name, poller, soffs, sb, barrier=True):
    n = len(soffs)
    txt = f"""    s_cmp_lg_u32 s3, {poller}
    s_cbranch_scc1 L_wt_{name}
    s_and_b32 s82, s2, 15
    s_lshl_b32 s82, s82, 14
    s_add_u32 s82, s82, {FLG}
    s_add_u32 s4, s84, s82
    s_addc_u32 s5, s85, 0
    s_mov_b32 s6, s{TAG}
    s_mov_b32 s7, s{TAG}
    s_mov_b32 s82, 0x200000
L_wl_{name}:
"""
    for i, so in enumerate(soffs):
        txt += f"    s_load_dwordx16 s[{sb+16*i}:{sb+16*i+15}], s[4:5], s{so} glc\n"
    txt += "    s_waitcnt lgkmcnt(0)\n"
    for j in range(8 * n):
        txt += f"    s_xor_b64 s[{sb+2*j}:{sb+2*j+1}], s[{sb+2*j}:{sb+2*j+1}], s[6:7]\n"
    m = 8 * n
    for j in range(1, m):
        txt += f"    s_or_b64 s[{sb}:{sb+1}], s[{sb}:{sb+1}], s[{sb+2*j}:{sb+2*j+1}]\n"
    txt += f"""    s_cbranch_scc0 L_wt_{name}
    s_sleep 1
    s_sub_u32 s82, s82, 1
    s_cmp_lg_u32 s82, 0
    s_cbranch_scc1 L_wl_{name}
L_wt_{name}:"""
    k.raw(txt)
    k.maxs = max(k.maxs, sb + 16 * n)
    k._nop(2)
    if barrier: k("s_barrier")

def get_tag(k, name):
    k.raw(f"""    s_mov_b32 s82, 0x200000
    v_mov_b32 v250, 0
L_tg_{name}:
    s_waitcnt vmcnt(0)
    v_readfirstlane_b32 s{TAG}, v252
    s_nop 3
    s_cmp_lg_u32 s{TAG}, 0
    s_cbranch_scc1 L_tgd_{name}
    global_load_dword v252, v250, s[80:81] sc1
    s_sub_u32 s82, s82, 1
    s_cmp_lg_u32 s82, 0
    s_cbranch_scc1 L_tg_{name}
L_tgd_{name}:""")
    reset(k)

def gemv_unit(k, name, first, VB=0):
    k(f"""s_lshr_b32 s36, s2, 2             ; cgp
    s_and_b32 s37, s2, 3
    s_lshl_b32 s37, s37, 1
    s_and_b32 s38, s3, 1
    s_add_u32 s37, s37, s38           ; ke
    s_mul_i32 s38, s37, {80*7680}
    s_lshl_b32 s39, s36, 7
    s_add_u32 s38, s38, s39
    s_mul_i32 s39, s37, 160
    v_lshrrev_b32 v1, 3, v2
    v_and_b32 v3, 7, v2
    v_mul_u32_u24 v4, 7680, v1
    v_lshl_add_u32 v4, v3, 4, v4
    v_lshlrev_b32 v5, 1, v1""")
    srd(k, 16, 78, NB['wmod']); srd(k, 44, 76, NB['c'])
    for i in range(10):
        k(f"buffer_load_dwordx4 v[{8+4*i}:{11+4*i}], v4, s[16:19], s38 offen")
        if i < 9: k(f"s_add_u32 s38, s38, {8*7680}")
    for i in range(10):
        k(f"buffer_load_ushort v{50+i}, v5, s[44:47], s39 offen offset:{16*i}")
    k.raw("    v_mov_b32 v250, 0\n    global_load_dword v252, v250, s[80:81] sc1")
    get_tag(k, name)
    for i in range(10):
        c = 50 + i
        k(f"""v_lshlrev_b32 v{c}, 16, v{c}
        v_mul_f32 v{c+10}, 0xbfb8aa3b, v{c}""")
    for i in range(10): k(f"v_exp_f32 v{60+i}, v{60+i}")
    for i in range(10): k(f"v_add_f32 v{60+i}, 1.0, v{60+i}")
    for i in range(10): k(f"v_rcp_f32 v{60+i}, v{60+i}")
    for i in range(10): k(f"v_mul_f32 v{50+i}, v{50+i}, v{60+i}")
    for i in range(10): bf16r(k, 50 + i, 50 + i)
    for j in range(8): k(f"v_mov_b32 v{72+j}, 0")
    for i in range(10):
        for d in range(4):
            k(f"v_lshlrev_b32 v{80+2*d}, 16, v{8+4*i+d}")
            k(f"v_and_b32 v{81+2*d}, 0xffff0000, v{8+4*i+d}")
        for j in range(8): k(f"v_fmac_f32 v{72+j}, v{80+j}, v{50+i}")
    for j in range(8): k(f"v_add_f32_dpp v{72+j}, v{72+j}, v{72+j} row_ror:8 row_mask:0xf bank_mask:0xf")
    for sw in ("16", "32"):
        for j in range(8): k(f"v_mov_b32 v{80+j}, v{72+j}")
        for j in range(8): k(f"v_permlane{sw}_swap_b32 v{72+j}, v{80+j}")
        for j in range(8): k(f"v_add_f32 v{72+j}, v{72+j}, v{80+j}")
    k(f"""s_mul_i32 s38, s37, 15360
    s_lshl_b32 s39, s36, 8
    s_add_u32 s38, s38, s39
    s_add_u32 s38, s38, {MODP}
    v_lshlrev_b32 v4, 5, v2
    s_mov_b64 exec, 0xff
    buffer_store_dwordx4 v[72:75], v4, s[12:15], s38 offen sc1
    buffer_store_dwordx4 v[76:79], v4, s[12:15], s38 offen offset:16 sc1
    s_mov_b64 exec, -1
    s_lshl_b32 s36, s36, 3
    s_add_u32 s36, s36, s37
    s_lshl_b32 s36, s36, 2
    s_add_u32 s36, s36, {FLG + FM}""")

def p0(k):
    k("""s_cmp_ge_u32 s3, 6
    s_cbranch_scc1 L_p0_gemv""")
    st = snap(k)
    srd(k, 16, 86, NB['x'])
    k("""s_lshl_b32 s36, s2, 3
    s_and_b32 s37, s3, 1
    s_lshl_b32 s37, s37, 2
    s_add_u32 s36, s36, s37
    v_lshrrev_b32 v1, 4, v2
    v_add_u32 v1, s36, v1            ; row
    v_and_b32 v3, 15, v2
    v_mul_u32_u24 v4, 1280, v1
    v_lshl_add_u32 v4, v3, 4, v4""")
    for i in range(5):
        k(f"buffer_load_dwordx4 v[{8+4*i}:{11+4*i}], v4, s[16:19], 0 offen offset:{256*i}")
    k.raw("    v_mov_b32 v250, 0\n    global_load_dword v252, v250, s[80:81] sc1")
    get_tag(k, "ln")
    for i in range(20):
        k(f"v_lshlrev_b32 v{32+2*i}, 16, v{8+i}")
        k(f"v_and_b32 v{33+2*i}, 0xffff0000, v{8+i}")
    k("v_add_f32 v4, v32, v33"); k("v_add_f32 v5, v34, v35")
    for i in range(4, 40, 2):
        k(f"v_add_f32 v4, v4, v{32+i}"); k(f"v_add_f32 v5, v5, v{33+i}")
    k("v_add_f32 v4, v4, v5")
    row16_sum(k, 4)
    k("v_mul_f32 v4, 0x3acccccd, v4")
    k("v_mov_b32 v5, 0"); k("v_mov_b32 v28, 0")
    for i in range(0, 40, 2):
        k(f"v_sub_f32 v6, v{32+i}, v4"); k(f"v_sub_f32 v7, v{33+i}, v4")
        k(f"v_fmac_f32 v5, v6, v6"); k(f"v_fmac_f32 v28, v7, v7")
    k("v_add_f32 v5, v5, v28")
    row16_sum(k, 5)
    k("v_mul_f32 v5, 0x3acccccd, v5")
    bf16r(k, 4, 4); bf16r(k, 5, 5)
    k("v_add_f32 v5, 0x3727c5ac, v5")
    bf16r(k, 5, 5)
    k("v_sqrt_f32 v5, v5")
    bf16r(k, 5, 5)
    k("v_rcp_f32 v5, v5")
    for i in range(20):
        k(f"v_sub_f32 v{32+2*i}, v{32+2*i}, v4")
        k(f"v_sub_f32 v{33+2*i}, v{33+2*i}, v4")
    for i in range(20): k(f"v_cvt_pk_bf16_f32 v{8+i}, v{32+2*i}, v{33+2*i}")
    for i in range(20):
        k(f"v_lshlrev_b32 v{32+2*i}, 16, v{8+i}")
        k(f"v_and_b32 v{33+2*i}, 0xffff0000, v{8+i}")
    for i in range(40): k(f"v_mul_f32 v{32+i}, v{32+i}, v5")
    for i in range(20): k(f"v_cvt_pk_bf16_f32 v{8+i}, v{32+2*i}, v{33+2*i}")
    for i in range(20):
        k(f"v_lshlrev_b32 v{32+2*i}, 16, v{8+i}")
        k(f"v_and_b32 v{33+2*i}, 0xffff0000, v{8+i}")
    for i in range(20): k(f"v_cvt_pkrtz_f16_f32 v{8+i}, v{32+2*i}, v{33+2*i}")
    k(f"""v_lshrrev_b32 v6, 5, v1
    v_mul_u32_u24 v6, 40960, v6
    v_lshrrev_b32 v7, 1, v3
    v_lshl_add_u32 v6, v7, 10, v6
    v_and_b32 v7, 1, v3
    v_lshl_add_u32 v6, v7, 9, v6
    v_and_b32 v7, 31, v1
    v_lshl_add_u32 v6, v7, 4, v6""")
    for i in range(5):
        k(f"s_mov_b32 s36, {XN + i*8192}")
        k(f"buffer_store_dwordx4 v[{8+4*i}:{11+4*i}], v6, s[12:15], s36 offen sc1")
    k(f"""s_lshl_b32 s36, s2, 1
    s_and_b32 s37, s3, 1
    s_add_u32 s36, s36, s37
    s_lshl_b32 s36, s36, 2
    s_add_u32 s36, s36, {FLG + FX}
    s_branch L_p0_flag""")
    k.label("L_p0_gemv")
    restore(k, st)
    k(f"""s_cmp_ge_u32 s2, 240
    s_cbranch_scc1 L_p0_skip""")
    if 'nodly' not in G.EXP:
        k("""s_cmp_lt_u32 s2, 80
        s_cbranch_scc1 L_p0_nd""")
        k.raw("    v_mov_b32 v250, 0\n    global_load_dword v252, v250, s[80:81] sc1")
        get_tag(k, "dly")
        if 'late' in G.EXP: k("s_barrier")
        if 'dly2' in G.EXP:
            k.raw("    global_load_dword v252, v250, s[80:81] sc1\n    s_waitcnt vmcnt(0)")
        k.label("L_p0_nd")
    gemv_unit(k, "gv", True)
    k.label("L_p0_flag")
    k.waitall()
    k(f"""v_lshlrev_b32 v250, 14, v2
    v_add_u32 v250, s36, v250
    v_mov_b32 v251, s{TAG}
    s_mov_b64 exec, 0xffff
    global_store_dword v250, v251, s[84:85] sc1
    s_mov_b64 exec, -1
    s_branch L_p0_done""")
    k.label("L_p0_skip")
    k.raw("    v_mov_b32 v250, 0\n    global_load_dword v252, v250, s[80:81] sc1")
    get_tag(k, "sk")
    k.label("L_p0_done")
    reset(k); k._nop(4)
    if 'late' in G.EXP:
        k("""s_cmp_lt_u32 s3, 6
        s_cbranch_scc1 L_p0_pb
        s_cmp_lt_u32 s2, 80
        s_cbranch_scc1 L_p0_pb
        s_cmp_lt_u32 s2, 240
        s_cbranch_scc1 L_p0_nopb""")
        k.label("L_p0_pb")
    k("s_barrier")
    if 'late' in G.EXP: k.label("L_p0_nopb")

def p1(k):
    NSLOT = 6; SS = 16384; NT = 2; GRP = 4
    XHB = 6 * SS; GSB_L = XHB + 49152
    k(f"""s_and_b32 s20, s2, 7
    s_lshr_b32 s21, s2, 3
{MAP14}
    s_mov_b32 s24, s3
    s_mov_b32 s30, 0xffff0000
    v_lshrrev_b32 v20, 5, v2          ; h
    v_lshlrev_b32 v5, 4, v2
    s_cmp_ge_u32 s24, 4
    s_cbranch_scc1 L_p1_prod
    s_cmp_ge_u32 s23, 15
    s_cbranch_scc1 L_p1_idle""")
    st0 = snap(k)
    ACC = 32; XF = 128; WF = 144; TMP = 168
    srd(k, 8, 88, NB['wqkv'])
    k(f"""v_lshrrev_b32 v13, 4, v2
    v_and_b32 v14, 15, v2
    v_lshlrev_b32 v15, 2, v13
    v_xor_b32 v14, v14, v15
    v_mul_u32_u24 v13, 3840, v13
    v_lshl_add_u32 v13, v14, 4, v13
    s_mul_i32 s40, s24, {16*3840}
    s_lshl_b32 s41, s23, 8
    s_add_u32 s40, s40, s41
    s_lshl_b32 s41, s24, 12""")
    dma_ids = {}
    def wdma(c):
        slot = c % NSLOT
        out = []
        for i in range(4):
            def f(i=i):
                k(f"s_add_u32 m0, s41, {slot*SS + i*1024}")
                k(f"s_add_u32 s42, s40, {(64*c + 4*i)*3840}")
                dma_ids[c] = k(f"buffer_load_dwordx4 v13, s[8:11], s42 offen lds")
            out.append(f)
        return out
    LAW = int([e for e in G.EXP if e.startswith('law')][0][3:]) if any(e.startswith('law') for e in G.EXP) else 3
    k.raw("    v_mov_b32 v250, 0\n    global_load_dword v252, v250, s[80:81] sc1")
    get_tag(k, "cons")
    k("""v_mov_b32 v250, 163824
    v_mov_b32 v251, 0
    ds_write_b32 v250, v251""")
    k.wait_lg(0)
    k("s_barrier")
    NPRE = LAW
    for c in range(NPRE):
        for f in wdma(c): f()
    if False:
        k.raw(f"""    v_mov_b32 v250, 163824
L_p1_cspin:
    ds_read_b32 v251, v250
    s_waitcnt lgkmcnt(0)
    v_readfirstlane_b32 s82, v251
    s_nop 3
    s_cmp_lg_u32 s82, 0
    s_cbranch_scc1 L_p1_cgo
    s_sleep 2
    s_branch L_p1_cspin
L_p1_cgo:""")
    for c in range(NPRE, LAW):
        for f in wdma(c): f()
    k(f"""s_lshr_b32 s25, s24, 1            ; tm
    s_and_b32 s26, s24, 1             ; tn
    v_bfe_u32 v21, v2, 4, 1
    v_bfe_u32 v22, v2, 2, 2
    v_and_b32 v23, 3, v2
    v_lshlrev_b32 v24, 11, v20
    v_lshl_add_u32 v24, v22, 8, v24
    v_lshl_add_u32 v24, v21, 5, v24
    v_lshl_add_u32 v24, v23, 3, v24
    s_lshl_b32 s27, s26, 1""")
    for j in range(2):
        k(f"s_add_u32 s28, s27, {j}")
        k(f"v_xor_b32 v25, s28, v22")
        k(f"v_lshl_add_u32 v{8+j*2}, v25, 6, v24")
        k(f"v_add_u32 v{9+j*2}, {GRP*SS}, v{8+j*2}")
    k(f"""s_lshl_b32 s27, s25, 11
    s_add_u32 s27, s27, {XHB}
    v_add_u32 v12, s27, v5""")
    if 'nopf1' not in G.EXP:
        prefetch(k, 8, 256, 0, 3840, 640, 16, 2048, 100, 44)
    if 'touch' in G.EXP:
        k(f"""s_mul_i32 s46, s22, 15
        s_add_u32 s46, s46, s23
        s_lshl_b32 s46, s46, 13
        v_lshlrev_b32 v104, 7, v2
        s_cmp_eq_u32 s24, 0
        s_cselect_b32 s48, s92, s94
        s_cselect_b32 s49, s93, s95
        s_cmp_ge_u32 s24, 2
        s_cselect_b32 s48, s96, s48
        s_cselect_b32 s49, s97, s49
        s_and_b32 s49, s49, 0xffff
        s_mov_b32 s50, {NB['wg']}
        s_mov_b32 s51, 0x00020000
        buffer_load_dword v105, v104, s[48:51], s46 offen""")
    if 'ft' in G.EXP:
        k(f"""s_and_b32 s44, s2, 15
        s_lshl_b32 s44, s44, 14
        s_add_u32 s44, s44, {FLG}
        v_lshlrev_b32 v100, 7, v0
        v_mov_b32 v101, 0x7ffffff0
        v_cmp_gt_u32 vcc, 128, v0
        v_cndmask_b32 v100, v101, v100, vcc
        buffer_load_dword v102, v100, s[12:15], s44 offen""")
    for i in range(64): k(f"v_mov_b32 v{ACC+i}, 0")
    def reads(s):
        c = s // 4; ks = s % 4; slot = c % NSLOT
        grp = slot // GRP; so = (slot % GRP) * SS
        out = []
        for i in range(2):
            d = XF + (s % 2) * 8 + i * 4
            out.append(f"ds_read_b128 v[{d}:{d+3}], v12 offset:{(c%3)*16384 + ks*4096 + i*1024}")
        for j in range(NT):
            for a in range(2):
                d = WF + (s % 2) * 12 + j * 4 + a * 2
                out.append(f"ds_read_b64_tr_b16 v[{d}:{d+1}], v{8+j*2+grp} offset:{so + ks*4096 + a*1024}")
        return [out[0]] + out[2:4] + [out[1]] + out[4:]
    k.wait_vm_id(dma_ids[0])
    k("s_barrier")
    for t in reads(0): k(t)
    k("s_cmp_ge_u32 s23, 10")
    k("s_cbranch_scc1 L_p1_v")
    st1 = snap(k); dma1 = dict(dma_ids)
    def mainloop(swap):
        pend = wdma(LAW)
        for s in range(40):
            c = s // 4
            if s % 4 == 3 and c < 9:
                k.wait_vm_id(dma_ids[c + 1]); k.wait_lg(0)
                k("s_barrier")
                if c + 1 + LAW <= 9: pend = wdma(c + 1 + LAW)
            fill = reads(s + 1) if s + 1 < 40 else []
            nd = min(len(pend), 2)
            fill = fill + pend[:nd]; pend = pend[nd:]
            fi = 0
            for j in range(NT):
                for i in range(2):
                    w = f"v[{WF+(s%2)*12+j*4}:{WF+(s%2)*12+j*4+3}]"; x = f"v[{XF+(s%2)*8+i*4}:{XF+(s%2)*8+i*4+3}]"
                    d0 = ACC + 16 * (i * NT + j); d = f"v[{d0}:{d0+15}]"
                    k(f"v_mfma_f32_32x32x16_bf16 {d}, {x if swap else w}, {w if swap else x}, {d}")
                    for _ in range(2):
                        if fi < len(fill):
                            f = fill[fi]; fi += 1
                            if callable(f): f()
                            else: k(f)
    mainloop(False)
    k(f"""s_cmp_ge_u32 s23, 5
    s_cselect_b32 s29, {KB-QB}, 0
    s_cselect_b32 s31, 5, 0
    s_add_u32 s29, s29, {QB}
    s_sub_u32 s31, s23, s31
    s_lshl_b32 s31, s31, 12
    s_lshl_b32 s32, s26, 11
    s_add_u32 s29, s29, s31
    s_add_u32 s29, s29, s32
    s_lshl_b32 s32, s22, 3
    s_lshl_b32 s33, s25, 2
    s_add_u32 s32, s32, s33
    s_mul_i32 s32, s32, 20480
    s_add_u32 s29, s29, s32
    s_add_u32 s31, s29, 40960
    v_bfe_u32 v3, v2, 4, 1
    v_mul_u32_u24 v4, 20480, v3
    v_and_b32 v3, 15, v2
    v_lshl_add_u32 v4, v3, 4, v4
    v_lshl_add_u32 v4, v20, 8, v4""")
    n = 0
    for j in range(2):
        for i in range(2):
            for ap in range(2):
                r = ACC + 16 * (i * NT + j) + 8 * ap
                t = TMP + 4 * (n % 4); n += 1
                for e in range(4): k(f"v_cvt_pk_bf16_f32 v{t+e}, v{r+2*e}, v{r+2*e+1}")
                k(f"v_permlane32_swap_b32 v{t}, v{t+2}")
                k(f"v_permlane32_swap_b32 v{t+1}, v{t+3}")
                k(f"buffer_store_dwordx4 v[{t}:{t+3}], v4, s[12:15], s{29 if i == 0 else 31} offen offset:{j*1024 + ap*512} sc1")
    k("s_branch L_p1_done")
    k.label("L_p1_v")
    restore(k, st1); dma_ids.clear(); dma_ids.update(dma1)
    mainloop(True)
    k(f"""s_sub_u32 s31, s23, 10
    s_lshl_b32 s31, s31, 7
    s_lshl_b32 s32, s26, 6
    s_add_u32 s31, s31, s32
    s_lshl_b32 s32, s22, 2
    s_lshl_b32 s33, s25, 1
    s_add_u32 s32, s32, s33
    s_mul_i32 s32, s32, 1280
    s_add_u32 s29, s32, {VB}
    v_and_b32 v3, 31, v2
    v_add_u32 v5, s31, v3
    s_mov_b32 s33, 81920""")
    n = 0
    for j in range(2):
        k(f"""v_add_u32 v6, {32*j}, v5
        v_mul_u32_u24 v7, 0xcccd, v6
        v_lshrrev_b32 v7, 20, v7
        v_mul_u32_u24 v8, 20, v7
        v_sub_u32 v8, v6, v8
        v_mul_lo_u32 v7, v7, s33
        v_lshl_add_u32 v7, v8, 4, v7
        v_cmp_gt_u32 vcc, 16, v8
        v_lshlrev_b32 v9, 8, v20
        v_lshlrev_b32 v10, 6, v20
        v_add_u32 v10, 768, v10
        v_cndmask_b32 v9, v10, v9, vcc
        v_add_u32 v7, v7, v9
        v_mov_b32 v9, 128
        v_mov_b32 v10, 512
        v_cndmask_b32 v9, v9, v10, vcc
        v_add_u32 v9, v7, v9""")
        for i in range(2):
            for a1 in range(2):
                t = TMP + 4 * (n % 4); n += 1
                r0 = ACC + 16 * (i * NT + j) + 4 * a1; r1 = r0 + 8
                k(f"v_cvt_pk_bf16_f32 v{t}, v{r0}, v{r0+1}")
                k(f"v_cvt_pk_bf16_f32 v{t+1}, v{r0+2}, v{r0+3}")
                k(f"v_cvt_pk_bf16_f32 v{t+2}, v{r1}, v{r1+1}")
                k(f"v_cvt_pk_bf16_f32 v{t+3}, v{r1+2}, v{r1+3}")
                k(f"buffer_store_dwordx4 v[{t}:{t+3}], v{7 if a1 == 0 else 9}, s[12:15], s29 offen offset:{1280*i} sc1")
    k("s_branch L_p1_done")
    k.label("L_p1_prod")
    restore(k, st0)
    GSR = 32; TMP = 64; OUT = 80; XR = 104; D = 4; LAX = 2
    p0(k)
    k(f"""s_cmp_ge_u32 s23, 15
    s_cbranch_scc1 L_sigb_p1
    s_sub_u32 s24, s24, 4
    v_lshrrev_b32 v20, 5, v2
    v_lshlrev_b32 v5, 4, v2
    s_lshl_b32 s25, s22, 7
    s_add_u32 s25, s25, {FX - 40*16}
    v_add_u32 v6, s25, v5
    v_add_u32 v7, {FM}, v5
    v_cmp_gt_u32 vcc, 40, v2
    v_cndmask_b32 v6, v6, v7, vcc""")
    wait(k, "p1", 4, 6, 48, barrier=False)
    k.raw(f"""    v_mov_b32 v250, 163824
    s_cmp_lg_u32 s3, 4
    s_cbranch_scc1 L_p1_lspin
    v_mov_b32 v251, 1
    ds_write_b32 v250, v251
    s_branch L_p1_lgo
L_p1_lspin:
    ds_read_b32 v251, v250
    s_waitcnt lgkmcnt(0)
    v_readfirstlane_b32 s82, v251
    s_nop 3
    s_cmp_lg_u32 s82, 0
    s_cbranch_scc1 L_p1_lgo
    s_sleep 1
    s_branch L_p1_lspin
L_p1_lgo:
    s_waitcnt lgkmcnt(0)""")
    k(f"""v_lshrrev_b32 v3, 2, v2
    v_and_b32 v4, 3, v2
    v_lshlrev_b32 v6, 8, v3
    v_lshl_add_u32 v6, v4, 4, v6
    v_cmp_gt_u32 vcc, 40, v2
    v_mov_b32 v7, 0x7ffffff0
    v_cndmask_b32 v6, v7, v6, vcc
    s_lshl_b32 s25, s24, 6
    s_add_u32 s25, s25, {MODP}
    s_mul_i32 s26, s22, {4*40960}
    s_lshl_b32 s27, s24, 10
    s_add_u32 s26, s26, s27
    s_add_u32 s26, s26, {XN}""")
    for e in range(8):
        k(f"buffer_load_dwordx4 v[{168+8*e}:{171+8*e}], v6, s[12:15], s25 offen offset:2560 {LDX}")
        k(f"buffer_load_dwordx4 v[{172+8*e}:{175+8*e}], v6, s[12:15], s25 offen {LDX}")
        if e < 7: k("s_add_u32 s25, s25, 15360")
    wr_ids = {}
    def issue(c):
        if c > 9: return
        for t in range(4):
            r = XR + (c % D) * 16 + t * 4
            k(f"s_add_u32 s29, s26, {t*40960 + c*4096}")
            k(f"buffer_load_dwordx4 v[{r}:{r+3}], v5, s[12:15], s29 offen {LDX}")
    for c in range(LAX): issue(c)
    for e in range(1, 8):
        for q in range(8): k(f"v_add_f32 v{168+q}, v{168+q}, v{168+8*e+q}")
    for q in range(8): bf16r(k, GSR + q, 168 + q)
    for q in range(4):
        k(f"v_add_f32 v{GSR+q}, 1.0, v{GSR+q}")
        bf16r(k, GSR + q, GSR + q)
    k(f"""s_mul_i32 s25, s24, 1280
    s_add_u32 s25, s25, {GSB_L}
    v_lshlrev_b32 v14, 7, v3
    v_lshrrev_b32 v15, 1, v4
    v_lshl_add_u32 v14, v15, 6, v14
    v_and_b32 v15, 1, v4
    v_lshl_add_u32 v14, v15, 4, v14
    v_add_u32 v14, s25, v14
    v_cmp_gt_u32 vcc, 40, v2
    s_and_saveexec_b64 s[34:35], vcc
    ds_write_b128 v14, v[{GSR}:{GSR+3}]
    ds_write_b128 v14, v[{GSR+4}:{GSR+7}] offset:32
    s_mov_b64 exec, s[34:35]
    v_lshlrev_b32 v15, 6, v20
    v_add_u32 v15, s25, v15
    s_lshl_b32 s25, s24, 12
    s_add_u32 s25, s25, {XHB}
    v_add_u32 v16, s25, v5""")
    k.wait_lg(0)
    def gs_reads(c):
        b = GSR + (c % 2) * 16
        for i in range(4): k(f"ds_read_b128 v[{b+4*i}:{b+4*i+3}], v15 offset:{c*128 + 16*i}")
    def norm(c):
        b = GSR + (c % 2) * 16
        for t in range(4):
            r = XR + (c % D) * 16 + t * 4; o = OUT + t * 4; T = TMP + (t % 2) * 8
            for d in range(8):
                k(f"v_fma_mix_f32 v{T+d}, v{r+d//2}, v{b+d}, v{b+8+d} op_sel:[{d%2},0,0] op_sel_hi:[1,0,0]")
            for d in range(4): k(f"v_cvt_pk_bf16_f32 v{o+d}, v{T+2*d}, v{T+2*d+1}")
            wr_ids[c] = k(f"ds_write_b128 v16, v[{o}:{o+3}] offset:{(c%3)*16384 + t*1024}")
    gs_reads(0); gs_reads(1)
    issue(LAX)
    norm(0)
    issue(LAX + 1)
    gs_reads(2)
    k.wait_lg_id(wr_ids[0])
    k("s_barrier")
    norm(1)
    SCR = 81920; GSL = 152576
    for p in range(9):
        issue(p + 2 + LAX)
        if p == 6:
            k(f"""s_mul_i32 s46, s22, 15
            s_add_u32 s46, s46, s23           ; unit 0..239
            s_lshl_b32 s47, s46, 13
            v_lshlrev_b32 v168, 7, v2
            s_and_b32 s52, s2, 15
            s_lshl_b32 s52, s52, 14
            s_add_u32 s52, s52, {FLG + F1}
            s_cmp_eq_u32 s24, 9
            s_cselect_b32 s48, s96, s84
            s_cselect_b32 s49, s97, s85
            s_cselect_b32 s50, {NB['wd']}, s14
            s_cselect_b32 s47, s47, s52
            s_and_b32 s49, s49, 0xffff
            s_mov_b32 s51, 0x00020000
            s_cmp_eq_u32 s24, 1
            s_cselect_b32 s52, 8192, 0
            s_add_u32 s47, s47, s52
            buffer_load_dword v169, v168, s[48:51], s47 offen""")
        if p + 3 <= 9: gs_reads(p + 3)
        if p + 2 <= 9: norm(p + 2)
        k.wait_lg_id(wr_ids[p + 1])
        k("s_barrier")
    k("s_branch L_sigb_p1")
    k.label("L_p1_idle")
    restore(k, st0)
    k("s_barrier")
    k.raw("    v_mov_b32 v250, 0\n    global_load_dword v252, v250, s[80:81] sc1")
    get_tag(k, "idle")
    k(f"""s_cmp_eq_u32 s24, 3
    s_cbranch_scc1 L_p1_fin
    s_nop 0""")
    k(f"""s_lshl_b32 s16, s24, 4
    s_add_u32 s16, s16, s22
    s_cmp_ge_u32 s16, 40
    s_cbranch_scc1 L_p1_done
    s_mul_i32 s17, s24, 20480
    s_mul_i32 s20, s16, 26
    s_lshr_b32 s20, s20, 8
    s_mul_i32 s21, s20, 10
    s_sub_u32 s21, s16, s21
    s_mul_i32 s25, s20, {160*1280}
    s_lshl_b32 s26, s21, 7
    s_add_u32 s25, s25, s26
    v_lshrrev_b32 v8, 3, v2
    v_mul_u32_u24 v8, 1280, v8
    v_and_b32 v9, 7, v2
    v_lshl_add_u32 v8, v9, 4, v8""")
    srd(k, 28, 90, NB['wo'])
    for i in range(20):
        k(f"s_add_u32 m0, s17, {1024*i}")
        k(f"buffer_load_dwordx4 v8, s[28:31], s25 offen lds")
        k(f"s_add_u32 s25, s25, {8*1280}")
    k("""v_lshrrev_b32 v4, 4, v2
    v_bfe_u32 v5, v2, 2, 2
    v_and_b32 v6, 3, v2
    v_lshlrev_b32 v7, 4, v2""")
    for sp in range(5):
        k(f"""v_add_u32 v9, {4*sp}, v4
        v_mul_u32_u24 v10, 52, v9
        v_lshrrev_b32 v10, 8, v10
        v_mul_u32_u24 v10, 20, v10
        v_lshl_add_u32 v10, v9, 2, v10
        v_add_u32 v10, v10, v5
        v_lshlrev_b32 v10, 7, v10
        v_lshl_add_u32 v10, v6, 3, v10
        v_add_u32 v{12+sp}, s17, v10""")
    k.wait_vm(0)
    k(f"""s_mul_i32 s20, s20, {5*5120}
    s_add_u32 s20, s20, {WOP}
    s_lshl_b32 s21, s21, 2""")
    for f in range(4):
        k(f"""s_add_u32 s32, s21, {f}
        s_mul_i32 s33, s32, 52
        s_lshr_b32 s33, s33, 8
        s_mul_i32 s34, s33, 5
        s_sub_u32 s34, s32, s34
        s_mul_i32 s33, s33, {20*5120}
        s_lshl_b32 s34, s34, 10
        s_add_u32 s33, s33, s34
        s_add_u32 s33, s33, s20""")
        for sp in range(5):
            d = 24 + (f % 2) * 20 + sp * 4
            for a_ in range(2):
                k(f"ds_read_b64_tr_b16 v[{d+2*a_}:{d+2*a_+1}], v{12+sp} offset:{a_*2560 + f*32}")
        for sp in range(5):
            d = 24 + (f % 2) * 20 + sp * 4
            k(f"buffer_store_dwordx4 v[{d}:{d+3}], v7, s[12:15], s33 offen sc1")
            if sp < 4: k(f"s_add_u32 s33, s33, 5120")
    k("s_branch L_p1_done")
    k.label("L_p1_fin")
    reset(k)
    k(f"v_add_u32 v6, {FM + 640}, v5")
    wait(k, "fin0", 3, 6, 64, barrier=False, slp=16)
    k(f"v_add_u32 v6, {FM + 640 + 256}, v5")
    wait(k, "fin1", 3, 6, 64, barrier=False, slp=16)
    k(f"""s_mul_i32 s25, s22, 640
    s_add_u32 s26, s25, {MODP + 5120}
    v_mov_b32 v7, 0x7ffffff0
    v_cmp_gt_u32 vcc, 40, v2
    v_cndmask_b32 v6, v7, v5, vcc""")
    for e in range(8):
        k(f"buffer_load_dwordx4 v[{32+4*e}:{35+4*e}], v6, s[12:15], s26 offen {LDX}")
        if e < 7: k("s_add_u32 s26, s26, 15360")
    for e in range(1, 8):
        for q in range(4): k(f"v_add_f32 v{32+q}, v{32+q}, v{32+4*e+q}")
    for q in range(4): bf16r(k, 32 + q, 32 + q)
    k("""s_lshr_b32 s27, s22, 2
    s_cmp_lg_u32 s27, 2
    s_cbranch_scc1 L_p1_fin2""")
    for q in range(4):
        k(f"v_add_f32 v{32+q}, 1.0, v{32+q}")
        bf16r(k, 32 + q, 32 + q)
    k.label("L_p1_fin2")
    k._nop(2)
    k(f"""s_add_u32 s26, s25, {MOD + 5120}
    buffer_store_dwordx4 v[32:35], v6, s[12:15], s26 offen sc1""")
    k.label("L_p1_done")
    reset(k); k._nop(12)
    k.waitall()
    k.label("L_sigb_p1")
    k("s_barrier")
    reset(k)
    k(f"""s_lshl_b32 s36, s22, 7
    s_lshl_b32 s37, s23, 2
    s_add_u32 s36, s36, s37
    s_add_u32 s36, s36, {F1}""")
    flag_store(k, 36, 0, "p1")
    k(f"""s_cmp_lt_u32 s23, 15
    s_cbranch_scc1 L_p1_nofw
    s_lshl_b32 s36, s22, 2
    s_add_u32 s36, s36, {FW}""")
    flag_store(k, 36, 1, "p1w")
    k.label("L_p1_nofw")
    k("s_mov_b32 s61, s23")

def p2(k):
    KL = 0; VL = 30720
    S = [24, 96]
    QF = 168; KF = 176; T = 192; VF = 60; O = [84, 132]
    k(f"""s_and_b32 s20, s2, 7
    s_lshl_b32 s21, s20, 1
    s_bfe_u32 s20, s2, 0x10003
    s_add_u32 s21, s21, s20           ; m
    s_lshr_b32 s22, s2, 4             ; qb
    s_mov_b32 s24, s3
    v_and_b32 v3, 15, v2
    v_lshrrev_b32 v4, 4, v2
    v_lshlrev_b32 v7, 4, v2""")
    k(f"""s_lshl_b32 s25, s22, 3
    s_add_u32 s25, s25, s24
    s_mul_i32 s26, s21, 1280
    s_lshl_b32 s27, s22, 3
    s_mul_i32 s28, s24, 3
    s_add_u32 s27, s27, s28
    s_sub_u32 s27, s27, 16
    s_mul_i32 s28, s24, 3840""")
    for t in range(4):
        k(f"""v_add_u32 v12, {64*t}, v2
        v_mul_u32_u24 v13, 820, v12
        v_lshrrev_b32 v13, 16, v13
        v_mul_u32_u24 v14, 80, v13
        v_sub_u32 v14, v12, v14
        v_add_u32 v13, s27, v13
        v_cmp_gt_i32 vcc, 0, v13
        v_mul_i32_i24 v13, 20480, v13
        v_lshl_add_u32 v13, v14, 4, v13
        v_mov_b32 v14, 0x7ffffff0
        v_cndmask_b32 v{8+t}, v13, v14, vcc""")
    k(f"""s_mov_b32 s8, {FW}
    s_lshl_b32 s9, s22, 7
    s_add_u32 s9, s9, {F1}
    s_sub_u32 s10, s9, 128
    s_max_u32 s10, s10, {F1}
    s_sub_u32 s11, s9, 256
    s_max_u32 s11, s11, {F1}""")
    wait_s(k, "p2w", 7, [8], 32, barrier=False)
    wait_s(k, "p2", 7, [9, 10, 11], 32)
    mstamp(k, 2)
    k(f"s_add_u32 s29, s26, {KB}")
    for t in range(4):
        k(f"s_add_u32 m0, s28, {1024*t}")
        if t == 3: k("s_mov_b32 exec_hi, 0x0000ffff")
        k(f"buffer_load_dwordx4 v{8+t}, s[12:15], s29 offen {LDX} lds")
    k("s_mov_b64 exec, -1")
    k(f"""v_min_u32 v12, 2, v4
    v_lshlrev_b32 v12, 8, v12
    v_lshl_add_u32 v12, v3, 4, v12
    s_mul_i32 s30, s25, 20480
    s_add_u32 s30, s30, s26
    s_add_u32 s30, s30, {QB}
    buffer_load_dwordx4 v[{QF}:{QF+3}], v12, s[12:15], s30 offen {LDX}
    buffer_load_dwordx4 v[{QF+4}:{QF+7}], v12, s[12:15], s30 offen offset:512 {LDX}""")
    k(f"""s_lshr_b32 s31, s24, 2
    s_and_b32 s32, s24, 3
    s_lshl_b32 s33, s21, 1
    s_add_u32 s33, s33, s31
    s_mul_i32 s33, s33, 81920
    s_add_u32 s33, s33, {VB}
    s_mul_i32 s34, s22, 5120
    s_sub_u32 s34, s34, 10240
    s_lshl_b32 s35, s32, 12
    s_add_u32 s34, s34, s35
    s_mul_i32 s36, s31, 15360
    s_add_u32 s36, s36, s35
    s_add_u32 s36, s36, {VL}
    v_mov_b32 v14, 0x7ffffff0""")
    for t in range(4):
        k(f"""v_add_u32 v13, s34, v7
        v_cmp_gt_i32 vcc, 0, v13
        v_cndmask_b32 v13, v13, v14, vcc
        s_add_u32 m0, s36, {1024*t}""")
        if t == 3:
            k("""s_cmp_eq_u32 s32, 3
            s_cbranch_scc1 L_p2_v3""")
        k(f"buffer_load_dwordx4 v13, s[12:15], s33 offen {LDX} lds")
        if t < 3: k("s_add_u32 s34, s34, 1024")
    k.label("L_p2_v3")
    k(f"""s_and_b32 s31, s24, 6
    s_mul_i32 s32, s31, 1280
    v_add_u32 v8, s32, v12
    s_mul_i32 s32, s31, 640
    s_add_u32 s32, s32, {VL}
    v_add_u32 v9, s32, v7
    v_and_b32 v11, 3, v3
    v_lshl_add_u32 v11, v4, 2, v11
    v_lshlrev_b32 v11, 4, v11
    v_add_u32 v11, s32, v11
    v_cmp_gt_u32 s[48:49], 4, v3
    v_mov_b32 v18, 0x3f803f80
    v_lshlrev_b32 v13, 2, v4
    s_and_b32 s33, s24, 1""")
    MK = {0: 50, 1: 58, 16: 66, 17: 74}
    for r in range(4):
        k(f"""v_add_u32 v14, {r}, v13
        v_cmp_le_u32 s[4:5], v14, v3
        s_not_b64 s[6:7], s[4:5]
        s_cmp_eq_u32 s33, 0
        s_cselect_b64 s[{MK[0]+2*r}:{MK[0]+2*r+1}], s[6:7], 0
        s_cselect_b64 s[{MK[1]+2*r}:{MK[1]+2*r+1}], -1, s[6:7]
        s_cselect_b64 s[{MK[16]+2*r}:{MK[16]+2*r+1}], s[4:5], -1
        s_cselect_b64 s[{MK[17]+2*r}:{MK[17]+2*r+1}], 0, s[4:5]""")
    k(f"""s_mul_i32 s35, s25, 20480
    s_add_u32 s35, s35, s26
    s_add_u32 s35, s35, {OB}
    v_lshlrev_b32 v15, 8, v4
    v_lshl_add_u32 v15, v3, 4, v15
    v_lshlrev_b32 v16, 4, v3
    v_mov_b32 v10, 0x7ffffff0
    v_cmp_gt_u32 vcc, 16, v2
    v_cndmask_b32 v16, v10, v16, vcc
    s_mov_b32 s36, 0x3ea52b5c
    v_mov_b32 v17, 0xf149f2ca
    v_cmp_gt_u32 s[4:5], 2, v4
    v_cmp_gt_u32 s[6:7], 3, v4
    v_cmp_ne_u32 s[8:9], 0, v4
    s_and_b64 s[8:9], s[8:9], s[6:7]""")
    k.wait_vm(3)
    for e, mk in ((0, 6), (1, 6), (2, 4), (3, 4), (4, 8), (5, 8), (6, 6), (7, 6)):
        k(f"v_cndmask_b32 v{QF+e}, 0, v{QF+e}, s[{mk}:{mk+1}]")
    PW = int([e for e in G.EXP if e.startswith('pw')][0][2:]) if any(e.startswith('pw') for e in G.EXP) else 0
    k("s_barrier")
    def kread(t, i): return f"ds_read_b128 v[{KF+4*(i%4)}:{KF+4*(i%4)+3}], v8 offset:{i*1280 + t*512}"
    def qk(t):
        out = [kread(t, 0), kread(t, 1), kread(t, 2)]
        for i in range(18):
            if i + 3 < 18: out.append(kread(t, i + 3))
            out.append(f"v_mfma_f32_16x16x32_bf16 v[{S[t]+4*i}:{S[t]+4*i+3}], v[{KF+4*(i%4)}:{KF+4*(i%4)+3}], v[{QF+4*t}:{QF+4*t+3}], 0")
        return out
    def vread(t, c):
        d = VF + (c % 3) * 8
        return [f"ds_read_b128 v[{d}:{d+3}], v9 offset:{t*15360 + c*1280}", f"ds_read_b128 v[{d+4}:{d+7}], v11 offset:{t*15360 + c*1280+1024}"]
    def pv(t):
        out = vread(t, 0) + vread(t, 1)
        for c in range(9):
            d = VF + (c % 3) * 8
            if c + 2 < 9: out += vread(t, c + 2)
            for e in range(4): out.append(f"v_cndmask_b32 v{d+4+e}, v18, v{d+4+e}, s[48:49]")
            for dd in range(2):
                acc = f"v[{O[t]+4*dd}:{O[t]+4*dd+3}]"
                out.append(f"v_mfma_f32_16x16x32_bf16 {acc}, v[{d+4*dd}:{d+4*dd+3}], v[{S[t]+4*c}:{S[t]+4*c+3}], {acc if c else 0}")
        return out
    def fixup(t):
        lab = f"L_p2_fix{t}"
        k._nop(10)
        k(f"""s_cmp_ge_u32 s22, 2
        s_cbranch_scc1 {lab}
        s_and_b32 s37, s25, 0xfffe
        s_sub_u32 s37, 16, s37""")
        for tau in range(16):
            k.raw(f"    s_cmp_le_i32 s37, {tau}\n    s_cbranch_scc1 {lab}")
            for r in range(4): k.raw(f"    v_mov_b32 v{S[t]+4*tau+r}, v17")
        k.label(lab)
        k._nop(2)
    def softmax(t):
        s0 = S[t]; TT = T + 4 * t
        out = [lambda: fixup(t)]
        for ti in (0, 1, 16, 17):
            for r in range(4):
                out.append(f"v_cndmask_b32 v{s0+4*ti+r}, v17, v{s0+4*ti+r}, s[{MK[ti]+2*r}:{MK[ti]+2*r+1}]")
        regs = list(range(s0, s0 + 72))
        for j in range(4):
            out.append(f"v_max_f32 v{TT+j}, v{regs[j*18]}, v{regs[j*18+1]}")
        for i in range(8):
            for j in range(4):
                out.append(f"v_max3_f32 v{TT+j}, v{TT+j}, v{regs[j*18+2+2*i]}, v{regs[j*18+3+2*i]}")
        out += [f"v_max3_f32 v{TT}, v{TT}, v{TT+1}, v{TT+2}", f"v_max_f32 v{TT}, v{TT}, v{TT+3}",
                f"v_mov_b32 v{TT+1}, v{TT}", f"v_permlane16_swap_b32 v{TT}, v{TT+1}", f"v_max_f32 v{TT}, v{TT}, v{TT+1}",
                f"v_mov_b32 v{TT+1}, v{TT}", f"v_permlane32_swap_b32 v{TT}, v{TT+1}", f"v_max_f32 v{TT}, v{TT}, v{TT+1}",
                f"v_mul_f32 v{TT}, s36, v{TT}", f"v_sub_f32 v{TT}, 0, v{TT}"]
        Gs = 8
        for g0 in range(0, 72, Gs):
            for i in range(Gs): out.append(f"v_fma_f32 v{s0+g0+i}, v{s0+g0+i}, s36, v{TT}")
            for i in range(Gs): out.append(f"v_exp_f32 v{s0+g0+i}, v{s0+g0+i}")
            if g0 >= Gs:
                for i in range(0, Gs, 2): out.append(f"v_cvt_pk_bf16_f32 v{s0+(g0-Gs+i)//2}, v{s0+g0-Gs+i}, v{s0+g0-Gs+i+1}")
        for i in range(64, 72, 2): out.append(f"v_cvt_pk_bf16_f32 v{s0+i//2}, v{s0+i}, v{s0+i+1}")
        return out
    FO = 160
    def final(t):
        F = 140 + 10 * t
        out = [f"v_mov_b32 v{F}, v{O[t]+4}", f"v_mov_b32 v{F+1}, v{O[t]+4}",
               f"v_permlane16_swap_b32 v{F}, v{F+1}", f"v_rcp_f32 v{F+1}, v{F+1}"]
        for i in range(8): out.append(f"v_mul_f32 v{F+2+i}, v{O[t]+i}, v{F+1}")
        o = F + 2
        out += [f"v_cvt_pk_bf16_f32 v{FO+2*t}, v{o}, v{o+1}", f"v_cvt_pk_bf16_f32 v{FO+2*t+1}, v{o+2}, v{o+3}",
                f"v_cvt_pk_bf16_f32 v{FO+4+2*t}, v{o+4}, v{o+5}", f"v_cvt_pk_bf16_f32 v{FO+4+2*t+1}, v{o+6}, v{o+7}"]
        return out
    def mix(valu, mf):
        n = len(valu); m = len(mf); j = 0
        for i, v in enumerate(valu):
            if callable(v): v()
            else: k(v)
            while j < m and (j + 1) * n <= (i + 1) * m: k(mf[j]); j += 1
        while j < m: k(mf[j]); j += 1
    for m in qk(0): k(m)
    k.wait_vm(0)
    k("s_barrier")
    k(f"""s_cmp_ge_u32 s24, 4
    s_cbranch_scc1 L_p2_rpB
    s_cmp_ge_u32 s2, 240
    s_cbranch_scc1 L_p2_norp1""")
    srd(k, 28, 92, NB['wg']); srd(k, 4, 94, NB['wu'])
    repackgu_issue(k, 2, 24, RP, 28, 4, 100, 40, 2, 12, None)
    repackgu_gsdma(k, 100, 40, 2, 12, RP + 6*4096, fl=LDX)
    k("s_branch L_p2_norp1")
    k.label("L_p2_rpB")
    k(f"""s_sub_u32 s16, s24, 4
    s_lshl_b32 s16, s16, 8
    s_add_u32 s16, s16, s2
    s_add_u32 s16, s16, 200
    s_lshl_b32 s17, s24, 12
    s_add_u32 s17, s17, {RP}
    s_cmp_ge_u32 s16, 680
    s_cbranch_scc1 L_p2_norp1""")
    srd(k, 28, 96, NB['wd'])
    rid = repack16_issue(k, 16, 17, 28, 28, 100, 40, 2)
    k.label("L_p2_norp1")
    reset(k); k._nop(4)
    if 'pre3' not in G.EXP:
        prefetch_lin(k, 12, WOP, 8*20*5120, 512, 0, 104, 38, dst='v200', full=True)
    else:
        k(f"""s_cmp_lt_u32 s24, 4
        s_cbranch_scc1 L_p2_nowo
        s_lshr_b32 s28, s2, 5
        s_mul_i32 s28, s28, {20*5120}
        s_sub_u32 s29, s24, 4
        s_mul_i32 s29, s29, 5120
        s_add_u32 s28, s28, s29
        s_add_u32 s28, s28, {WOP}
        s_and_b32 s30, s2, 7
        s_mul_i32 s30, s30, {5 if 'norot' not in G.EXP else 0}
        s_lshr_b32 s30, s30, 3
        v_add_u32 v100, 4096, v7""")
        for c in range(3):
            k(f"""s_mul_i32 s31, s30, 20480
            s_add_u32 s31, s31, s28
            s_add_u32 s30, s30, 1
            s_cmp_ge_u32 s30, 5
            s_cselect_b32 s30, 0, s30
            s_add_u32 m0, s29, {(3+c)*20480}""")
            for t in range(4):
                k(f"buffer_load_dwordx4 v7, s[12:15], s31 offen offset:{1024*t} {LDX} lds")
            k(f"s_add_u32 m0, s29, {(3+c)*20480 + 4096}")
            k(f"buffer_load_dwordx4 v100, s[12:15], s31 offen {LDX} lds")
        k.label("L_p2_nowo")
        reset(k); k._nop(4)
    if 'tact' in G.EXP:
        k(f"""s_mul_i32 s38, s2, 24576
        s_add_u32 s38, s38, {ACT}
        v_lshlrev_b32 v104, 7, v0
        v_mov_b32 v105, 0x7ffffff0
        v_cmp_gt_u32 vcc, 192, v0
        v_cndmask_b32 v104, v105, v104, vcc
        buffer_load_dword v201, v104, s[12:15], s38 offen sc0 sc1""")
        k.pend_vm.pop(('v', 201), None)
    mix(softmax(0), qk(1))
    mix(softmax(1), pv(0))
    k.wait_vm(0)
    k("s_barrier")
    mix(final(0), pv(1))
    for v in final(1): k(v)
    k(f"buffer_store_dwordx4 v[{FO}:{FO+3}], v15, s[12:15], s35 offen sc1")
    k(f"buffer_store_dwordx4 v[{FO+4}:{FO+7}], v16, s[12:15], s35 offen offset:1024 sc1")
    k(f"""s_lshl_b32 s22, s22, 7
    s_lshl_b32 s21, s21, 2
    s_add_u32 s22, s22, s21
    s_add_u32 s22, s22, {F2}
    s_cmp_ge_u32 s24, 4
    s_cbranch_scc1 L_p2_fin
    s_cmp_ge_u32 s2, 240
    s_cbranch_scc1 L_p2_fin
    v_lshrrev_b32 v20, 5, v2
    s_mov_b32 s30, 0xffff0000""")
    repackgu_gs_lds(k, RP + 6*4096, 176, 20)
    repackgu_finish(k, 24, RP, 12, 176, 24, 40, 2, 20, 30, gsp=GSP)
    k.raw("    s_waitcnt vmcnt(6)")
    k("s_branch L_sigb_p2")
    k.label("L_p2_fin")
    reset(k); k._nop(4)
    signal(k, 22, "p2")
    k.rid = rid

def p35(k, wo):
    nm = 'p3' if wo else 'p5'
    NS32 = 20 if wo else 48
    NC = NS32 // 4
    NS = 5 if wo else 7
    R = 3; XD = 5
    PH = (lambda c: [3, 4, 5, 0, 1][c]) if wo else (lambda c: c % NS)
    ROT = NC if 'norot' not in G.EXP else 0
    XB = OB if wo else ACT
    WP = WOP if wo else WDP
    SS = 20480
    ACC = 32; WF = 52; EX = 132; XA = 164; TMP = 52
    EXX = EX
    k(f"""s_and_b32 s20, s2, 7
    s_lshr_b32 s21, s2, 3
{MAP35}
    v_lshlrev_b32 v5, 4, v2
    v_add_u32 v6, 4096, v5
    s_mul_i32 s37, s20, {ROT}
    s_lshr_b32 s37, s37, 3
    s_cmp_lt_u32 s3, 4
    s_cbranch_scc1 L_{nm}_comp""")
    def nextc():
        k(f"""s_add_u32 s37, s37, 1
        s_cmp_ge_u32 s37, {NC}
        s_cselect_b32 s37, 0, s37""")
    st0 = snap(k)
    k(f"""s_sub_u32 s24, s3, 4
    s_mul_i32 s25, s23, {NS32*5120}
    s_mul_i32 s26, s24, 5120
    s_add_u32 s25, s25, s26
    s_add_u32 s25, s25, {WP}""")
    dma = {}
    def fw(c):
        slot = PH(c)
        if wo and c < 3 and 'pre3' in G.EXP:
            nextc(); dma[c] = None
            return
        k(f"s_mul_i32 s29, s37, {SS}")
        k(f"s_add_u32 s29, s29, s25")
        nextc()
        k(f"s_add_u32 m0, s26, {slot*SS}")
        for t in range(4):
            k(f"buffer_load_dwordx4 v5, s[12:15], s29 offen offset:{1024*t} {LDX} lds")
        k(f"s_add_u32 m0, s26, {slot*SS + 4096}")
        dma[c] = k(f"buffer_load_dwordx4 v6, s[12:15], s29 offen {LDX} lds")
    if wo:
        k(f"""s_cmp_ge_u32 s16, 680
        s_cbranch_scc1 L_p3_norp""")
        stn = snap(k)
        repack16_finish(k, 16, 17, 12, 24, 40, 2, None, wd=True)
        k.label("L_p3_norp")
        restore(k, stn); k._nop(4)
    for c in range(NS):
        if not wo and 'thr1' in G.EXP and c >= 1: k.wait_vm_id(dma[c - 1])
        if not wo and 'thr2' in G.EXP and c >= 2: k.wait_vm_id(dma[c - 2])
        fw(c)
    k("s_barrier")
    for cb in range(NC):
        k.wait_vm_id(dma[cb])
        if wo and cb == 1: k.waitall()
        k("s_barrier")
        if cb >= 2 and cb - 2 + NS < NC: fw(cb - 2 + NS)
        if wo and cb == 1:
            k(f"""s_lshl_b32 s36, s2, 2
            s_add_u32 s36, s36, {FRP}""")
            flag_store(k, 36, 4, "rp")
    if wo and 'pfwd3' in G.EXP:
        prefetch_lin(k, 12, WDP, 8*48*5120, 256, 0, 30, 40, tid_off=256, dst='v34', full=True)
    if wo and 'pfgu' in G.EXP:
        prefetch_lin(k, 12, WGUP, 48*40960, 256, 0, 30, 40, tid_off=256, dst='v34')
    k(f"s_branch L_sigb_p3" if wo else "s_endpgm")
    k.label(f"L_{nm}_comp")
    restore(k, st0)
    goff = MOD + (2 if wo else 5) * 2560
    srd(k, 16, 86 if wo else 98, NB['x'])
    k(f"""s_mov_b32 s24, s3
    v_and_b32 v3, 15, v2
    v_lshrrev_b32 v4, 4, v2
    s_lshl_b32 s31, s22, 2
    s_add_u32 s31, s31, s24           ; T16
    s_mul_i32 s27, s31, {NS32*1024}
    s_add_u32 s27, s27, {XB}
    s_mul_i32 s32, s23, 320
    s_add_u32 s32, s32, {goff}
    v_lshlrev_b32 v13, 4, v4
    s_lshr_b32 s33, s31, 1
    s_mul_i32 s33, s33, 40960
    s_mul_i32 s34, s23, 5120
    s_add_u32 s33, s33, s34
    s_add_u32 s33, s33, {X1}
    s_and_b32 s34, s31, 1
    s_lshl_b32 s34, s34, 8
    v_lshl_add_u32 v14, v3, 4, s34
    v_lshrrev_b32 v15, 1, v4
    v_lshl_add_u32 v14, v15, 9, v14
    v_and_b32 v15, 1, v4
    v_lshl_add_u32 v14, v15, 3, v14
    s_mul_i32 s34, s31, {16*1280}
    s_mul_i32 s35, s23, 160
    s_add_u32 s34, s34, s35
    v_mul_u32_u24 v15, 1280, v3
    v_lshl_add_u32 v15, v4, 3, v15
    v_add_u32 v21, 4096, v14
    v_add_u32 v7, {3*SS}, v5
    v_add_u32 v8, {6*SS}, v5""")
    k(f"""s_lshr_b32 s36, s22, 1
    s_lshl_b32 s36, s36, 7
    s_add_u32 s36, s36, {F2 if wo else F4}""")
    for j in range(5):
        k(f"buffer_load_dwordx4 v[{EX+4*j}:{EX+4*j+3}], v13, s[12:15], s32 offen offset:{64*j} {LDX}")
        if wo: k(f"buffer_load_dwordx2 v[{EX+20+2*j}:{EX+21+2*j}], v15, s[16:19], s34 offen offset:{32*j}")
        else:
            k(f"v_mov_b32 v{EX+20+2*j}, v{236+2*j}"); k(f"v_mov_b32 v{EX+21+2*j}, v{237+2*j}")
    wait_s(k, nm, 0, [36], 48, barrier=False)
    if wo: k.waitall()
    k("s_barrier")
    mstamp(k, 4 if wo else 8)
    def fx(c):
        k(f"s_lshl_b32 s30, s37, 12")
        k(f"s_add_u32 s30, s30, s27")
        nextc()
        for i in range(4):
            r = XA + (c % XD) * 16 + i * 4
            k(f"buffer_load_dwordx4 v[{r}:{r+3}], v5, s[12:15], s30 offen offset:{1024*i} {LDX}")
    for c in range(min(XD - 1, NC)): fx(c)
    nxt = min(XD - 1, NC)
    epi = []
    def reads(s):
        c = s // 4; ks = s % 4; slot = PH(c)
        base = (5, 7, 8)[slot // 3]; so = (slot % 3) * SS
        return [f"ds_read_b128 v[{WF+(s%4)*20+j*4}:{WF+(s%4)*20+j*4+3}], v{base} offset:{so + ks*5120 + j*1024}" for j in range(5)]
    k("s_barrier")
    for q in range(R):
        for t in reads(q): k(t)
    pend = []
    for s in range(NS32):
        if (s + R) % 4 == 0 and (s + R) // 4 < NC:
            k("s_barrier")
        c = s // 4
        if s % 4 == 0:
            if nxt < NC and nxt <= c + XD - 1: pend = pend + [lambda c_=nxt: fx(c_)]; nxt += 1
            elif epi: pend = pend + epi; epi = []
        fill = reads(s + R) if s + R < NS32 else []
        n = min(len(pend), 4)
        fill = fill + pend[:n]; pend = pend[n:]
        mf = []
        for j in range(5):
            w = f"v[{WF+(s%4)*20+j*4}:{WF+(s%4)*20+j*4+3}]"
            xr = XA + (c % XD) * 16 + (s % 4) * 4
            d0 = ACC + j * 4
            mf.append(f"v_mfma_f32_16x16x32_bf16 v[{d0}:{d0+3}], {w}, v[{xr}:{xr+3}], {'v[%d:%d]' % (d0, d0+3) if s else 0}")
        interleave(k, mf, fill)
    for t in pend + epi:
        if callable(t): t()
        else: k(t)
    k("s_mov_b32 s30, 0xffff0000")
    PK = TMP + 16
    if wo:
        k("v_mov_b32 v26, 0"); k("v_mov_b32 v27, 0")
        k(f"""v_and_b32 v22, 1, v4
        v_lshlrev_b32 v23, 3, v22
        v_sub_u32 v23, v14, v23
        v_lshl_add_u32 v22, v22, 10, v23
        v_add_u32 v23, 4096, v23""")
    else:
        k(f"""v_and_b32 v22, 1, v4
        v_lshlrev_b32 v23, 3, v22
        v_sub_u32 v23, v15, v23
        v_lshl_add_u32 v22, v22, 5, v23""")
    for j in range(5):
        a0 = ACC + 4 * j; gq = EX + 4 * j; xr = EX + 20 + 2 * j; T = TMP + 8 * (j % 2); P_ = PK + 2 * j
        k(f"""v_cvt_pk_bf16_f32 v{T}, v{a0}, v{a0+1}
        v_cvt_pk_bf16_f32 v{T+1}, v{a0+2}, v{a0+3}
        v_lshlrev_b32 v{a0}, 16, v{T}
        v_and_b32 v{a0+1}, s30, v{T}
        v_lshlrev_b32 v{a0+2}, 16, v{T+1}
        v_and_b32 v{a0+3}, s30, v{T+1}
        v_mul_f32 v{a0}, v{a0}, v{gq}
        v_mul_f32 v{a0+1}, v{a0+1}, v{gq+1}
        v_mul_f32 v{a0+2}, v{a0+2}, v{gq+2}
        v_mul_f32 v{a0+3}, v{a0+3}, v{gq+3}
        v_cvt_pk_bf16_f32 v{T}, v{a0}, v{a0+1}
        v_cvt_pk_bf16_f32 v{T+1}, v{a0+2}, v{a0+3}
        v_lshlrev_b32 v{a0}, 16, v{T}
        v_and_b32 v{a0+1}, s30, v{T}
        v_lshlrev_b32 v{a0+2}, 16, v{T+1}
        v_and_b32 v{a0+3}, s30, v{T+1}
        v_lshlrev_b32 v{T+2}, 16, v{xr}
        v_and_b32 v{T+3}, s30, v{xr}
        v_lshlrev_b32 v{T+4}, 16, v{xr+1}
        v_and_b32 v{T+5}, s30, v{xr+1}
        v_add_f32 v{a0}, v{a0}, v{T+2}
        v_add_f32 v{a0+1}, v{a0+1}, v{T+3}
        v_add_f32 v{a0+2}, v{a0+2}, v{T+4}
        v_add_f32 v{a0+3}, v{a0+3}, v{T+5}
        v_cvt_pk_bf16_f32 v{P_}, v{a0}, v{a0+1}
        v_cvt_pk_bf16_f32 v{P_+1}, v{a0+2}, v{a0+3}""")
        if wo:
            k(f"""v_lshlrev_b32 v{a0}, 16, v{P_}
            v_and_b32 v{a0+1}, s30, v{P_}
            v_lshlrev_b32 v{a0+2}, 16, v{P_+1}
            v_and_b32 v{a0+3}, s30, v{P_+1}""")
            for e in range(4):
                k(f"v_add_f32 v26, v26, v{a0+e}")
                k(f"v_fmac_f32 v27, v{a0+e}, v{a0+e}")
            k(f"v_mov_b32 v{236+2*j}, v{P_}"); k(f"v_mov_b32 v{237+2*j}, v{P_+1}")
        if j == 4:
            k(f"v_mov_b32 v{P_+2}, v{P_}"); k(f"v_mov_b32 v{P_+3}, v{P_+1}")
        if j % 2 == 1 or j == 4:
            q = PK + 2 * (j - 1 if j % 2 else j)
            k(f"v_permlane16_swap_b32 v{q}, v{q+2}")
            k(f"v_permlane16_swap_b32 v{q+1}, v{q+3}")
            jj = j - 1 if j % 2 else j
            if wo:
                if j < 4: k(f"buffer_store_dwordx4 v[{q}:{q+3}], v22, s[12:15], s33 offen offset:{1024*jj} sc1")
                else: k(f"buffer_store_dwordx4 v[{q}:{q+3}], v23, s[12:15], s33 offen sc1")
            else:
                k(f"buffer_store_dwordx4 v[{q}:{q+3}], v{22 if j < 4 else 23}, s[16:19], s34 offen offset:{32*jj} {'sc1' if 'osc1' in G.EXP else ('nt' if 'ont' in G.EXP else '')}")
    if wo:
        for r in (26, 27):
            k(f"""v_mov_b32 v28, v{r}
            v_permlane16_swap_b32 v{r}, v28
            v_add_f32 v{r}, v{r}, v28
            v_mov_b32 v28, v{r}
            v_permlane32_swap_b32 v{r}, v28
            v_add_f32 v{r}, v{r}, v28""")
        k(f"""s_lshl_b32 s38, s31, 10
        s_lshl_b32 s39, s23, 3
        s_add_u32 s38, s38, s39
        s_add_u32 s38, s38, {ST}
        v_lshlrev_b32 v28, 6, v3
        v_mov_b32 v29, 0x7ffffff0
        v_cmp_gt_u32 vcc, 16, v2
        v_cndmask_b32 v28, v29, v28, vcc
        buffer_store_dwordx2 v[26:27], v28, s[12:15], s38 offen sc1""")
    k.label(f"L_{nm}_done")
    reset(k); k._nop(12)
    if wo:
        k(f"v_add_u32 v19, {FRP}, v5")
        wait(k, "crp", 1, 19, 64, barrier=False, slp=4)

        k(f"""s_and_b32 s36, s22, 1
        s_lshl_b32 s36, s36, 3
        s_add_u32 s36, s36, s23
        s_lshl_b32 s36, s36, 2
        s_lshr_b32 s22, s22, 1
        s_lshl_b32 s22, s22, 7
        s_add_u32 s22, s22, s36
        s_add_u32 s22, s22, {F3}""")
        signal(k, 22, nm)

def p4(k):
    NS = 4; SS = 40960
    ACC = 32; XF = 80; WF = 92; GWR = 128; SWR = 176; TMP = 224; STT = 24; R = 2
    k(f"""s_and_b32 s20, s2, 7
    s_lshr_b32 s21, s2, 3
{MAP14}
    s_mov_b32 s24, s3
    v_lshrrev_b32 v20, 5, v2
    v_lshlrev_b32 v5, 4, v2
    s_and_b32 s25, s24, 3
    s_lshr_b32 s26, s24, 2
    s_lshr_b32 s27, s24, 1
    s_lshl_b32 s28, s22, 2
    s_add_u32 s27, s27, s28
    s_mul_i32 s27, s27, 40960
    s_and_b32 s28, s24, 1
    s_lshl_b32 s28, s28, 11
    s_add_u32 s27, s27, s28
    s_add_u32 s27, s27, {X1}
    s_lshl_b32 s28, s24, 11
    s_mul_i32 s29, s24, 3
    s_mul_i32 s30, s23, {6*40960}
    s_add_u32 s30, s30, {WGUP}""")
    for i in range(3):
        k(f"""s_add_u32 s31, s29, {i}
        s_lshr_b32 s32, s31, 2
        s_mul_i32 s32, s32, 40960
        s_and_b32 s31, s31, 3
        s_lshl_b32 s31, s31, 10
        s_add_u32 s32, s32, s31
        s_add_u32 s{40+i}, s32, s30""")
    k(f"""s_lshl_b32 s29, s29, 10
    s_add_u32 s29, s29, 16384""")
    dma = {}
    def fx(c):
        slot = c % NS
        k(f"s_add_u32 m0, s28, {slot*SS}")
        k(f"s_add_u32 s33, s27, {c*4096}")
        k(f"buffer_load_dwordx4 v5, s[12:15], s33 offen {LDX} lds")
        dma[c] = k(f"buffer_load_dwordx4 v5, s[12:15], s33 offen offset:1024 {LDX} lds")
    def fw(c, i):
        slot = c % NS
        k(f"s_add_u32 m0, s29, {slot*SS + i*1024}")
        k(f"s_add_u32 s33, s{40+i}, {c*4096}")
        dma[c] = k(f"buffer_load_dwordx4 v5, s[12:15], s33 offen {LDX} lds")
    def issue(c):
        out = [lambda: fx(c)] + [(lambda i=i: fw(c, i)) for i in range(3)]
        for f in out: f.c = c
        return out
    for c in range(NS):
        for i in range(3): fw(c, i)
    k(f"""v_and_b32 v7, 31, v2
    v_lshlrev_b32 v7, 6, v7
    v_lshl_add_u32 v7, v20, 5, v7
    s_lshl_b32 s34, s22, 2
    s_add_u32 s34, s34, s25
    s_lshl_b32 s35, s25, 12
    v_add_u32 v8, s35, v5
    s_mul_i32 s35, s26, 12288
    s_add_u32 s35, s35, 16384
    v_add_u32 v12, s35, v5
    s_lshl_b32 s36, s22, 7
    s_add_u32 s37, s36, {F3}
    ; gsum partial gather: thread t<384: vec = t/192, col = t%192 -> byte = vec*12288 + nb*768 + col*4
    v_cmp_gt_u32 vcc, 192, v0
    v_mov_b32 v21, {12288 - 768}
    v_cndmask_b32 v21, v21, 0, vcc
    v_lshl_add_u32 v21, v0, 2, v21
    v_mov_b32 v22, 0x7ffffff0
    v_cmp_gt_u32 vcc, 0x180, v0
    v_cndmask_b32 v21, v22, v21, vcc
    s_mul_i32 s36, s23, 768
    s_add_u32 s36, s36, {GSP}""")
    for e in range(10):
        k(f"buffer_load_dword v{GWR+e}, v21, s[12:15], s36 offen {LDX}")
        if e < 9: k("s_add_u32 s36, s36, 24576")
    for g in range(1, 4):
        k(f"v_add_u32 v{8+g}, {g*SS}, v8")
        k(f"v_add_u32 v{12+g}, {g*SS}, v12")
    for i in range(48): k(f"v_mov_b32 v{ACC+i}, 0")
    wait_s(k, "p4", 0, [37], 48)
    mstamp(k, 6)
    fx(0); fx(1)
    k(f"""s_lshl_b32 s35, s34, 11
    s_add_u32 s35, s35, {ST}
    buffer_load_dwordx4 v[{TMP}:{TMP+3}], v7, s[12:15], s35 offen {LDX}
    buffer_load_dwordx4 v[{TMP+4}:{TMP+7}], v7, s[12:15], s35 offen offset:16 {LDX}""")
    fx(2); fx(3)
    def reads(s):
        c = s // 4; ks = s % 4; slot = c % NS
        out = [f"ds_read_b128 v[{XF+(s%3)*4}:{XF+(s%3)*4+3}], v{8+slot} offset:{ks*1024}"]
        for j in range(3):
            d = WF + (s % 3) * 12 + j * 4
            out.append(f"ds_read_b128 v[{d}:{d+3}], v{12+slot} offset:{j*4096 + ks*1024}")
        return out
    def stats():
        b = TMP
        k(f"""v_add_f32 v{b}, v{b}, v{b+2}
        v_add_f32 v{b+1}, v{b+1}, v{b+3}
        v_add_f32 v{b+4}, v{b+4}, v{b+6}
        v_add_f32 v{b+5}, v{b+5}, v{b+7}
        v_add_f32 v{b}, v{b}, v{b+4}
        v_add_f32 v{b+1}, v{b+1}, v{b+5}
        v_mov_b32 v{b+2}, v{b}
        v_mov_b32 v{b+3}, v{b+1}
        v_permlane32_swap_b32 v{b}, v{b+2}
        v_permlane32_swap_b32 v{b+1}, v{b+3}
        v_add_f32 v{b}, v{b}, v{b+2}
        v_add_f32 v{b+1}, v{b+1}, v{b+3}
        v_mul_f32 v{b}, 0x3acccccd, v{b}
        v_mul_f32 v{b+1}, 0x3acccccd, v{b+1}
        v_fma_f32 v{b+1}, -v{b}, v{b}, v{b+1}
        v_max_f32 v{b+1}, 0, v{b+1}""")
        bf16r(k, b, b); bf16r(k, b + 1, b + 1)
        k(f"v_add_f32 v{b+1}, 0x3727c5ac, v{b+1}")
        bf16r(k, b + 1, b + 1)
        k(f"v_sqrt_f32 v{b+1}, v{b+1}")
        bf16r(k, b + 1, b + 1)
        k(f"v_rcp_f32 v{STT}, v{b+1}")
        k(f"v_sub_f32 v{STT+1}, 0, v{b}")
    k.wait_vm_id(dma[0])
    k("s_barrier")
    mstamp(k, 10, 0)
    for q in range(R):
        for t in reads(q): k(t)
    pend = []
    gs_id = None
    for s in range(40):
        if (s + R) % 4 == 0 and (s + R) // 4 <= 10:
            cb = (s + R) // 4
            while cb < 10 and any(getattr(f, 'c', None) == cb for f in pend):
                f = pend.pop(0); f()
            if cb < 10: k.wait_vm_id(dma[cb])
            if cb == 10: k.wait_lg(0)
            k("s_barrier")
            if cb == 4: mstamp(k, 11, 0)
            if cb == 8: mstamp(k, 12, 0)
            if cb >= 2 and cb - 2 + NS <= 9: pend = pend + issue(cb - 2 + NS)
            if cb == 9: pend = pend + [stats]
            if 1 <= cb <= 6 and 'nopfs' not in G.EXP:
                def pfs(i=cb - 1):
                    if i == 0:
                        k(f"""s_lshr_b32 s38, s2, 3
                        s_mul_i32 s38, s38, 61440
                        s_add_u32 s38, s38, {WDP}
                        v_lshlrev_b32 v26, 3, v2
                        v_add_u32 v26, s24, v26
                        v_lshlrev_b32 v26, 7, v26
                        v_mov_b32 v27, 0x7ffffff0
                        v_cmp_gt_u32 vcc, 10, v2
                        v_cndmask_b32 v26, v27, v26, vcc""")
                    else:
                        k("s_add_u32 s38, s38, 10240")
                    k("buffer_load_dword v30, v26, s[12:15], s38 offen")
                    k.pend_vm.pop(('v', 30), None)
                pend = pend + [pfs]
            if cb == 3 and 'pfwd4' in G.EXP: pend = pend + [lambda: prefetch_lin(k, 12, WDP, 8*48*5120, 512, 0, 26, 38, dst='v30', full=True)]
            if cb == 8:
                def fg():
                    for e in range(1, 10): k(f"v_add_f32 v{GWR}, v{GWR}, v{GWR+e}")
                    k(f"""v_cmp_gt_u32 vcc, 192, v0
                    v_mov_b32 v21, {2*SS + 1024 - 768}
                    v_mov_b32 v22, {2*SS}
                    v_cndmask_b32 v21, v21, v22, vcc
                    v_lshl_add_u32 v21, v0, 2, v21
                    ds_write_b32 v21, v{GWR}""")
                pend = pend + [fg] + ([] if 'wdp' not in G.EXP else [lambda: prefetch_lin(k, 12, WDP, 8*48*5120, 512, 0, 26, 36, dst='v30', full=True)])
        fill = reads(s + R) if s + R < 40 else []
        if s >= 38:
            if s == 38:
                k(f"""s_mul_i32 s33, s26, 384
                s_add_u32 s33, s33, {2*SS}
                v_lshlrev_b32 v16, 4, v20
                v_add_u32 v16, s33, v16""")
            for a in (2 * (s - 38), 2 * (s - 38) + 1):
                for j in range(3):
                    fill.append(f"ds_read_b128 v[{GWR+16*j+4*a}:{GWR+16*j+4*a+3}], v16 offset:{j*128 + a*32}")
                    fill.append(f"ds_read_b128 v[{SWR+16*j+4*a}:{SWR+16*j+4*a+3}], v16 offset:{1024 + j*128 + a*32}")
        n = min(len(pend), 2)
        fill = fill + pend[:n]; pend = pend[n:]
        mf = []
        for j in range(3):
            w = f"v[{WF+(s%3)*12+j*4}:{WF+(s%3)*12+j*4+3}]"; x = f"v[{XF+(s%3)*4}:{XF+(s%3)*4+3}]"
            d = f"v[{ACC+16*j}:{ACC+16*j+15}]"
            mf.append(f"v_mfma_f32_32x32x16_bf16 {d}, {w}, {x}, {d}")
        interleave(k, mf, fill)
    mstamp(k, 13, 0)
    k(f"""s_mul_i32 s31, s23, 6
    s_mul_i32 s32, s26, 3
    s_add_u32 s31, s31, s32
    s_mul_i32 s32, s34, {2*48*1024}
    s_add_u32 s29, s32, {ACT}
    v_bfe_u32 v3, v2, 4, 1
    v_mul_u32_u24 v4, {48*1024}, v3
    v_and_b32 v3, 15, v2
    v_lshl_add_u32 v4, v3, 4, v4
    v_lshl_add_u32 v4, v20, 8, v4
    s_mov_b32 s35, 0xbfb8aa3b""")
    for j in range(3):
        k(f"""s_add_u32 s32, s31, {j}
        s_lshl_b32 s33, s32, 9
        s_add_u32 s33, s33, s29""")
        r = ACC + 16 * j; gw = GWR + 16 * j; sw = SWR + 16 * j
        T = XF + 8 * (j % 2); O = XF + 16 + 4 * j
        for e in range(16): k(f"v_fmac_f32 v{r+e}, v{gw+e}, v{STT+1}")
        for e in range(16): k(f"v_fmac_f32 v{sw+e}, v{r+e}, v{STT}")
        for e in range(8): k(f"v_mul_f32 v{T+e}, s35, v{sw+e}")
        for e in range(8): k(f"v_exp_f32 v{T+e}, v{T+e}")
        for e in range(8): k(f"v_add_f32 v{T+e}, 1.0, v{T+e}")
        for e in range(8): k(f"v_rcp_f32 v{T+e}, v{T+e}")
        for e in range(8): k(f"v_mul_f32 v{sw+e}, v{sw+e}, v{sw+8+e}")
        for e in range(8): k(f"v_mul_f32 v{sw+e}, v{sw+e}, v{T+e}")
        for e in range(4): k(f"v_cvt_pk_bf16_f32 v{O+e}, v{sw+2*e}, v{sw+2*e+1}")
        k(f"buffer_store_dwordx4 v[{O}:{O+3}], v4, s[12:15], s33 offen sc1")
    k(f"""s_lshl_b32 s22, s22, 7
    s_lshl_b32 s23, s23, 2
    s_add_u32 s22, s22, s23
    s_add_u32 s22, s22, {F4}""")
    mstamp(k, 14, 0); mstamp(k, 15, 7)
    signal(k, 22, "p4")

def gen_mega():
    k = Kern("adaLN_cond__sliding_block__swiglu_ffn__prompt_kernel")
    k(f"""s_cmp_ge_u32 s2, 256
    s_cbranch_scc1 L_mega_end
    s_load_dwordx2 s[84:85], s[0:1], {ARG['ws']}
    s_load_dwordx2 s[86:87], s[0:1], {ARG['x']}
    s_load_dwordx4 s[88:91], s[0:1], {ARG['wqkv']}
    s_load_dwordx4 s[92:95], s[0:1], {ARG['wg']}
    s_load_dwordx2 s[96:97], s[0:1], {ARG['wd']}
    s_load_dwordx2 s[98:99], s[0:1], {ARG['out']}
    s_load_dwordx2 s[80:81], s[0:1], {ARG['dbg']}
    s_load_dwordx4 s[76:79], s[0:1], {ARG['c']}
    s_memrealtime s[4:5]
    v_lshrrev_b32 v1, 6, v0
    v_and_b32 v2, 63, v0
    v_readfirstlane_b32 s3, v1""")
    k.waitall()
    srd(k, 12, 84, NB['ws'])
    k("""s_add_u32 s6, s2, s3
    s_cmp_lg_u32 s6, 0
    s_cbranch_scc1 L_notag
    s_or_b32 s4, s4, 1
    v_mov_b32 v250, 0
    v_mov_b32 v251, s4
    s_mov_b64 exec, 1
    global_store_dword v250, v251, s[80:81] sc1
    s_mov_b64 exec, -1""")
    k.label("L_notag")
    reset(k); k._nop(2)
    if 'nopfcode' not in G.EXP:
        k.raw("""    s_getpc_b64 s[4:5]
L_pcref:
    s_lshr_b32 s6, s2, 3
    s_cmp_lg_u32 s6, 31
    s_cbranch_scc1 L_nopfc
    v_lshlrev_b32 v250, 7, v0
    v_cmp_gt_u32 vcc, L_mega_end-L_pcref, v250
    s_and_saveexec_b64 s[6:7], vcc
    s_cbranch_execz L_nopfc2
    global_load_dword v249, v250, s[4:5]
L_nopfc2:
    s_mov_b64 exec, -1
L_nopfc:""")
    mstamp(k, 0)
    p1(k); mstamp(k, 1)
    p2(k); mstamp(k, 3)
    p35(k, True); mstamp(k, 5)
    p4(k); mstamp(k, 7)
    p35(k, False)
    if MPROF or DPROF: k.waitall()
    mstamp(k, 9)
    k.label("L_mega_end")
    k("s_endpgm")
    return k

def all_kernels():
    return [(gen_mega(), 256, 512, 163840)]

if __name__ == "__main__":
    if len(sys.argv) > 1 and sys.argv[1] == "prof": MPROF = True
    if len(sys.argv) > 1 and sys.argv[1] == "dprof": DPROF = True
    for e in sys.argv[2:]:
        if e.startswith("slp"): SLP = int(e[3:])
        G.EXP.add(e)
    open("mega" + "_".join([""] + sys.argv[2:]) + ".s", "w").write(build_file(all_kernels()))
```

```python
import sys
sys.path.insert(0, "work")
import gen as G
from gen import *

CNT = 0x1BD8000
C1, C2, C3, C4, CWO, CRP = 0, 16, 32, 48, 64, 80
RP = 131072
MPROF = False
LDX = "sc1"

def reset(k):
    k.vmq = []; k.lgq = []; k.pend_vm = {}; k.pend_lg = {}

DPROF = False
def mstamp(k, slot, wave=0):
    if DPROF and slot < 15:
        lab = f"L_ds{slot}_{len(k.lines)}"
        k.raw(f"""    s_cmp_lg_u32 s3, {wave}
    s_cbranch_scc1 {lab}
    s_cmp_lg_u32 s2, 37
    s_cbranch_scc1 {lab}
    s_memrealtime s[100:101]
    s_waitcnt lgkmcnt(0)
    v_mov_b32 v255, s100
    s_load_dwordx2 s[100:101], s[0:1], {ARG['dbg']}
    s_waitcnt lgkmcnt(0)
    v_mov_b32 v254, {4 + 4*slot}
    s_mov_b64 exec, 1
    global_store_dword v254, v255, s[100:101]
    s_mov_b64 exec, -1
{lab}:""")
        k.maxv = max(k.maxv, 255); k.maxs = max(k.maxs, 101)
        return
    if not MPROF: return
    lab = f"L_ms{slot}_{len(k.lines)}"
    k.raw(f"""    s_cmp_lg_u32 s3, {wave}
    s_cbranch_scc1 {lab}
    s_memrealtime s[100:101]
    s_waitcnt lgkmcnt(0)
    s_lshl_b32 s101, s2, 2
    s_add_u32 s101, s101, {G.PROFOFF + slot * 1024}
    v_mov_b32 v255, s100
    v_mov_b32 v254, s101
    s_memtime s[100:101]
    s_waitcnt lgkmcnt(0)
    v_mov_b32 v253, s100
    s_mov_b64 exec, 1
    global_store_dword v254, v255, s[84:85]
    v_add_u32 v254, 16384, v254
    global_store_dword v254, v253, s[84:85]
    s_mov_b64 exec, -1
{lab}:""")
    k.maxv = max(k.maxv, 255); k.maxs = max(k.maxs, 101)
    k.vm_extra = True

FLG = 0x1C40000
NREP = 16; RSTR = 16384
FX, FM, F1, FW, F2, F3, F4, FRP = 0, 2048, 4096, 6144, 8192, 10240, 12288, 14336
MODP = 0x4000
MODP = 0x1BE0000
GSP = 0x1C00000
TAG = 83

def flag_store(k, soff, wave, name):
    k(f"""s_cmp_lg_u32 s3, {wave}
    s_cbranch_scc1 L_sig_{name}
    s_add_u32 s{soff}, s{soff}, {FLG}
    v_lshlrev_b32 v250, 14, v2
    v_add_u32 v250, s{soff}, v250
    v_mov_b32 v251, s{TAG}
    s_mov_b64 exec, 0xffff""")
    k.raw("    global_store_dword v250, v251, s[84:85] sc1")
    k("s_mov_b64 exec, -1")
    k.label(f"L_sig_{name}")
    k._nop(2)

def signal(k, soff, name, wave=0):
    k.waitall()
    k.label(f"L_sigb_{name}")
    k("s_barrier")
    reset(k)
    flag_store(k, soff, wave, name)

SLP = 2
def wait(k, name, poller, voff, nl, barrier=True, slp=None):
    k(f"""s_cmp_lg_u32 s3, {poller}
    s_cbranch_scc1 L_wt_{name}
    s_and_b32 s82, s2, 15
    s_lshl_b32 s82, s82, 14
    s_add_u32 s82, s82, {FLG}
    v_add_u32 v247, s82, v{voff}
    s_mov_b32 s82, 0x200000""")
    if nl < 64:
        if nl <= 32: k(f"s_mov_b64 exec, {(1 << nl) - 1}")
        else: k(f"s_mov_b32 exec_hi, {(1 << (nl - 32)) - 1}")
    k.label(f"L_wl_{name}")
    k.raw(f"""    global_load_dwordx4 v[248:251], v247, s[84:85] sc1
    s_waitcnt vmcnt(0)
    v_xor_b32 v248, s{TAG}, v248
    v_xor_b32 v249, s{TAG}, v249
    v_xor_b32 v250, s{TAG}, v250
    v_xor_b32 v251, s{TAG}, v251
    v_or3_b32 v248, v248, v249, v250
    v_or_b32 v248, v248, v251
    v_cmp_ne_u32 vcc, 0, v248
    s_nop 4
    s_cbranch_vccz L_wd_{name}
    s_sleep {slp or SLP}
    s_sub_u32 s82, s82, 1
    s_cmp_lg_u32 s82, 0
    s_cbranch_scc1 L_wl_{name}
L_wd_{name}:
    s_mov_b64 exec, -1""")
    k.label(f"L_wt_{name}")
    k._nop(2)
    if barrier: k("s_barrier")

def wait_s(k, name, poller, soffs, sb, barrier=True):
    n = len(soffs)
    txt = f"""    s_cmp_lg_u32 s3, {poller}
    s_cbranch_scc1 L_wt_{name}
    s_and_b32 s82, s2, 15
    s_lshl_b32 s82, s82, 14
    s_add_u32 s82, s82, {FLG}
    s_add_u32 s4, s84, s82
    s_addc_u32 s5, s85, 0
    s_mov_b32 s6, s{TAG}
    s_mov_b32 s7, s{TAG}
    s_mov_b32 s82, 0x200000
L_wl_{name}:
"""
    for i, so in enumerate(soffs):
        txt += f"    s_load_dwordx16 s[{sb+16*i}:{sb+16*i+15}], s[4:5], s{so} glc\n"
    txt += "    s_waitcnt lgkmcnt(0)\n"
    for j in range(8 * n):
        txt += f"    s_xor_b64 s[{sb+2*j}:{sb+2*j+1}], s[{sb+2*j}:{sb+2*j+1}], s[6:7]\n"
    m = 8 * n
    for j in range(1, m):
        txt += f"    s_or_b64 s[{sb}:{sb+1}], s[{sb}:{sb+1}], s[{sb+2*j}:{sb+2*j+1}]\n"
    txt += f"""    s_cbranch_scc0 L_wt_{name}
    s_sleep 1
    s_sub_u32 s82, s82, 1
    s_cmp_lg_u32 s82, 0
    s_cbranch_scc1 L_wl_{name}
L_wt_{name}:"""
    k.raw(txt)
    k.maxs = max(k.maxs, sb + 16 * n)
    k._nop(2)
    if barrier: k("s_barrier")

def get_tag(k, name):
    k.raw(f"""    s_mov_b32 s82, 0x200000
    v_mov_b32 v250, 0
L_tg_{name}:
    s_waitcnt vmcnt(0)
    v_readfirstlane_b32 s{TAG}, v252
    s_nop 3
    s_cmp_lg_u32 s{TAG}, 0
    s_cbranch_scc1 L_tgd_{name}
    global_load_dword v252, v250, s[80:81] sc1
    s_sub_u32 s82, s82, 1
    s_cmp_lg_u32 s82, 0
    s_cbranch_scc1 L_tg_{name}
L_tgd_{name}:""")
    reset(k)

def gemv_unit(k, name, first, VB=0):
    k(f"""s_lshr_b32 s36, s2, 2             ; cgp
    s_and_b32 s37, s2, 3
    s_lshl_b32 s37, s37, 1
    s_and_b32 s38, s3, 1
    s_add_u32 s37, s37, s38           ; ke
    s_mul_i32 s38, s37, {80*7680}
    s_lshl_b32 s39, s36, 7
    s_add_u32 s38, s38, s39
    s_mul_i32 s39, s37, 160
    v_lshrrev_b32 v1, 3, v2
    v_and_b32 v3, 7, v2
    v_mul_u32_u24 v4, 7680, v1
    v_lshl_add_u32 v4, v3, 4, v4
    v_lshlrev_b32 v5, 1, v1""")
    srd(k, 16, 78, NB['wmod']); srd(k, 44, 76, NB['c'])
    for i in range(10):
        k(f"buffer_load_dwordx4 v[{8+4*i}:{11+4*i}], v4, s[16:19], s38 offen")
        if i < 9: k(f"s_add_u32 s38, s38, {8*7680}")
    for i in range(10):
        k(f"buffer_load_ushort v{50+i}, v5, s[44:47], s39 offen offset:{16*i}")
    k.raw("    v_mov_b32 v250, 0\n    global_load_dword v252, v250, s[80:81] sc1")
    get_tag(k, name)
    for i in range(10):
        c = 50 + i
        k(f"""v_lshlrev_b32 v{c}, 16, v{c}
        v_mul_f32 v{c+10}, 0xbfb8aa3b, v{c}""")
    for i in range(10): k(f"v_exp_f32 v{60+i}, v{60+i}")
    for i in range(10): k(f"v_add_f32 v{60+i}, 1.0, v{60+i}")
    for i in range(10): k(f"v_rcp_f32 v{60+i}, v{60+i}")
    for i in range(10): k(f"v_mul_f32 v{50+i}, v{50+i}, v{60+i}")
    for i in range(10): bf16r(k, 50 + i, 50 + i)
    for j in range(8): k(f"v_mov_b32 v{72+j}, 0")
    for i in range(10):
        for d in range(4):
            k(f"v_lshlrev_b32 v{80+2*d}, 16, v{8+4*i+d}")
            k(f"v_and_b32 v{81+2*d}, 0xffff0000, v{8+4*i+d}")
        for j in range(8): k(f"v_fmac_f32 v{72+j}, v{80+j}, v{50+i}")
    for j in range(8): k(f"v_add_f32_dpp v{72+j}, v{72+j}, v{72+j} row_ror:8 row_mask:0xf bank_mask:0xf")
    for sw in ("16", "32"):
        for j in range(8): k(f"v_mov_b32 v{80+j}, v{72+j}")
        for j in range(8): k(f"v_permlane{sw}_swap_b32 v{72+j}, v{80+j}")
        for j in range(8): k(f"v_add_f32 v{72+j}, v{72+j}, v{80+j}")
    k(f"""s_mul_i32 s38, s37, 15360
    s_lshl_b32 s39, s36, 8
    s_add_u32 s38, s38, s39
    s_add_u32 s38, s38, {MODP}
    v_lshlrev_b32 v4, 5, v2
    s_mov_b64 exec, 0xff
    buffer_store_dwordx4 v[72:75], v4, s[12:15], s38 offen sc1
    buffer_store_dwordx4 v[76:79], v4, s[12:15], s38 offen offset:16 sc1
    s_mov_b64 exec, -1
    s_lshl_b32 s36, s36, 3
    s_add_u32 s36, s36, s37
    s_lshl_b32 s36, s36, 2
    s_add_u32 s36, s36, {FLG + FM}""")

def p0(k):
    k("""s_cmp_ge_u32 s3, 6
    s_cbranch_scc1 L_p0_gemv""")
    st = snap(k)
    srd(k, 16, 86, NB['x'])
    k("""s_lshl_b32 s36, s2, 3
    s_and_b32 s37, s3, 1
    s_lshl_b32 s37, s37, 2
    s_add_u32 s36, s36, s37
    v_lshrrev_b32 v1, 4, v2
    v_add_u32 v1, s36, v1            ; row
    v_and_b32 v3, 15, v2
    v_mul_u32_u24 v4, 1280, v1
    v_lshl_add_u32 v4, v3, 4, v4""")
    for i in range(5):
        k(f"buffer_load_dwordx4 v[{8+4*i}:{11+4*i}], v4, s[16:19], 0 offen offset:{256*i}")
    k.raw("    v_mov_b32 v250, 0\n    global_load_dword v252, v250, s[80:81] sc1")
    get_tag(k, "ln")
    for i in range(20):
        k(f"v_lshlrev_b32 v{32+2*i}, 16, v{8+i}")
        k(f"v_and_b32 v{33+2*i}, 0xffff0000, v{8+i}")
    k("v_add_f32 v4, v32, v33"); k("v_add_f32 v5, v34, v35")
    for i in range(4, 40, 2):
        k(f"v_add_f32 v4, v4, v{32+i}"); k(f"v_add_f32 v5, v5, v{33+i}")
    k("v_add_f32 v4, v4, v5")
    row16_sum(k, 4)
    k("v_mul_f32 v4, 0x3acccccd, v4")
    k("v_mov_b32 v5, 0"); k("v_mov_b32 v28, 0")
    for i in range(0, 40, 2):
        k(f"v_sub_f32 v6, v{32+i}, v4"); k(f"v_sub_f32 v7, v{33+i}, v4")
        k(f"v_fmac_f32 v5, v6, v6"); k(f"v_fmac_f32 v28, v7, v7")
    k("v_add_f32 v5, v5, v28")
    row16_sum(k, 5)
    k("v_mul_f32 v5, 0x3acccccd, v5")
    bf16r(k, 4, 4); bf16r(k, 5, 5)
    k("v_add_f32 v5, 0x3727c5ac, v5")
    bf16r(k, 5, 5)
    k("v_sqrt_f32 v5, v5")
    bf16r(k, 5, 5)
    k("v_rcp_f32 v5, v5")
    for i in range(20):
        k(f"v_sub_f32 v{32+2*i}, v{32+2*i}, v4")
        k(f"v_sub_f32 v{33+2*i}, v{33+2*i}, v4")
    for i in range(20): k(f"v_cvt_pk_bf16_f32 v{8+i}, v{32+2*i}, v{33+2*i}")
    for i in range(20):
        k(f"v_lshlrev_b32 v{32+2*i}, 16, v{8+i}")
        k(f"v_and_b32 v{33+2*i}, 0xffff0000, v{8+i}")
    for i in range(40): k(f"v_mul_f32 v{32+i}, v{32+i}, v5")
    for i in range(20): k(f"v_cvt_pk_bf16_f32 v{8+i}, v{32+2*i}, v{33+2*i}")
    for i in range(20):
        k(f"v_lshlrev_b32 v{32+2*i}, 16, v{8+i}")
        k(f"v_and_b32 v{33+2*i}, 0xffff0000, v{8+i}")
    for i in range(20): k(f"v_cvt_pkrtz_f16_f32 v{8+i}, v{32+2*i}, v{33+2*i}")
    k(f"""v_lshrrev_b32 v6, 5, v1
    v_mul_u32_u24 v6, 40960, v6
    v_lshrrev_b32 v7, 1, v3
    v_lshl_add_u32 v6, v7, 10, v6
    v_and_b32 v7, 1, v3
    v_lshl_add_u32 v6, v7, 9, v6
    v_and_b32 v7, 31, v1
    v_lshl_add_u32 v6, v7, 4, v6""")
    for i in range(5):
        k(f"s_mov_b32 s36, {XN + i*8192}")
        k(f"buffer_store_dwordx4 v[{8+4*i}:{11+4*i}], v6, s[12:15], s36 offen sc1")
    k(f"""s_lshl_b32 s36, s2, 1
    s_and_b32 s37, s3, 1
    s_add_u32 s36, s36, s37
    s_lshl_b32 s36, s36, 2
    s_add_u32 s36, s36, {FLG + FX}
    s_branch L_p0_flag""")
    k.label("L_p0_gemv")
    restore(k, st)
    k(f"""s_cmp_ge_u32 s2, 240
    s_cbranch_scc1 L_p0_skip""")
    if 'nodly' not in G.EXP:
        k("""s_cmp_lt_u32 s2, 80
        s_cbranch_scc1 L_p0_nd""")
        k.raw("    v_mov_b32 v250, 0\n    global_load_dword v252, v250, s[80:81] sc1")
        get_tag(k, "dly")
        if 'late' in G.EXP: k("s_barrier")
        if 'dly2' in G.EXP or 'dly3' in G.EXP:
            k.raw("    global_load_dword v252, v250, s[80:81] sc1\n    s_waitcnt vmcnt(0)")
        if 'dly3' in G.EXP:
            k.raw("    global_load_dword v252, v250, s[80:81] sc1\n    s_waitcnt vmcnt(0)\n    global_load_dword v252, v250, s[80:81] sc1\n    s_waitcnt vmcnt(0)")
        k.label("L_p0_nd")
    gemv_unit(k, "gv", True)
    k.label("L_p0_flag")
    k.waitall()
    k(f"""v_lshlrev_b32 v250, 14, v2
    v_add_u32 v250, s36, v250
    v_mov_b32 v251, s{TAG}
    s_mov_b64 exec, 0xffff
    global_store_dword v250, v251, s[84:85] sc1
    s_mov_b64 exec, -1
    s_branch L_p0_done""")
    k.label("L_p0_skip")
    k.raw("    v_mov_b32 v250, 0\n    global_load_dword v252, v250, s[80:81] sc1")
    get_tag(k, "sk")
    k.label("L_p0_done")
    reset(k); k._nop(4)
    if 'late' in G.EXP:
        k("""s_cmp_lt_u32 s3, 6
        s_cbranch_scc1 L_p0_pb
        s_cmp_lt_u32 s2, 80
        s_cbranch_scc1 L_p0_pb
        s_cmp_lt_u32 s2, 240
        s_cbranch_scc1 L_p0_nopb""")
        k.label("L_p0_pb")
    k("s_barrier")
    if 'late' in G.EXP: k.label("L_p0_nopb")

def p1(k):
    NSLOT = 6; SS = 16384; NT = 2; GRP = 4
    XHB = 6 * SS; GSB_L = XHB + 49152
    k(f"""s_and_b32 s20, s2, 7
    s_lshr_b32 s21, s2, 3
{MAP14}
    s_mov_b32 s24, s3
    s_mov_b32 s30, 0xffff0000
    v_lshrrev_b32 v20, 5, v2          ; h
    v_lshlrev_b32 v5, 4, v2
    s_cmp_ge_u32 s24, 4
    s_cbranch_scc1 L_p1_prod
    s_cmp_ge_u32 s23, 15
    s_cbranch_scc1 L_p1_idle""")
    st0 = snap(k)
    ACC = 32; XF = 128; WF = 144; TMP = 168
    srd(k, 8, 88, NB['wqkv'])
    k(f"""v_lshrrev_b32 v13, 4, v2
    v_and_b32 v14, 15, v2
    v_lshlrev_b32 v15, 2, v13
    v_xor_b32 v14, v14, v15
    v_mul_u32_u24 v13, 3840, v13
    v_lshl_add_u32 v13, v14, 4, v13
    s_mul_i32 s40, s24, {16*3840}
    s_lshl_b32 s41, s23, 8
    s_add_u32 s40, s40, s41
    s_lshl_b32 s41, s24, 12""")
    dma_ids = {}
    def wdma(c):
        slot = c % NSLOT
        out = []
        for i in range(4):
            def f(i=i):
                k(f"s_add_u32 m0, s41, {slot*SS + i*1024}")
                k(f"s_add_u32 s42, s40, {(64*c + 4*i)*3840}")
                dma_ids[c] = k(f"buffer_load_dwordx4 v13, s[8:11], s42 offen lds")
            out.append(f)
        return out
    LAW = int([e for e in G.EXP if e.startswith('law')][0][3:]) if any(e.startswith('law') for e in G.EXP) else 3
    k.raw("    v_mov_b32 v250, 0\n    global_load_dword v252, v250, s[80:81] sc1")
    get_tag(k, "cons")
    k("""v_mov_b32 v250, 163824
    v_mov_b32 v251, 0
    ds_write_b32 v250, v251""")
    k.wait_lg(0)
    k("s_barrier")
    NPRE = int([e for e in G.EXP if e.startswith('npre')][0][4:]) if any(e.startswith('npre') for e in G.EXP) else 2
    for c in range(NPRE):
        for f in wdma(c): f()
    if NPRE < LAW:
        k.raw(f"""    v_mov_b32 v250, 163824
L_p1_cspin:
    ds_read_b32 v251, v250
    s_waitcnt lgkmcnt(0)
    v_readfirstlane_b32 s82, v251
    s_nop 3
    s_cmp_lg_u32 s82, 0
    s_cbranch_scc1 L_p1_cgo
    s_sleep 2
    s_branch L_p1_cspin
L_p1_cgo:""")
    for c in range(NPRE, LAW):
        for f in wdma(c): f()
    k(f"""s_lshr_b32 s25, s24, 1            ; tm
    s_and_b32 s26, s24, 1             ; tn
    v_bfe_u32 v21, v2, 4, 1
    v_bfe_u32 v22, v2, 2, 2
    v_and_b32 v23, 3, v2
    v_lshlrev_b32 v24, 11, v20
    v_lshl_add_u32 v24, v22, 8, v24
    v_lshl_add_u32 v24, v21, 5, v24
    v_lshl_add_u32 v24, v23, 3, v24
    s_lshl_b32 s27, s26, 1""")
    for j in range(2):
        k(f"s_add_u32 s28, s27, {j}")
        k(f"v_xor_b32 v25, s28, v22")
        k(f"v_lshl_add_u32 v{8+j*2}, v25, 6, v24")
        k(f"v_add_u32 v{9+j*2}, {GRP*SS}, v{8+j*2}")
    k(f"""s_lshl_b32 s27, s25, 11
    s_add_u32 s27, s27, {XHB}
    v_add_u32 v12, s27, v5""")
    if 'pf1' in G.EXP:
        prefetch(k, 8, 256, 0, 3840, 640, 16, 2048, 100, 44)
    if 'touch' in G.EXP:
        k(f"""s_mul_i32 s46, s22, 15
        s_add_u32 s46, s46, s23
        s_lshl_b32 s46, s46, 13
        v_lshlrev_b32 v104, 7, v2
        s_cmp_eq_u32 s24, 0
        s_cselect_b32 s48, s92, s94
        s_cselect_b32 s49, s93, s95
        s_cmp_ge_u32 s24, 2
        s_cselect_b32 s48, s96, s48
        s_cselect_b32 s49, s97, s49
        s_and_b32 s49, s49, 0xffff
        s_mov_b32 s50, {NB['wg']}
        s_mov_b32 s51, 0x00020000
        buffer_load_dword v105, v104, s[48:51], s46 offen""")
    if 'ft' in G.EXP:
        k(f"""s_and_b32 s44, s2, 15
        s_lshl_b32 s44, s44, 14
        s_add_u32 s44, s44, {FLG}
        v_lshlrev_b32 v100, 7, v0
        v_mov_b32 v101, 0x7ffffff0
        v_cmp_gt_u32 vcc, 128, v0
        v_cndmask_b32 v100, v101, v100, vcc
        buffer_load_dword v102, v100, s[12:15], s44 offen""")
    for i in range(64): k(f"v_mov_b32 v{ACC+i}, 0")
    def reads(s):
        c = s // 4; ks = s % 4; slot = c % NSLOT
        grp = slot // GRP; so = (slot % GRP) * SS
        out = []
        for i in range(2):
            d = XF + (s % 2) * 8 + i * 4
            out.append(f"ds_read_b128 v[{d}:{d+3}], v12 offset:{(c%3)*16384 + ks*4096 + i*1024}")
        for j in range(NT):
            for a in range(2):
                d = WF + (s % 2) * 12 + j * 4 + a * 2
                out.append(f"ds_read_b64_tr_b16 v[{d}:{d+1}], v{8+j*2+grp} offset:{so + ks*4096 + a*1024}")
        return [out[0]] + out[2:4] + [out[1]] + out[4:]
    k.wait_vm_id(dma_ids[0])
    k("s_barrier")
    for t in reads(0): k(t)
    k("s_cmp_ge_u32 s23, 10")
    k("s_cbranch_scc1 L_p1_v")
    st1 = snap(k); dma1 = dict(dma_ids)
    def mainloop(swap):
        pend = wdma(LAW)
        for s in range(40):
            c = s // 4
            if s % 4 == 3 and c < 9:
                k.wait_vm_id(dma_ids[c + 1]); k.wait_lg(0)
                k("s_barrier")
                if c + 1 + LAW <= 9: pend = wdma(c + 1 + LAW)
            fill = reads(s + 1) if s + 1 < 40 else []
            nd = min(len(pend), 2)
            fill = fill + pend[:nd]; pend = pend[nd:]
            fi = 0
            for j in range(NT):
                for i in range(2):
                    w = f"v[{WF+(s%2)*12+j*4}:{WF+(s%2)*12+j*4+3}]"; x = f"v[{XF+(s%2)*8+i*4}:{XF+(s%2)*8+i*4+3}]"
                    d0 = ACC + 16 * (i * NT + j); d = f"v[{d0}:{d0+15}]"
                    k(f"v_mfma_f32_32x32x16_bf16 {d}, {x if swap else w}, {w if swap else x}, {d}")
                    for _ in range(2):
                        if fi < len(fill):
                            f = fill[fi]; fi += 1
                            if callable(f): f()
                            else: k(f)
    mainloop(False)
    k(f"""s_cmp_ge_u32 s23, 5
    s_cselect_b32 s29, {KB-QB}, 0
    s_cselect_b32 s31, 5, 0
    s_add_u32 s29, s29, {QB}
    s_sub_u32 s31, s23, s31
    s_lshl_b32 s31, s31, 12
    s_lshl_b32 s32, s26, 11
    s_add_u32 s29, s29, s31
    s_add_u32 s29, s29, s32
    s_lshl_b32 s32, s22, 3
    s_lshl_b32 s33, s25, 2
    s_add_u32 s32, s32, s33
    s_mul_i32 s32, s32, 20480
    s_add_u32 s29, s29, s32
    s_add_u32 s31, s29, 40960
    v_bfe_u32 v3, v2, 4, 1
    v_mul_u32_u24 v4, 20480, v3
    v_and_b32 v3, 15, v2
    v_lshl_add_u32 v4, v3, 4, v4
    v_lshl_add_u32 v4, v20, 8, v4""")
    n = 0
    for j in range(2):
        for i in range(2):
            for ap in range(2):
                r = ACC + 16 * (i * NT + j) + 8 * ap
                t = TMP + 4 * (n % 4); n += 1
                for e in range(4): k(f"v_cvt_pk_bf16_f32 v{t+e}, v{r+2*e}, v{r+2*e+1}")
                k(f"v_permlane32_swap_b32 v{t}, v{t+2}")
                k(f"v_permlane32_swap_b32 v{t+1}, v{t+3}")
                k(f"buffer_store_dwordx4 v[{t}:{t+3}], v4, s[12:15], s{29 if i == 0 else 31} offen offset:{j*1024 + ap*512} sc1")
    k("s_branch L_p1_done")
    k.label("L_p1_v")
    restore(k, st1); dma_ids.clear(); dma_ids.update(dma1)
    mainloop(True)
    k(f"""s_sub_u32 s31, s23, 10
    s_lshl_b32 s31, s31, 7
    s_lshl_b32 s32, s26, 6
    s_add_u32 s31, s31, s32
    s_lshl_b32 s32, s22, 2
    s_lshl_b32 s33, s25, 1
    s_add_u32 s32, s32, s33
    s_mul_i32 s32, s32, 1280
    s_add_u32 s29, s32, {VB}
    v_and_b32 v3, 31, v2
    v_add_u32 v5, s31, v3
    s_mov_b32 s33, 81920""")
    n = 0
    for j in range(2):
        k(f"""v_add_u32 v6, {32*j}, v5
        v_mul_u32_u24 v7, 0xcccd, v6
        v_lshrrev_b32 v7, 20, v7
        v_mul_u32_u24 v8, 20, v7
        v_sub_u32 v8, v6, v8
        v_mul_lo_u32 v7, v7, s33
        v_lshl_add_u32 v7, v8, 4, v7
        v_cmp_gt_u32 vcc, 16, v8
        v_lshlrev_b32 v9, 8, v20
        v_lshlrev_b32 v10, 6, v20
        v_add_u32 v10, 768, v10
        v_cndmask_b32 v9, v10, v9, vcc
        v_add_u32 v7, v7, v9
        v_mov_b32 v9, 128
        v_mov_b32 v10, 512
        v_cndmask_b32 v9, v9, v10, vcc
        v_add_u32 v9, v7, v9""")
        for i in range(2):
            for a1 in range(2):
                t = TMP + 4 * (n % 4); n += 1
                r0 = ACC + 16 * (i * NT + j) + 4 * a1; r1 = r0 + 8
                k(f"v_cvt_pk_bf16_f32 v{t}, v{r0}, v{r0+1}")
                k(f"v_cvt_pk_bf16_f32 v{t+1}, v{r0+2}, v{r0+3}")
                k(f"v_cvt_pk_bf16_f32 v{t+2}, v{r1}, v{r1+1}")
                k(f"v_cvt_pk_bf16_f32 v{t+3}, v{r1+2}, v{r1+3}")
                k(f"buffer_store_dwordx4 v[{t}:{t+3}], v{7 if a1 == 0 else 9}, s[12:15], s29 offen offset:{1280*i} sc1")
    k("s_branch L_p1_done")
    k.label("L_p1_prod")
    restore(k, st0)
    GSR = 32; TMP = 64; OUT = 80; XR = 104; D = 4; LAX = 2
    p0(k)
    k(f"""s_cmp_ge_u32 s23, 15
    s_cbranch_scc1 L_sigb_p1
    s_sub_u32 s24, s24, 4
    v_lshrrev_b32 v20, 5, v2
    v_lshlrev_b32 v5, 4, v2
    s_lshl_b32 s25, s22, 7
    s_add_u32 s25, s25, {FX - 40*16}
    v_add_u32 v6, s25, v5
    v_add_u32 v7, {FM}, v5
    v_cmp_gt_u32 vcc, 40, v2
    v_cndmask_b32 v6, v6, v7, vcc""")
    wait(k, "p1", 4, 6, 48, barrier=False)
    k.raw(f"""    v_mov_b32 v250, 163824
    s_cmp_lg_u32 s3, 4
    s_cbranch_scc1 L_p1_lspin
    v_mov_b32 v251, 1
    ds_write_b32 v250, v251
    s_branch L_p1_lgo
L_p1_lspin:
    ds_read_b32 v251, v250
    s_waitcnt lgkmcnt(0)
    v_readfirstlane_b32 s82, v251
    s_nop 3
    s_cmp_lg_u32 s82, 0
    s_cbranch_scc1 L_p1_lgo
    s_sleep 1
    s_branch L_p1_lspin
L_p1_lgo:
    s_waitcnt lgkmcnt(0)""")
    k(f"""v_lshrrev_b32 v3, 2, v2
    v_and_b32 v4, 3, v2
    v_lshlrev_b32 v6, 8, v3
    v_lshl_add_u32 v6, v4, 4, v6
    v_cmp_gt_u32 vcc, 40, v2
    v_mov_b32 v7, 0x7ffffff0
    v_cndmask_b32 v6, v7, v6, vcc
    s_lshl_b32 s25, s24, 6
    s_add_u32 s25, s25, {MODP}
    s_mul_i32 s26, s22, {4*40960}
    s_lshl_b32 s27, s24, 10
    s_add_u32 s26, s26, s27
    s_add_u32 s26, s26, {XN}""")
    for e in range(8):
        k(f"buffer_load_dwordx4 v[{168+8*e}:{171+8*e}], v6, s[12:15], s25 offen offset:2560 {LDX}")
        k(f"buffer_load_dwordx4 v[{172+8*e}:{175+8*e}], v6, s[12:15], s25 offen {LDX}")
        if e < 7: k("s_add_u32 s25, s25, 15360")
    wr_ids = {}
    def issue(c):
        if c > 9: return
        for t in range(4):
            r = XR + (c % D) * 16 + t * 4
            k(f"s_add_u32 s29, s26, {t*40960 + c*4096}")
            k(f"buffer_load_dwordx4 v[{r}:{r+3}], v5, s[12:15], s29 offen {LDX}")
    for c in range(LAX): issue(c)
    for e in range(1, 8):
        for q in range(8): k(f"v_add_f32 v{168+q}, v{168+q}, v{168+8*e+q}")
    for q in range(8): bf16r(k, GSR + q, 168 + q)
    for q in range(4):
        k(f"v_add_f32 v{GSR+q}, 1.0, v{GSR+q}")
        bf16r(k, GSR + q, GSR + q)
    k(f"""s_mul_i32 s25, s24, 1280
    s_add_u32 s25, s25, {GSB_L}
    v_lshlrev_b32 v14, 7, v3
    v_lshrrev_b32 v15, 1, v4
    v_lshl_add_u32 v14, v15, 6, v14
    v_and_b32 v15, 1, v4
    v_lshl_add_u32 v14, v15, 4, v14
    v_add_u32 v14, s25, v14
    v_cmp_gt_u32 vcc, 40, v2
    s_and_saveexec_b64 s[34:35], vcc
    ds_write_b128 v14, v[{GSR}:{GSR+3}]
    ds_write_b128 v14, v[{GSR+4}:{GSR+7}] offset:32
    s_mov_b64 exec, s[34:35]
    v_lshlrev_b32 v15, 6, v20
    v_add_u32 v15, s25, v15
    s_lshl_b32 s25, s24, 12
    s_add_u32 s25, s25, {XHB}
    v_add_u32 v16, s25, v5""")
    k.wait_lg(0)
    def gs_reads(c):
        b = GSR + (c % 2) * 16
        for i in range(4): k(f"ds_read_b128 v[{b+4*i}:{b+4*i+3}], v15 offset:{c*128 + 16*i}")
    def norm(c):
        b = GSR + (c % 2) * 16
        for t in range(4):
            r = XR + (c % D) * 16 + t * 4; o = OUT + t * 4; T = TMP + (t % 2) * 8
            for d in range(8):
                k(f"v_fma_mix_f32 v{T+d}, v{r+d//2}, v{b+d}, v{b+8+d} op_sel:[{d%2},0,0] op_sel_hi:[1,0,0]")
            for d in range(4): k(f"v_cvt_pk_bf16_f32 v{o+d}, v{T+2*d}, v{T+2*d+1}")
            wr_ids[c] = k(f"ds_write_b128 v16, v[{o}:{o+3}] offset:{(c%3)*16384 + t*1024}")
    gs_reads(0); gs_reads(1)
    issue(LAX)
    norm(0)
    issue(LAX + 1)
    gs_reads(2)
    k.wait_lg_id(wr_ids[0])
    k("s_barrier")
    norm(1)
    SCR = 81920; GSL = 152576
    for p in range(9):
        issue(p + 2 + LAX)
        if p == 6:
            k(f"""s_mul_i32 s46, s22, 15
            s_add_u32 s46, s46, s23           ; unit 0..239
            s_lshl_b32 s47, s46, 13
            v_lshlrev_b32 v168, 7, v2
            s_and_b32 s52, s2, 15
            s_lshl_b32 s52, s52, 14
            s_add_u32 s52, s52, {FLG + F1}
            s_cmp_eq_u32 s24, 9
            s_cselect_b32 s48, s96, s84
            s_cselect_b32 s49, s97, s85
            s_cselect_b32 s50, {NB['wd']}, s14
            s_cselect_b32 s47, s47, s52
            s_and_b32 s49, s49, 0xffff
            s_mov_b32 s51, 0x00020000
            s_cmp_eq_u32 s24, 1
            s_cselect_b32 s52, 8192, 0
            s_add_u32 s47, s47, s52
            buffer_load_dword v169, v168, s[48:51], s47 offen""")
        if p + 3 <= 9: gs_reads(p + 3)
        if p + 2 <= 9: norm(p + 2)
        k.wait_lg_id(wr_ids[p + 1])
        k("s_barrier")
    k("s_branch L_sigb_p1")
    k.label("L_p1_idle")
    restore(k, st0)
    k("s_barrier")
    k.raw("    v_mov_b32 v250, 0\n    global_load_dword v252, v250, s[80:81] sc1")
    get_tag(k, "idle")
    k(f"""s_cmp_eq_u32 s24, 3
    s_cbranch_scc1 L_p1_fin
    s_nop 0""")
    k(f"""s_lshl_b32 s16, s24, 4
    s_add_u32 s16, s16, s22
    s_cmp_ge_u32 s16, 40
    s_cbranch_scc1 L_p1_done
    s_mul_i32 s17, s24, 20480
    s_mul_i32 s20, s16, 26
    s_lshr_b32 s20, s20, 8
    s_mul_i32 s21, s20, 10
    s_sub_u32 s21, s16, s21
    s_mul_i32 s25, s20, {160*1280}
    s_lshl_b32 s26, s21, 7
    s_add_u32 s25, s25, s26
    v_lshrrev_b32 v8, 3, v2
    v_mul_u32_u24 v8, 1280, v8
    v_and_b32 v9, 7, v2
    v_lshl_add_u32 v8, v9, 4, v8""")
    srd(k, 28, 90, NB['wo'])
    for i in range(20):
        k(f"s_add_u32 m0, s17, {1024*i}")
        k(f"buffer_load_dwordx4 v8, s[28:31], s25 offen lds")
        k(f"s_add_u32 s25, s25, {8*1280}")
    k("""v_lshrrev_b32 v4, 4, v2
    v_bfe_u32 v5, v2, 2, 2
    v_and_b32 v6, 3, v2
    v_lshlrev_b32 v7, 4, v2""")
    for sp in range(5):
        k(f"""v_add_u32 v9, {4*sp}, v4
        v_mul_u32_u24 v10, 52, v9
        v_lshrrev_b32 v10, 8, v10
        v_mul_u32_u24 v10, 20, v10
        v_lshl_add_u32 v10, v9, 2, v10
        v_add_u32 v10, v10, v5
        v_lshlrev_b32 v10, 7, v10
        v_lshl_add_u32 v10, v6, 3, v10
        v_add_u32 v{12+sp}, s17, v10""")
    k.wait_vm(0)
    k(f"""s_mul_i32 s20, s20, {5*5120}
    s_add_u32 s20, s20, {WOP}
    s_lshl_b32 s21, s21, 2""")
    for f in range(4):
        k(f"""s_add_u32 s32, s21, {f}
        s_mul_i32 s33, s32, 52
        s_lshr_b32 s33, s33, 8
        s_mul_i32 s34, s33, 5
        s_sub_u32 s34, s32, s34
        s_mul_i32 s33, s33, {20*5120}
        s_lshl_b32 s34, s34, 10
        s_add_u32 s33, s33, s34
        s_add_u32 s33, s33, s20""")
        for sp in range(5):
            d = 24 + (f % 2) * 20 + sp * 4
            for a_ in range(2):
                k(f"ds_read_b64_tr_b16 v[{d+2*a_}:{d+2*a_+1}], v{12+sp} offset:{a_*2560 + f*32}")
        for sp in range(5):
            d = 24 + (f % 2) * 20 + sp * 4
            k(f"buffer_store_dwordx4 v[{d}:{d+3}], v7, s[12:15], s33 offen sc1")
            if sp < 4: k(f"s_add_u32 s33, s33, 5120")
    k("s_branch L_p1_done")
    k.label("L_p1_fin")
    reset(k)
    k(f"v_add_u32 v6, {FM + 640}, v5")
    wait(k, "fin0", 3, 6, 64, barrier=False, slp=16)
    k(f"v_add_u32 v6, {FM + 640 + 256}, v5")
    wait(k, "fin1", 3, 6, 64, barrier=False, slp=16)
    k(f"""s_mul_i32 s25, s22, 640
    s_add_u32 s26, s25, {MODP + 5120}
    v_mov_b32 v7, 0x7ffffff0
    v_cmp_gt_u32 vcc, 40, v2
    v_cndmask_b32 v6, v7, v5, vcc""")
    for e in range(8):
        k(f"buffer_load_dwordx4 v[{32+4*e}:{35+4*e}], v6, s[12:15], s26 offen {LDX}")
        if e < 7: k("s_add_u32 s26, s26, 15360")
    for e in range(1, 8):
        for q in range(4): k(f"v_add_f32 v{32+q}, v{32+q}, v{32+4*e+q}")
    for q in range(4): bf16r(k, 32 + q, 32 + q)
    k("""s_lshr_b32 s27, s22, 2
    s_cmp_lg_u32 s27, 2
    s_cbranch_scc1 L_p1_fin2""")
    for q in range(4):
        k(f"v_add_f32 v{32+q}, 1.0, v{32+q}")
        bf16r(k, 32 + q, 32 + q)
    k.label("L_p1_fin2")
    k._nop(2)
    k(f"""s_add_u32 s26, s25, {MOD + 5120}
    buffer_store_dwordx4 v[32:35], v6, s[12:15], s26 offen sc1""")
    k.label("L_p1_done")
    reset(k); k._nop(12)
    k.waitall()
    k.label("L_sigb_p1")
    k("s_barrier")
    reset(k)
    k(f"""s_lshl_b32 s36, s22, 7
    s_lshl_b32 s37, s23, 2
    s_add_u32 s36, s36, s37
    s_add_u32 s36, s36, {F1}""")
    flag_store(k, 36, 0, "p1")
    k(f"""s_cmp_lt_u32 s23, 15
    s_cbranch_scc1 L_p1_nofw
    s_lshl_b32 s36, s22, 2
    s_add_u32 s36, s36, {FW}""")
    flag_store(k, 36, 1, "p1w")
    k.label("L_p1_nofw")
    k("s_mov_b32 s61, s23")

def p2(k):
    KL = 0; VL = 30720
    S = [24, 96]
    QF = 168; KF = 176; T = 192; VF = 60; O = [84, 132]
    k(f"""s_and_b32 s20, s2, 7
    s_lshl_b32 s21, s20, 1
    s_bfe_u32 s20, s2, 0x10003
    s_add_u32 s21, s21, s20           ; m
    s_lshr_b32 s22, s2, 4             ; qb
    s_mov_b32 s24, s3
    v_and_b32 v3, 15, v2
    v_lshrrev_b32 v4, 4, v2
    v_lshlrev_b32 v7, 4, v2""")
    k(f"""s_lshl_b32 s25, s22, 3
    s_add_u32 s25, s25, s24
    s_mul_i32 s26, s21, 1280
    s_lshl_b32 s27, s22, 3
    s_mul_i32 s28, s24, 3
    s_add_u32 s27, s27, s28
    s_sub_u32 s27, s27, 16
    s_mul_i32 s28, s24, 3840""")
    for t in range(4):
        k(f"""v_add_u32 v12, {64*t}, v2
        v_mul_u32_u24 v13, 820, v12
        v_lshrrev_b32 v13, 16, v13
        v_mul_u32_u24 v14, 80, v13
        v_sub_u32 v14, v12, v14
        v_add_u32 v13, s27, v13
        v_cmp_gt_i32 vcc, 0, v13
        v_mul_i32_i24 v13, 20480, v13
        v_lshl_add_u32 v13, v14, 4, v13
        v_mov_b32 v14, 0x7ffffff0
        v_cndmask_b32 v{8+t}, v13, v14, vcc""")
    k(f"""s_mov_b32 s8, {FW}
    s_lshl_b32 s9, s22, 7
    s_add_u32 s9, s9, {F1}
    s_sub_u32 s10, s9, 128
    s_max_u32 s10, s10, {F1}
    s_sub_u32 s11, s9, 256
    s_max_u32 s11, s11, {F1}""")
    wait_s(k, "p2w", 7, [8], 32, barrier=False)
    wait_s(k, "p2", 7, [9, 10, 11], 32)
    mstamp(k, 2)
    k(f"s_add_u32 s29, s26, {KB}")
    for t in range(4):
        k(f"s_add_u32 m0, s28, {1024*t}")
        if t == 3: k("s_mov_b32 exec_hi, 0x0000ffff")
        k(f"buffer_load_dwordx4 v{8+t}, s[12:15], s29 offen {LDX} lds")
    k("s_mov_b64 exec, -1")
    k(f"""v_min_u32 v12, 2, v4
    v_lshlrev_b32 v12, 8, v12
    v_lshl_add_u32 v12, v3, 4, v12
    s_mul_i32 s30, s25, 20480
    s_add_u32 s30, s30, s26
    s_add_u32 s30, s30, {QB}
    buffer_load_dwordx4 v[{QF}:{QF+3}], v12, s[12:15], s30 offen {LDX}
    buffer_load_dwordx4 v[{QF+4}:{QF+7}], v12, s[12:15], s30 offen offset:512 {LDX}""")
    k(f"""s_lshr_b32 s31, s24, 2
    s_and_b32 s32, s24, 3
    s_lshl_b32 s33, s21, 1
    s_add_u32 s33, s33, s31
    s_mul_i32 s33, s33, 81920
    s_add_u32 s33, s33, {VB}
    s_mul_i32 s34, s22, 5120
    s_sub_u32 s34, s34, 10240
    s_lshl_b32 s35, s32, 12
    s_add_u32 s34, s34, s35
    s_mul_i32 s36, s31, 15360
    s_add_u32 s36, s36, s35
    s_add_u32 s36, s36, {VL}
    v_mov_b32 v14, 0x7ffffff0""")
    for t in range(4):
        k(f"""v_add_u32 v13, s34, v7
        v_cmp_gt_i32 vcc, 0, v13
        v_cndmask_b32 v13, v13, v14, vcc
        s_add_u32 m0, s36, {1024*t}""")
        if t == 3:
            k("""s_cmp_eq_u32 s32, 3
            s_cbranch_scc1 L_p2_v3""")
        k(f"buffer_load_dwordx4 v13, s[12:15], s33 offen {LDX} lds")
        if t < 3: k("s_add_u32 s34, s34, 1024")
    k.label("L_p2_v3")
    k(f"""s_and_b32 s31, s24, 6
    s_mul_i32 s32, s31, 1280
    v_add_u32 v8, s32, v12
    s_mul_i32 s32, s31, 640
    s_add_u32 s32, s32, {VL}
    v_add_u32 v9, s32, v7
    v_and_b32 v11, 3, v3
    v_lshl_add_u32 v11, v4, 2, v11
    v_lshlrev_b32 v11, 4, v11
    v_add_u32 v11, s32, v11
    v_cmp_gt_u32 s[48:49], 4, v3
    v_mov_b32 v18, 0x3f803f80
    v_lshlrev_b32 v13, 2, v4
    s_and_b32 s33, s24, 1""")
    MK = {0: 50, 1: 58, 16: 66, 17: 74}
    for r in range(4):
        k(f"""v_add_u32 v14, {r}, v13
        v_cmp_le_u32 s[4:5], v14, v3
        s_not_b64 s[6:7], s[4:5]
        s_cmp_eq_u32 s33, 0
        s_cselect_b64 s[{MK[0]+2*r}:{MK[0]+2*r+1}], s[6:7], 0
        s_cselect_b64 s[{MK[1]+2*r}:{MK[1]+2*r+1}], -1, s[6:7]
        s_cselect_b64 s[{MK[16]+2*r}:{MK[16]+2*r+1}], s[4:5], -1
        s_cselect_b64 s[{MK[17]+2*r}:{MK[17]+2*r+1}], 0, s[4:5]""")
    k(f"""s_mul_i32 s35, s25, 20480
    s_add_u32 s35, s35, s26
    s_add_u32 s35, s35, {OB}
    v_lshlrev_b32 v15, 8, v4
    v_lshl_add_u32 v15, v3, 4, v15
    v_lshlrev_b32 v16, 4, v3
    v_mov_b32 v10, 0x7ffffff0
    v_cmp_gt_u32 vcc, 16, v2
    v_cndmask_b32 v16, v10, v16, vcc
    s_mov_b32 s36, 0x3ea52b5c
    v_mov_b32 v17, 0xf149f2ca
    v_cmp_gt_u32 s[4:5], 2, v4
    v_cmp_gt_u32 s[6:7], 3, v4
    v_cmp_ne_u32 s[8:9], 0, v4
    s_and_b64 s[8:9], s[8:9], s[6:7]""")
    k.wait_vm(3)
    for e, mk in ((0, 6), (1, 6), (2, 4), (3, 4), (4, 8), (5, 8), (6, 6), (7, 6)):
        k(f"v_cndmask_b32 v{QF+e}, 0, v{QF+e}, s[{mk}:{mk+1}]")
    PW = int([e for e in G.EXP if e.startswith('pw')][0][2:]) if any(e.startswith('pw') for e in G.EXP) else 0
    k("s_barrier")
    def kread(t, i): return f"ds_read_b128 v[{KF+4*(i%4)}:{KF+4*(i%4)+3}], v8 offset:{i*1280 + t*512}"
    def qk(t):
        out = [kread(t, 0), kread(t, 1), kread(t, 2)]
        for i in range(18):
            if i + 3 < 18: out.append(kread(t, i + 3))
            out.append(f"v_mfma_f32_16x16x32_bf16 v[{S[t]+4*i}:{S[t]+4*i+3}], v[{KF+4*(i%4)}:{KF+4*(i%4)+3}], v[{QF+4*t}:{QF+4*t+3}], 0")
        return out
    def vread(t, c):
        d = VF + (c % 3) * 8
        return [f"ds_read_b128 v[{d}:{d+3}], v9 offset:{t*15360 + c*1280}", f"ds_read_b128 v[{d+4}:{d+7}], v11 offset:{t*15360 + c*1280+1024}"]
    def pv(t):
        out = vread(t, 0) + vread(t, 1)
        for c in range(9):
            d = VF + (c % 3) * 8
            if c + 2 < 9: out += vread(t, c + 2)
            for e in range(4): out.append(f"v_cndmask_b32 v{d+4+e}, v18, v{d+4+e}, s[48:49]")
            for dd in range(2):
                acc = f"v[{O[t]+4*dd}:{O[t]+4*dd+3}]"
                out.append(f"v_mfma_f32_16x16x32_bf16 {acc}, v[{d+4*dd}:{d+4*dd+3}], v[{S[t]+4*c}:{S[t]+4*c+3}], {acc if c else 0}")
        return out
    def fixup(t):
        lab = f"L_p2_fix{t}"
        k._nop(10)
        k(f"""s_cmp_ge_u32 s22, 2
        s_cbranch_scc1 {lab}
        s_and_b32 s37, s25, 0xfffe
        s_sub_u32 s37, 16, s37""")
        for tau in range(16):
            k.raw(f"    s_cmp_le_i32 s37, {tau}\n    s_cbranch_scc1 {lab}")
            for r in range(4): k.raw(f"    v_mov_b32 v{S[t]+4*tau+r}, v17")
        k.label(lab)
        k._nop(2)
    def softmax(t):
        s0 = S[t]; TT = T + 4 * t
        out = [lambda: fixup(t)]
        for ti in (0, 1, 16, 17):
            for r in range(4):
                out.append(f"v_cndmask_b32 v{s0+4*ti+r}, v17, v{s0+4*ti+r}, s[{MK[ti]+2*r}:{MK[ti]+2*r+1}]")
        regs = list(range(s0, s0 + 72))
        for j in range(4):
            out.append(f"v_max_f32 v{TT+j}, v{regs[j*18]}, v{regs[j*18+1]}")
        for i in range(8):
            for j in range(4):
                out.append(f"v_max3_f32 v{TT+j}, v{TT+j}, v{regs[j*18+2+2*i]}, v{regs[j*18+3+2*i]}")
        out += [f"v_max3_f32 v{TT}, v{TT}, v{TT+1}, v{TT+2}", f"v_max_f32 v{TT}, v{TT}, v{TT+3}",
                f"v_mov_b32 v{TT+1}, v{TT}", f"v_permlane16_swap_b32 v{TT}, v{TT+1}", f"v_max_f32 v{TT}, v{TT}, v{TT+1}",
                f"v_mov_b32 v{TT+1}, v{TT}", f"v_permlane32_swap_b32 v{TT}, v{TT+1}", f"v_max_f32 v{TT}, v{TT}, v{TT+1}",
                f"v_mul_f32 v{TT}, s36, v{TT}", f"v_sub_f32 v{TT}, 0, v{TT}"]
        Gs = 8
        for g0 in range(0, 72, Gs):
            for i in range(Gs): out.append(f"v_fma_f32 v{s0+g0+i}, v{s0+g0+i}, s36, v{TT}")
            for i in range(Gs): out.append(f"v_exp_f32 v{s0+g0+i}, v{s0+g0+i}")
            if g0 >= Gs:
                for i in range(0, Gs, 2): out.append(f"v_cvt_pk_bf16_f32 v{s0+(g0-Gs+i)//2}, v{s0+g0-Gs+i}, v{s0+g0-Gs+i+1}")
        for i in range(64, 72, 2): out.append(f"v_cvt_pk_bf16_f32 v{s0+i//2}, v{s0+i}, v{s0+i+1}")
        return out
    FO = 160
    def final(t):
        F = 140 + 10 * t
        out = [f"v_mov_b32 v{F}, v{O[t]+4}", f"v_mov_b32 v{F+1}, v{O[t]+4}",
               f"v_permlane16_swap_b32 v{F}, v{F+1}", f"v_rcp_f32 v{F+1}, v{F+1}"]
        for i in range(8): out.append(f"v_mul_f32 v{F+2+i}, v{O[t]+i}, v{F+1}")
        o = F + 2
        out += [f"v_cvt_pk_bf16_f32 v{FO+2*t}, v{o}, v{o+1}", f"v_cvt_pk_bf16_f32 v{FO+2*t+1}, v{o+2}, v{o+3}",
                f"v_cvt_pk_bf16_f32 v{FO+4+2*t}, v{o+4}, v{o+5}", f"v_cvt_pk_bf16_f32 v{FO+4+2*t+1}, v{o+6}, v{o+7}"]
        return out
    def mix(valu, mf):
        n = len(valu); m = len(mf); j = 0
        for i, v in enumerate(valu):
            if callable(v): v()
            else: k(v)
            while j < m and (j + 1) * n <= (i + 1) * m: k(mf[j]); j += 1
        while j < m: k(mf[j]); j += 1
    for m in qk(0): k(m)
    k.wait_vm(0)
    k("s_barrier")
    k(f"""s_cmp_ge_u32 s24, 4
    s_cbranch_scc1 L_p2_rpB
    s_cmp_ge_u32 s2, 240
    s_cbranch_scc1 L_p2_norp1""")
    srd(k, 28, 92, NB['wg']); srd(k, 4, 94, NB['wu'])
    repackgu_issue(k, 2, 24, RP, 28, 4, 100, 40, 2, 12, None)
    repackgu_gsdma(k, 100, 40, 2, 12, RP + 6*4096, fl=LDX)
    k("s_branch L_p2_norp1")
    k.label("L_p2_rpB")
    k(f"""s_sub_u32 s16, s24, 4
    s_lshl_b32 s16, s16, 8
    s_add_u32 s16, s16, s2
    s_add_u32 s16, s16, 200
    s_lshl_b32 s17, s24, 12
    s_add_u32 s17, s17, {RP}
    s_cmp_ge_u32 s16, 680
    s_cbranch_scc1 L_p2_norp1""")
    srd(k, 28, 96, NB['wd'])
    rid = repack16_issue(k, 16, 17, 28, 28, 100, 40, 2)
    k.label("L_p2_norp1")
    reset(k); k._nop(4)
    if 'pre3' not in G.EXP:
        prefetch_lin(k, 12, WOP, 8*20*5120, 512, 0, 104, 38, dst='v200', full=True)
    else:
        k(f"""s_cmp_lt_u32 s24, 4
        s_cbranch_scc1 L_p2_nowo
        s_lshr_b32 s28, s2, 5
        s_mul_i32 s28, s28, {20*5120}
        s_sub_u32 s29, s24, 4
        s_mul_i32 s29, s29, 5120
        s_add_u32 s28, s28, s29
        s_add_u32 s28, s28, {WOP}
        s_and_b32 s30, s2, 7
        s_mul_i32 s30, s30, {5 if 'norot' not in G.EXP else 0}
        s_lshr_b32 s30, s30, 3
        v_add_u32 v100, 4096, v7""")
        for c in range(3):
            k(f"""s_mul_i32 s31, s30, 20480
            s_add_u32 s31, s31, s28
            s_add_u32 s30, s30, 1
            s_cmp_ge_u32 s30, 5
            s_cselect_b32 s30, 0, s30
            s_add_u32 m0, s29, {(3+c)*20480}""")
            for t in range(4):
                k(f"buffer_load_dwordx4 v7, s[12:15], s31 offen offset:{1024*t} {LDX} lds")
            k(f"s_add_u32 m0, s29, {(3+c)*20480 + 4096}")
            k(f"buffer_load_dwordx4 v100, s[12:15], s31 offen {LDX} lds")
        k.label("L_p2_nowo")
        reset(k); k._nop(4)
    if 'tact' in G.EXP:
        k(f"""s_mul_i32 s38, s2, 24576
        s_add_u32 s38, s38, {ACT}
        v_lshlrev_b32 v104, 7, v0
        v_mov_b32 v105, 0x7ffffff0
        v_cmp_gt_u32 vcc, 192, v0
        v_cndmask_b32 v104, v105, v104, vcc
        buffer_load_dword v201, v104, s[12:15], s38 offen sc0 sc1""")
        k.pend_vm.pop(('v', 201), None)
    mix(softmax(0), qk(1))
    mix(softmax(1), pv(0))
    k.wait_vm(0)
    k("s_barrier")
    mix(final(0), pv(1))
    for v in final(1): k(v)
    k(f"buffer_store_dwordx4 v[{FO}:{FO+3}], v15, s[12:15], s35 offen sc1")
    k(f"buffer_store_dwordx4 v[{FO+4}:{FO+7}], v16, s[12:15], s35 offen offset:1024 sc1")
    k(f"""s_lshl_b32 s22, s22, 7
    s_lshl_b32 s21, s21, 2
    s_add_u32 s22, s22, s21
    s_add_u32 s22, s22, {F2}
    s_cmp_ge_u32 s24, 4
    s_cbranch_scc1 L_p2_fin
    s_cmp_ge_u32 s2, 240
    s_cbranch_scc1 L_p2_fin
    v_lshrrev_b32 v20, 5, v2
    s_mov_b32 s30, 0xffff0000""")
    repackgu_gs_lds(k, RP + 6*4096, 176, 20)
    repackgu_finish(k, 24, RP, 12, 176, 24, 40, 2, 20, 30, gsp=GSP)
    k.raw("    s_waitcnt vmcnt(6)")
    k("s_branch L_sigb_p2")
    k.label("L_p2_fin")
    reset(k); k._nop(4)
    signal(k, 22, "p2")
    k.rid = rid

def p35(k, wo):
    nm = 'p3' if wo else 'p5'
    NS32 = 20 if wo else 48
    NC = NS32 // 4
    NS = 5 if wo else 7
    R = 3; XD = 5
    PH = (lambda c: [3, 4, 5, 0, 1][c]) if wo else (lambda c: c % NS)
    ROT = NC if 'norot' not in G.EXP else 0
    XB = OB if wo else ACT
    WP = WOP if wo else WDP
    SS = 20480
    ACC = 32; WF = 52; EX = 132; XA = 164; TMP = 52
    EXX = EX
    k(f"""s_and_b32 s20, s2, 7
    s_lshr_b32 s21, s2, 3
{MAP35}
    v_lshlrev_b32 v5, 4, v2
    v_add_u32 v6, 4096, v5
    s_mul_i32 s37, s20, {ROT}
    s_lshr_b32 s37, s37, 3
    s_cmp_lt_u32 s3, 4
    s_cbranch_scc1 L_{nm}_comp""")
    def nextc():
        k(f"""s_add_u32 s37, s37, 1
        s_cmp_ge_u32 s37, {NC}
        s_cselect_b32 s37, 0, s37""")
    st0 = snap(k)
    k(f"""s_sub_u32 s24, s3, 4
    s_mul_i32 s25, s23, {NS32*5120}
    s_mul_i32 s26, s24, 5120
    s_add_u32 s25, s25, s26
    s_add_u32 s25, s25, {WP}""")
    dma = {}
    def fw(c):
        slot = PH(c)
        if wo and c < 3 and 'pre3' in G.EXP:
            nextc(); dma[c] = None
            return
        k(f"s_mul_i32 s29, s37, {SS}")
        k(f"s_add_u32 s29, s29, s25")
        nextc()
        k(f"s_add_u32 m0, s26, {slot*SS}")
        for t in range(4):
            k(f"buffer_load_dwordx4 v5, s[12:15], s29 offen offset:{1024*t} {LDX} lds")
        k(f"s_add_u32 m0, s26, {slot*SS + 4096}")
        dma[c] = k(f"buffer_load_dwordx4 v6, s[12:15], s29 offen {LDX} lds")
    if wo:
        k(f"""s_cmp_ge_u32 s16, 680
        s_cbranch_scc1 L_p3_norp""")
        stn = snap(k)
        repack16_finish(k, 16, 17, 12, 24, 40, 2, None, wd=True)
        k.label("L_p3_norp")
        restore(k, stn); k._nop(4)
    for c in range(NS):
        if not wo and 'thr1' in G.EXP and c >= 1: k.wait_vm_id(dma[c - 1])
        if not wo and 'thr2' in G.EXP and c >= 2: k.wait_vm_id(dma[c - 2])
        fw(c)
    k("s_barrier")
    for cb in range(NC):
        k.wait_vm_id(dma[cb])
        if wo and cb == 1: k.waitall()
        k("s_barrier")
        if cb >= 2 and cb - 2 + NS < NC: fw(cb - 2 + NS)
        if wo and cb == 1:
            k(f"""s_lshl_b32 s36, s2, 2
            s_add_u32 s36, s36, {FRP}""")
            flag_store(k, 36, 4, "rp")
    if wo and 'pfwd3' in G.EXP:
        prefetch_lin(k, 12, WDP, 8*48*5120, 256, 0, 30, 40, tid_off=256, dst='v34', full=True)
    if wo and 'pfgu' in G.EXP:
        prefetch_lin(k, 12, WGUP, 48*40960, 256, 0, 30, 40, tid_off=256, dst='v34')
    k(f"s_branch L_sigb_p3" if wo else "s_endpgm")
    k.label(f"L_{nm}_comp")
    restore(k, st0)
    goff = MOD + (2 if wo else 5) * 2560
    srd(k, 16, 86 if wo else 98, NB['x'])
    k(f"""s_mov_b32 s24, s3
    v_and_b32 v3, 15, v2
    v_lshrrev_b32 v4, 4, v2
    s_lshl_b32 s31, s22, 2
    s_add_u32 s31, s31, s24           ; T16
    s_mul_i32 s27, s31, {NS32*1024}
    s_add_u32 s27, s27, {XB}
    s_mul_i32 s32, s23, 320
    s_add_u32 s32, s32, {goff}
    v_lshlrev_b32 v13, 4, v4
    s_lshr_b32 s33, s31, 1
    s_mul_i32 s33, s33, 40960
    s_mul_i32 s34, s23, 5120
    s_add_u32 s33, s33, s34
    s_add_u32 s33, s33, {X1}
    s_and_b32 s34, s31, 1
    s_lshl_b32 s34, s34, 8
    v_lshl_add_u32 v14, v3, 4, s34
    v_lshrrev_b32 v15, 1, v4
    v_lshl_add_u32 v14, v15, 9, v14
    v_and_b32 v15, 1, v4
    v_lshl_add_u32 v14, v15, 3, v14
    s_mul_i32 s34, s31, {16*1280}
    s_mul_i32 s35, s23, 160
    s_add_u32 s34, s34, s35
    v_mul_u32_u24 v15, 1280, v3
    v_lshl_add_u32 v15, v4, 3, v15
    v_add_u32 v21, 4096, v14
    v_add_u32 v7, {3*SS}, v5
    v_add_u32 v8, {6*SS}, v5""")
    k(f"""s_lshr_b32 s36, s22, 1
    s_lshl_b32 s36, s36, 7
    s_add_u32 s36, s36, {F2 if wo else F4}""")
    for j in range(5):
        k(f"buffer_load_dwordx4 v[{EX+4*j}:{EX+4*j+3}], v13, s[12:15], s32 offen offset:{64*j} {LDX}")
        if wo: k(f"buffer_load_dwordx2 v[{EX+20+2*j}:{EX+21+2*j}], v15, s[16:19], s34 offen offset:{32*j}")
        else:
            k(f"v_mov_b32 v{EX+20+2*j}, v{236+2*j}"); k(f"v_mov_b32 v{EX+21+2*j}, v{237+2*j}")
    wait_s(k, nm, 0, [36], 48, barrier=False)
    if wo: k.waitall()
    k("s_barrier")
    mstamp(k, 4 if wo else 8)
    def fx(c):
        k(f"s_lshl_b32 s30, s37, 12")
        k(f"s_add_u32 s30, s30, s27")
        nextc()
        for i in range(4):
            r = XA + (c % XD) * 16 + i * 4
            k(f"buffer_load_dwordx4 v[{r}:{r+3}], v5, s[12:15], s30 offen offset:{1024*i} {LDX}")
    for c in range(min(XD - 1, NC)): fx(c)
    nxt = min(XD - 1, NC)
    epi = []
    def reads(s):
        c = s // 4; ks = s % 4; slot = PH(c)
        base = (5, 7, 8)[slot // 3]; so = (slot % 3) * SS
        return [f"ds_read_b128 v[{WF+(s%4)*20+j*4}:{WF+(s%4)*20+j*4+3}], v{base} offset:{so + ks*5120 + j*1024}" for j in range(5)]
    k("s_barrier")
    for q in range(R):
        for t in reads(q): k(t)
    pend = []
    for s in range(NS32):
        if (s + R) % 4 == 0 and (s + R) // 4 < NC:
            k("s_barrier")
        c = s // 4
        if s % 4 == 0:
            if nxt < NC and nxt <= c + XD - 1: pend = pend + [lambda c_=nxt: fx(c_)]; nxt += 1
            elif epi: pend = pend + epi; epi = []
        fill = reads(s + R) if s + R < NS32 else []
        n = min(len(pend), 4)
        fill = fill + pend[:n]; pend = pend[n:]
        mf = []
        for j in range(5):
            w = f"v[{WF+(s%4)*20+j*4}:{WF+(s%4)*20+j*4+3}]"
            xr = XA + (c % XD) * 16 + (s % 4) * 4
            d0 = ACC + j * 4
            mf.append(f"v_mfma_f32_16x16x32_bf16 v[{d0}:{d0+3}], {w}, v[{xr}:{xr+3}], {'v[%d:%d]' % (d0, d0+3) if s else 0}")
        interleave(k, mf, fill)
    for t in pend + epi:
        if callable(t): t()
        else: k(t)
    k("s_mov_b32 s30, 0xffff0000")
    PK = TMP + 16
    if wo:
        k("v_mov_b32 v26, 0"); k("v_mov_b32 v27, 0")
        k(f"""v_and_b32 v22, 1, v4
        v_lshlrev_b32 v23, 3, v22
        v_sub_u32 v23, v14, v23
        v_lshl_add_u32 v22, v22, 10, v23
        v_add_u32 v23, 4096, v23""")
    else:
        k(f"""v_and_b32 v22, 1, v4
        v_lshlrev_b32 v23, 3, v22
        v_sub_u32 v23, v15, v23
        v_lshl_add_u32 v22, v22, 5, v23""")
    for j in range(5):
        a0 = ACC + 4 * j; gq = EX + 4 * j; xr = EX + 20 + 2 * j; T = TMP + 8 * (j % 2); P_ = PK + 2 * j
        k(f"""v_cvt_pk_bf16_f32 v{T}, v{a0}, v{a0+1}
        v_cvt_pk_bf16_f32 v{T+1}, v{a0+2}, v{a0+3}
        v_lshlrev_b32 v{a0}, 16, v{T}
        v_and_b32 v{a0+1}, s30, v{T}
        v_lshlrev_b32 v{a0+2}, 16, v{T+1}
        v_and_b32 v{a0+3}, s30, v{T+1}
        v_mul_f32 v{a0}, v{a0}, v{gq}
        v_mul_f32 v{a0+1}, v{a0+1}, v{gq+1}
        v_mul_f32 v{a0+2}, v{a0+2}, v{gq+2}
        v_mul_f32 v{a0+3}, v{a0+3}, v{gq+3}
        v_cvt_pk_bf16_f32 v{T}, v{a0}, v{a0+1}
        v_cvt_pk_bf16_f32 v{T+1}, v{a0+2}, v{a0+3}
        v_lshlrev_b32 v{a0}, 16, v{T}
        v_and_b32 v{a0+1}, s30, v{T}
        v_lshlrev_b32 v{a0+2}, 16, v{T+1}
        v_and_b32 v{a0+3}, s30, v{T+1}
        v_lshlrev_b32 v{T+2}, 16, v{xr}
        v_and_b32 v{T+3}, s30, v{xr}
        v_lshlrev_b32 v{T+4}, 16, v{xr+1}
        v_and_b32 v{T+5}, s30, v{xr+1}
        v_add_f32 v{a0}, v{a0}, v{T+2}
        v_add_f32 v{a0+1}, v{a0+1}, v{T+3}
        v_add_f32 v{a0+2}, v{a0+2}, v{T+4}
        v_add_f32 v{a0+3}, v{a0+3}, v{T+5}
        v_cvt_pk_bf16_f32 v{P_}, v{a0}, v{a0+1}
        v_cvt_pk_bf16_f32 v{P_+1}, v{a0+2}, v{a0+3}""")
        if wo:
            k(f"""v_lshlrev_b32 v{a0}, 16, v{P_}
            v_and_b32 v{a0+1}, s30, v{P_}
            v_lshlrev_b32 v{a0+2}, 16, v{P_+1}
            v_and_b32 v{a0+3}, s30, v{P_+1}""")
            for e in range(4):
                k(f"v_add_f32 v26, v26, v{a0+e}")
                k(f"v_fmac_f32 v27, v{a0+e}, v{a0+e}")
            k(f"v_mov_b32 v{236+2*j}, v{P_}"); k(f"v_mov_b32 v{237+2*j}, v{P_+1}")
        if j == 4:
            k(f"v_mov_b32 v{P_+2}, v{P_}"); k(f"v_mov_b32 v{P_+3}, v{P_+1}")
        if j % 2 == 1 or j == 4:
            q = PK + 2 * (j - 1 if j % 2 else j)
            k(f"v_permlane16_swap_b32 v{q}, v{q+2}")
            k(f"v_permlane16_swap_b32 v{q+1}, v{q+3}")
            jj = j - 1 if j % 2 else j
            if wo:
                if j < 4: k(f"buffer_store_dwordx4 v[{q}:{q+3}], v22, s[12:15], s33 offen offset:{1024*jj} sc1")
                else: k(f"buffer_store_dwordx4 v[{q}:{q+3}], v23, s[12:15], s33 offen sc1")
            else:
                k(f"buffer_store_dwordx4 v[{q}:{q+3}], v{22 if j < 4 else 23}, s[16:19], s34 offen offset:{32*jj} {'sc1' if 'osc1' in G.EXP else ('nt' if 'ont' in G.EXP else '')}")
    if wo:
        for r in (26, 27):
            k(f"""v_mov_b32 v28, v{r}
            v_permlane16_swap_b32 v{r}, v28
            v_add_f32 v{r}, v{r}, v28
            v_mov_b32 v28, v{r}
            v_permlane32_swap_b32 v{r}, v28
            v_add_f32 v{r}, v{r}, v28""")
        k(f"""s_lshl_b32 s38, s31, 10
        s_lshl_b32 s39, s23, 3
        s_add_u32 s38, s38, s39
        s_add_u32 s38, s38, {ST}
        v_lshlrev_b32 v28, 6, v3
        v_mov_b32 v29, 0x7ffffff0
        v_cmp_gt_u32 vcc, 16, v2
        v_cndmask_b32 v28, v29, v28, vcc
        buffer_store_dwordx2 v[26:27], v28, s[12:15], s38 offen sc1""")
    k.label(f"L_{nm}_done")
    reset(k); k._nop(12)
    if wo:
        k(f"v_add_u32 v19, {FRP}, v5")
        wait(k, "crp", 1, 19, 64, barrier=False, slp=4)

        k(f"""s_and_b32 s36, s22, 1
        s_lshl_b32 s36, s36, 3
        s_add_u32 s36, s36, s23
        s_lshl_b32 s36, s36, 2
        s_lshr_b32 s22, s22, 1
        s_lshl_b32 s22, s22, 7
        s_add_u32 s22, s22, s36
        s_add_u32 s22, s22, {F3}""")
        signal(k, 22, nm)

def p4(k):
    NS = 4; SS = 40960
    ACC = 32; XF = 80; WF = 92; GWR = 128; SWR = 176; TMP = 224; STT = 24; R = 2
    k(f"""s_and_b32 s20, s2, 7
    s_lshr_b32 s21, s2, 3
{MAP14}
    s_mov_b32 s24, s3
    v_lshrrev_b32 v20, 5, v2
    v_lshlrev_b32 v5, 4, v2
    s_and_b32 s25, s24, 3
    s_lshr_b32 s26, s24, 2
    s_lshr_b32 s27, s24, 1
    s_lshl_b32 s28, s22, 2
    s_add_u32 s27, s27, s28
    s_mul_i32 s27, s27, 40960
    s_and_b32 s28, s24, 1
    s_lshl_b32 s28, s28, 11
    s_add_u32 s27, s27, s28
    s_add_u32 s27, s27, {X1}
    s_lshl_b32 s28, s24, 11
    s_mul_i32 s29, s24, 3
    s_mul_i32 s30, s23, {6*40960}
    s_add_u32 s30, s30, {WGUP}""")
    for i in range(3):
        k(f"""s_add_u32 s31, s29, {i}
        s_lshr_b32 s32, s31, 2
        s_mul_i32 s32, s32, 40960
        s_and_b32 s31, s31, 3
        s_lshl_b32 s31, s31, 10
        s_add_u32 s32, s32, s31
        s_add_u32 s{40+i}, s32, s30""")
    k(f"""s_lshl_b32 s29, s29, 10
    s_add_u32 s29, s29, 16384""")
    dma = {}
    def fx(c):
        slot = c % NS
        k(f"s_add_u32 m0, s28, {slot*SS}")
        k(f"s_add_u32 s33, s27, {c*4096}")
        k(f"buffer_load_dwordx4 v5, s[12:15], s33 offen {LDX} lds")
        dma[c] = k(f"buffer_load_dwordx4 v5, s[12:15], s33 offen offset:1024 {LDX} lds")
    def fw(c, i):
        slot = c % NS
        k(f"s_add_u32 m0, s29, {slot*SS + i*1024}")
        k(f"s_add_u32 s33, s{40+i}, {c*4096}")
        dma[c] = k(f"buffer_load_dwordx4 v5, s[12:15], s33 offen {LDX} lds")
    def issue(c):
        out = [lambda: fx(c)] + [(lambda i=i: fw(c, i)) for i in range(3)]
        for f in out: f.c = c
        return out
    for c in range(NS):
        for i in range(3): fw(c, i)
    k(f"""v_and_b32 v7, 31, v2
    v_lshlrev_b32 v7, 6, v7
    v_lshl_add_u32 v7, v20, 5, v7
    s_lshl_b32 s34, s22, 2
    s_add_u32 s34, s34, s25
    s_lshl_b32 s35, s25, 12
    v_add_u32 v8, s35, v5
    s_mul_i32 s35, s26, 12288
    s_add_u32 s35, s35, 16384
    v_add_u32 v12, s35, v5
    s_lshl_b32 s36, s22, 7
    s_add_u32 s37, s36, {F3}
    ; gsum partial gather: thread t<384: vec = t/192, col = t%192 -> byte = vec*12288 + nb*768 + col*4
    v_cmp_gt_u32 vcc, 192, v0
    v_mov_b32 v21, {12288 - 768}
    v_cndmask_b32 v21, v21, 0, vcc
    v_lshl_add_u32 v21, v0, 2, v21
    v_mov_b32 v22, 0x7ffffff0
    v_cmp_gt_u32 vcc, 0x180, v0
    v_cndmask_b32 v21, v22, v21, vcc
    s_mul_i32 s36, s23, 768
    s_add_u32 s36, s36, {GSP}""")
    for e in range(10):
        k(f"buffer_load_dword v{GWR+e}, v21, s[12:15], s36 offen {LDX}")
        if e < 9: k("s_add_u32 s36, s36, 24576")
    for g in range(1, 4):
        k(f"v_add_u32 v{8+g}, {g*SS}, v8")
        k(f"v_add_u32 v{12+g}, {g*SS}, v12")
    for i in range(48): k(f"v_mov_b32 v{ACC+i}, 0")
    wait_s(k, "p4", 0, [37], 48)
    mstamp(k, 6)
    fx(0); fx(1)
    k(f"""s_lshl_b32 s35, s34, 11
    s_add_u32 s35, s35, {ST}
    buffer_load_dwordx4 v[{TMP}:{TMP+3}], v7, s[12:15], s35 offen {LDX}
    buffer_load_dwordx4 v[{TMP+4}:{TMP+7}], v7, s[12:15], s35 offen offset:16 {LDX}""")
    fx(2); fx(3)
    def reads(s):
        c = s // 4; ks = s % 4; slot = c % NS
        out = [f"ds_read_b128 v[{XF+(s%3)*4}:{XF+(s%3)*4+3}], v{8+slot} offset:{ks*1024}"]
        for j in range(3):
            d = WF + (s % 3) * 12 + j * 4
            out.append(f"ds_read_b128 v[{d}:{d+3}], v{12+slot} offset:{j*4096 + ks*1024}")
        return out
    def stats():
        b = TMP
        k(f"""v_add_f32 v{b}, v{b}, v{b+2}
        v_add_f32 v{b+1}, v{b+1}, v{b+3}
        v_add_f32 v{b+4}, v{b+4}, v{b+6}
        v_add_f32 v{b+5}, v{b+5}, v{b+7}
        v_add_f32 v{b}, v{b}, v{b+4}
        v_add_f32 v{b+1}, v{b+1}, v{b+5}
        v_mov_b32 v{b+2}, v{b}
        v_mov_b32 v{b+3}, v{b+1}
        v_permlane32_swap_b32 v{b}, v{b+2}
        v_permlane32_swap_b32 v{b+1}, v{b+3}
        v_add_f32 v{b}, v{b}, v{b+2}
        v_add_f32 v{b+1}, v{b+1}, v{b+3}
        v_mul_f32 v{b}, 0x3acccccd, v{b}
        v_mul_f32 v{b+1}, 0x3acccccd, v{b+1}
        v_fma_f32 v{b+1}, -v{b}, v{b}, v{b+1}
        v_max_f32 v{b+1}, 0, v{b+1}""")
        bf16r(k, b, b); bf16r(k, b + 1, b + 1)
        k(f"v_add_f32 v{b+1}, 0x3727c5ac, v{b+1}")
        bf16r(k, b + 1, b + 1)
        k(f"v_sqrt_f32 v{b+1}, v{b+1}")
        bf16r(k, b + 1, b + 1)
        k(f"v_rcp_f32 v{STT}, v{b+1}")
        k(f"v_sub_f32 v{STT+1}, 0, v{b}")
    k.wait_vm_id(dma[0])
    k("s_barrier")
    mstamp(k, 10, 0)
    for q in range(R):
        for t in reads(q): k(t)
    pend = []
    gs_id = None
    for s in range(40):
        if (s + R) % 4 == 0 and (s + R) // 4 <= 10:
            cb = (s + R) // 4
            while cb < 10 and any(getattr(f, 'c', None) == cb for f in pend):
                f = pend.pop(0); f()
            if cb < 10: k.wait_vm_id(dma[cb])
            if cb == 10: k.wait_lg(0)
            k("s_barrier")
            if cb == 4: mstamp(k, 11, 0)
            if cb == 8: mstamp(k, 12, 0)
            if cb >= 2 and cb - 2 + NS <= 9: pend = pend + issue(cb - 2 + NS)
            if cb == 9: pend = pend + [stats]
            if 1 <= cb <= 6 and 'nopfs' not in G.EXP:
                def pfs(i=cb - 1):
                    if i == 0:
                        k(f"""s_lshr_b32 s38, s2, 3
                        s_mul_i32 s38, s38, 61440
                        s_add_u32 s38, s38, {WDP}
                        v_lshlrev_b32 v26, 3, v2
                        v_add_u32 v26, s24, v26
                        v_lshlrev_b32 v26, 7, v26
                        v_mov_b32 v27, 0x7ffffff0
                        v_cmp_gt_u32 vcc, 10, v2
                        v_cndmask_b32 v26, v27, v26, vcc""")
                    else:
                        k("s_add_u32 s38, s38, 10240")
                    k("buffer_load_dword v30, v26, s[12:15], s38 offen")
                    k.pend_vm.pop(('v', 30), None)
                pend = pend + [pfs]
            if cb == 3 and 'pfwd4' in G.EXP: pend = pend + [lambda: prefetch_lin(k, 12, WDP, 8*48*5120, 512, 0, 26, 38, dst='v30', full=True)]
            if cb == 8:
                def fg():
                    for e in range(1, 10): k(f"v_add_f32 v{GWR}, v{GWR}, v{GWR+e}")
                    k(f"""v_cmp_gt_u32 vcc, 192, v0
                    v_mov_b32 v21, {2*SS + 1024 - 768}
                    v_mov_b32 v22, {2*SS}
                    v_cndmask_b32 v21, v21, v22, vcc
                    v_lshl_add_u32 v21, v0, 2, v21
                    ds_write_b32 v21, v{GWR}""")
                pend = pend + [fg] + ([] if 'wdp' not in G.EXP else [lambda: prefetch_lin(k, 12, WDP, 8*48*5120, 512, 0, 26, 36, dst='v30', full=True)])
        fill = reads(s + R) if s + R < 40 else []
        if s >= 38:
            if s == 38:
                k(f"""s_mul_i32 s33, s26, 384
                s_add_u32 s33, s33, {2*SS}
                v_lshlrev_b32 v16, 4, v20
                v_add_u32 v16, s33, v16""")
            for a in (2 * (s - 38), 2 * (s - 38) + 1):
                for j in range(3):
                    fill.append(f"ds_read_b128 v[{GWR+16*j+4*a}:{GWR+16*j+4*a+3}], v16 offset:{j*128 + a*32}")
                    fill.append(f"ds_read_b128 v[{SWR+16*j+4*a}:{SWR+16*j+4*a+3}], v16 offset:{1024 + j*128 + a*32}")
        n = min(len(pend), 2)
        fill = fill + pend[:n]; pend = pend[n:]
        mf = []
        for j in range(3):
            w = f"v[{WF+(s%3)*12+j*4}:{WF+(s%3)*12+j*4+3}]"; x = f"v[{XF+(s%3)*4}:{XF+(s%3)*4+3}]"
            d = f"v[{ACC+16*j}:{ACC+16*j+15}]"
            mf.append(f"v_mfma_f32_32x32x16_bf16 {d}, {w}, {x}, {d}")
        interleave(k, mf, fill)
    mstamp(k, 13, 0)
    k(f"""s_mul_i32 s31, s23, 6
    s_mul_i32 s32, s26, 3
    s_add_u32 s31, s31, s32
    s_mul_i32 s32, s34, {2*48*1024}
    s_add_u32 s29, s32, {ACT}
    v_bfe_u32 v3, v2, 4, 1
    v_mul_u32_u24 v4, {48*1024}, v3
    v_and_b32 v3, 15, v2
    v_lshl_add_u32 v4, v3, 4, v4
    v_lshl_add_u32 v4, v20, 8, v4
    s_mov_b32 s35, 0xbfb8aa3b""")
    for j in range(3):
        k(f"""s_add_u32 s32, s31, {j}
        s_lshl_b32 s33, s32, 9
        s_add_u32 s33, s33, s29""")
        r = ACC + 16 * j; gw = GWR + 16 * j; sw = SWR + 16 * j
        T = XF + 8 * (j % 2); O = XF + 16 + 4 * j
        for e in range(16): k(f"v_fmac_f32 v{r+e}, v{gw+e}, v{STT+1}")
        for e in range(16): k(f"v_fmac_f32 v{sw+e}, v{r+e}, v{STT}")
        for e in range(8): k(f"v_mul_f32 v{T+e}, s35, v{sw+e}")
        for e in range(8): k(f"v_exp_f32 v{T+e}, v{T+e}")
        for e in range(8): k(f"v_add_f32 v{T+e}, 1.0, v{T+e}")
        for e in range(8): k(f"v_rcp_f32 v{T+e}, v{T+e}")
        for e in range(8): k(f"v_mul_f32 v{sw+e}, v{sw+e}, v{sw+8+e}")
        for e in range(8): k(f"v_mul_f32 v{sw+e}, v{sw+e}, v{T+e}")
        for e in range(4): k(f"v_cvt_pk_bf16_f32 v{O+e}, v{sw+2*e}, v{sw+2*e+1}")
        k(f"buffer_store_dwordx4 v[{O}:{O+3}], v4, s[12:15], s33 offen sc1")
    k(f"""s_lshl_b32 s22, s22, 7
    s_lshl_b32 s23, s23, 2
    s_add_u32 s22, s22, s23
    s_add_u32 s22, s22, {F4}""")
    mstamp(k, 14, 0); mstamp(k, 15, 7)
    signal(k, 22, "p4")

def gen_mega():
    k = Kern("adaLN_cond__sliding_block__swiglu_ffn__prompt_kernel")
    k(f"""s_cmp_ge_u32 s2, 256
    s_cbranch_scc1 L_mega_end
    s_load_dwordx2 s[84:85], s[0:1], {ARG['ws']}
    s_load_dwordx2 s[86:87], s[0:1], {ARG['x']}
    s_load_dwordx4 s[88:91], s[0:1], {ARG['wqkv']}
    s_load_dwordx4 s[92:95], s[0:1], {ARG['wg']}
    s_load_dwordx2 s[96:97], s[0:1], {ARG['wd']}
    s_load_dwordx2 s[98:99], s[0:1], {ARG['out']}
    s_load_dwordx2 s[80:81], s[0:1], {ARG['dbg']}
    s_load_dwordx4 s[76:79], s[0:1], {ARG['c']}
    s_memrealtime s[4:5]
    v_lshrrev_b32 v1, 6, v0
    v_and_b32 v2, 63, v0
    v_readfirstlane_b32 s3, v1""")
    k.waitall()
    srd(k, 12, 84, NB['ws'])
    k("""s_add_u32 s6, s2, s3
    s_cmp_lg_u32 s6, 0
    s_cbranch_scc1 L_notag
    s_or_b32 s4, s4, 1
    v_mov_b32 v250, 0
    v_mov_b32 v251, s4
    s_mov_b64 exec, 1
    global_store_dword v250, v251, s[80:81] sc1
    s_mov_b64 exec, -1""")
    k.label("L_notag")
    reset(k); k._nop(2)
    if 'nopfcode' not in G.EXP:
        k.raw("""    s_getpc_b64 s[4:5]
L_pcref:
    s_lshr_b32 s6, s2, 3
    s_cmp_lg_u32 s6, """ + ("0" if 'pfc0' in G.EXP else "31") + """
    s_cbranch_scc1 L_nopfc
    v_lshlrev_b32 v250, 7, v0
    v_cmp_gt_u32 vcc, L_mega_end-L_pcref, v250
    s_and_saveexec_b64 s[6:7], vcc
    s_cbranch_execz L_nopfc2
    global_load_dword v249, v250, s[4:5]
L_nopfc2:
    s_mov_b64 exec, -1
L_nopfc:""")
    mstamp(k, 0)
    p1(k); mstamp(k, 1)
    p2(k); mstamp(k, 3)
    p35(k, True); mstamp(k, 5)
    p4(k); mstamp(k, 7)
    p35(k, False)
    if MPROF or DPROF: k.waitall()
    mstamp(k, 9)
    k.label("L_mega_end")
    k("s_endpgm")
    return k

def all_kernels():
    return [(gen_mega(), 256, 512, 163840)]

if __name__ == "__main__":
    if len(sys.argv) > 1 and sys.argv[1] == "prof": MPROF = True
    if len(sys.argv) > 1 and sys.argv[1] == "dprof": DPROF = True
    for e in sys.argv[2:]:
        if e.startswith("slp"): SLP = int(e[3:])
        G.EXP.add(e)
    open("mega" + "_".join([""] + sys.argv[2:]) + ".s", "w").write(build_file(all_kernels()))
```
